```python
import torch

def _softmax(x, axis=-1):
    return torch.softmax(x, dim=axis)
def _gelu(x):
    return torch.nn.functional.gelu(x, approximate="tanh")
def _silu(x):
    return torch.nn.functional.silu(x)
def _sigmoid(x):
    return torch.sigmoid(x)
def _layernorm(x, axis=-1, eps=1e-5):
    m = x.mean(dim=axis, keepdim=True)
    v = x.var(dim=axis, keepdim=True, unbiased=False)
    return (x - m) / torch.sqrt(v + eps)
def _scatter_add(tgt, idx, src, axis=0):
    return tgt.clone().index_add_(axis, idx, src)
def _segment_sum(src, seg, n):
    out = torch.zeros((n,) + src.shape[1:], dtype=src.dtype)
    return out.index_add_(0, seg, src)
def _pad(x, pw):
    flat = tuple(v for pair in reversed(pw) for v in pair)
    return torch.nn.functional.pad(x, flat)

kernel_name = 'standalone__deep_cross_xdeepfm__recsys'

def setup_inputs():

    _w = (lambda a: (lambda t: t.to(torch.bfloat16) if t.is_floating_point() else t)(torch.as_tensor(a)))
    B, F, D, L = 4096, 26, 32, 3
    V = min(100000, 100000)
    Din = F * D
    return {
        "idx": _w((lambda lo, hi, *s: torch.randint(lo, hi, s))(0, V, B, F).to(torch.int64)),
        "table": _w((lambda *s: torch.randn(*s, dtype=torch.bfloat16) * 0.8)(V, D)),
        "ws_cin": _w((lambda *s: torch.randn(*s, dtype=torch.bfloat16) * 0.2)(L, F, F, F) * (1.0 / F)),
        "w_cin_out": _w((lambda *s: torch.randn(*s, dtype=torch.bfloat16) * 0.2)(L * F) * ((L * F) ** -0.5)),
        "w_dnn1": _w((lambda *s: torch.randn(*s, dtype=torch.bfloat16) * 0.8)(Din, Din) * (Din ** -0.5)),
        "b_dnn1": _w((lambda *s: torch.randn(*s, dtype=torch.bfloat16) * 1.6)(Din) * 0.1),
        "w_dnn2": _w((lambda *s: torch.randn(*s, dtype=torch.bfloat16) * 0.2)(Din) * (Din ** -0.5)),
        "b_out": _w((lambda *s: torch.randn(*s, dtype=torch.bfloat16) * 0.2)(1)),
    }

def reference(idx, table, ws_cin, w_cin_out, w_dnn1, b_dnn1, w_dnn2, b_out):
    x0 = table[idx]
    B = x0.shape[0]
    L = ws_cin.shape[0]
    xk = x0
    pooled = []
    for l in range(L):
        xk = torch.einsum('bid,bjd,hij->bhd', xk, x0, ws_cin[l])
        pooled.append(xk.sum(axis=-1))
    p_plus = torch.stack(pooled, axis=1).reshape(B, -1)
    logit_cin = p_plus @ w_cin_out
    h = x0.reshape(B, -1)
    h = _gelu(h @ w_dnn1 + b_dnn1)
    logit_dnn = h @ w_dnn2
    return logit_cin + logit_dnn + b_out
```

```python
import re, sys
REG = re.compile(r'\b([vsa])(\d+)\b|\b([vsa])\[(\d+):(\d+)\]|\b(vcc|exec|m0|scc)(?:_lo|_hi)?\b')
def regs(tok):
    out = set()
    for m in REG.finditer(tok):
        if m.group(1): out.add((m.group(1), int(m.group(2))))
        elif m.group(3): out.update((m.group(3), i) for i in range(int(m.group(4)), int(m.group(5)) + 1))
        else: out.add((m.group(6), 0))
    return out
TRANS = ('v_exp_', 'v_log_', 'v_rcp_', 'v_rsq_', 'v_sqrt_', 'v_sin_', 'v_cos_')
class I:
    def __init__(s, text, ln):
        s.text = text; s.ln = ln
        p = text.split(None, 1); s.mn = p[0]
        ops = [o.strip() for o in p[1].split(',')] if len(p) > 1 else []
        s.ops = ops
        mn = s.mn
        s.mfma = mn.startswith('v_mfma'); s.valu = mn.startswith('v_') and not s.mfma
        s.ds = mn.startswith('ds_'); s.vmem = mn.startswith(('buffer_', 'global_'))
        s.salu = mn.startswith('s_')
        s.trans = mn.startswith(TRANS); s.dpp = 'dpp' in mn or 'row_' in text or 'quad_perm' in text
        s.perml = mn.startswith('v_permlane')
        s.ldsdma = s.vmem and (text.rstrip().endswith(' lds') or '_lds_' in mn)
        s.states = 1
        if mn == 's_nop': s.states = int(ops[0], 0) + 1
        d = set(); u = set(); s.srcC = set(); s.srcAB = set(); s.sdata = set()
        R = [regs(o) for o in ops]
        allr = set().union(*R) if R else set()
        if s.mfma:
            d = R[0]; s.srcAB = R[1] | R[2]; s.srcC = R[3]; u = s.srcAB | s.srcC
            s.passes = 8 if '32x32x16' in mn else 4
        elif s.valu:
            if s.perml: d = R[0] | R[1]; u = set(d)
            else:
                d = R[0]; u = set().union(*R[1:]) if len(R) > 1 else set()
                if mn.startswith(('v_fmac', 'v_pk_fmac')) or s.dpp: u |= d
                if mn.startswith(('v_add_co', 'v_addc_co', 'v_sub_co')): d = R[0] | R[1]; u = set().union(*R[2:])
                if mn.startswith('v_cmpx'): d |= {('exec', 0)}
        elif s.ds:
            if mn.startswith('ds_read') or mn.startswith('ds_bperm'): d = R[0]; u = set().union(*R[1:])
            else: u = allr
            if 'd16' in mn and mn.startswith('ds_read'): u |= d
        elif s.vmem:
            store = 'store' in mn or 'atomic' in mn
            if s.ldsdma: u = allr | {('m0', 0)}
            elif store:
                u = allr
                if mn.endswith(('x3', 'x4')): s.sdata = R[0] if mn.startswith('buffer') else R[1]
                if 'atomic' in mn and ' sc0' in text: d = R[0]
            else:
                d = R[0]; u = set().union(*R[1:])
                if 'd16' in mn: u |= d
        elif s.salu:
            if mn.startswith(('s_cmp', 's_waitcnt', 's_barrier', 's_nop', 's_cbranch', 's_branch', 's_endpgm', 's_sleep', 's_setprio')): u = allr
            else:
                d = R[0] if R else set(); u = set().union(*R[1:]) if len(R) > 1 else set()
                if 'saveexec' in mn: d |= {('exec', 0)}
        s.d = d; s.u = u
def need(p, c):
    n = 0
    vd = {r for r in p.d if r[0] in 'va'}; sd = {r for r in p.d if r[0] == 's' or r[0] == 'vcc'}
    if p.valu:
        if c.mfma and vd & c.u: n = max(n, 2)
        if c.valu and c.dpp and vd & c.u: n = max(n, 2)
        if c.perml and vd & c.u: n = max(n, 2)
        if c.mn.startswith(('v_readlane', 'v_readfirstlane')) and vd & c.u: n = max(n, 1)
        if p.trans and (c.valu and not c.trans) and vd & c.u: n = max(n, 1)
        if c.vmem and sd & c.u: n = max(n, 5)
        if c.valu and sd & c.u: n = max(n, 2)
        if c.salu and sd & c.u and not c.mn.startswith('s_cbranch'): n = max(n, 0)
        if ('exec', 0) in p.d and (c.mfma or c.perml or c.mn.startswith('v_read')): n = max(n, 4)
        if ('exec', 0) in p.d and c.dpp: n = max(n, 5)
    if p.mn.startswith('v_dot') and vd & (c.u | c.d):
        same = c.mn == p.mn and not (vd & (regs(c.ops[1]) | regs(c.ops[2])))
        if not same: n = max(n, 3)
    if p.salu and ('m0', 0) in p.d and c.ldsdma: n = max(n, 1)
    if p.sdata and p.sdata & c.d: n = max(n, 2 if c.valu else 1)
    if p.mfma:
        P = p.passes
        if c.mfma:
            if p.d & c.srcAB: n = max(n, {4: 8, 8: 12}[P])
            if p.d & c.srcC and not (p.d == c.srcC and P == c.passes): n = max(n, {4: 6, 8: 10}[P])
            if p.d & c.d and not (p.d & c.srcC): n = max(n, {4: 6, 8: 10}[P])
        else:
            if p.d & (c.u | c.d): n = max(n, {4: 8, 8: 12}[P])
            if c.valu and p.srcC & c.d: n = max(n, {4: 3, 8: 7}[P])
    return n
def lint(text):
    ins = []; labels = {}
    for ln, raw in enumerate(text.split('\n'), 1):
        t = raw.split(';')[0].strip()
        if not t: continue
        if t.endswith(':'): labels[t[:-1]] = len(ins); continue
        if t.startswith('.'): continue
        ins.append(I(t, ln))
    W = 22; bad = set()
    def succ(i):
        x = ins[i]
        if x.mn == 's_endpgm': return []
        if x.mn == 's_branch': return [labels[x.ops[0]]]
        r = [i + 1] if i + 1 < len(ins) else []
        if x.mn.startswith('s_cbranch'): r.append(labels[x.ops[0]])
        return r
    for i, p in enumerate(ins):
        if not (p.valu or p.mfma or p.sdata or ('m0', 0) in p.d): continue
        stack = [(j, 0) for j in succ(i)]; seen = {}
        while stack:
            j, dist = stack.pop()
            if dist >= W or seen.get(j, 99) <= dist: continue
            seen[j] = dist
            c = ins[j]; n = need(p, c)
            if n > dist: bad.add((p.ln, p.text, c.ln, c.text, n, dist))
            for k in succ(j): stack.append((k, dist + c.states))
    for b in sorted(bad): print("HAZARD line %d [%s] -> line %d [%s] needs %d has %d" % b)
    return len(bad)
if __name__ == "__main__":
    print("hazards:", lint(open(sys.argv[1]).read()))
```

```python
import itertools
NF = 26
def pi(i): return (5 * i + 1) % NF
def build():
    seen = set(); S0 = []
    for a in range(NF):
        if a in seen: continue
        orb = [a]; x = pi(a)
        while x != a: orb.append(x); x = pi(x)
        assert len(orb) % 2 == 0
        seen.update(orb); S0 += orb[0::2]
    assert len(S0) == 13 and set(S0) | {pi(a) for a in S0} == set(range(NF))
    seen = set(); S13 = []
    for a in range(13):
        if a in seen: continue
        orb = [a]; x = pi(a) % 13
        while x != a: orb.append(x); x = pi(x) % 13
        seen.update(orb); S13 += orb[0::2]
    assert len(S13) == 7
    slots = []
    for d in (1, 2, 3, 4, 7, 8):
        for a in range(NF): slots.append((a, (a + d) % NF))
    slots += [(a, a) for a in S0]
    slots += [(a, a + 13) for a in S13]
    assert len(slots) == 176
    used = set(); pairs = [[None] * 176, [None] * 176]
    for h in range(2):
        for s, (a, b) in enumerate(slots):
            x, y = (a, b) if h == 0 else (pi(a), pi(b))
            key = (min(x, y), max(x, y))
            if key in used: pairs[h][s] = None
            else: used.add(key); pairs[h][s] = (x, y)
    assert len(used) == 351
    rest = [a for a in range(NF) if a not in S0]
    import random
    rnd = random.Random(1)
    def fld(h, a): return 26 if a == 26 else (a if h == 0 else pi(a))
    def cost(o):
        c = 0
        for T in range(7):
            for h in range(2):
                cl = [fld(h, a) % 4 for a in set(o[4*T:4*T+4])]
                c += max(cl.count(v) for v in range(4))
        return c
    best = None
    for it in range(20000):
        A = S0[:]; B = rest[:]; rnd.shuffle(A); rnd.shuffle(B)
        o = A + [26] + B + [B[-1]]
        c = cost(o)
        if best is None or c < best[0]: best = (c, o)
    order = best[1]
    return dict(slots=slots, pairs=pairs, order=order, cost=best[0], fld=fld)
if __name__ == "__main__":
    s = build()
    print(s["order"], s["cost"])
    for x, (m, sh, lim, d) in {"24": (2731, 16, 768, 24), "22": (2979, 16, 576, 22), "26": (2521, 16, 704, 26)}.items():
        print(x, all((v * m) >> sh == v // d for v in range(lim)))
```

```python
import sys, math, struct
from scheme import build as build_scheme
from lint import lint

KN = "standalone__deep_cross_xdeepfm__recsys_kernel"
class Cfg:
    PRE = 2
    R = 7
    RHO = "0"
    STAMP = False
    HOSTF = False
    CODEPF = True
    PRIO = 0
def f32bits(x): return struct.unpack("<I", struct.pack("<f", x))[0]

class A:
    def __init__(s): s.L = []
    def __call__(s, t, *a):
        if a: t = t % a
        for l in t.split("\n"):
            l = l.strip()
            if l: s.L.append(l if l.endswith(":") else "    " + l)
    def text(s): return "\n".join(s.L) + "\n"
def vr(a, n): return "v[%d:%d]" % (a, a + n - 1)

SLOT = 20480
D_IDX = 7 * SLOT
D_BW = D_IDX + 13312
XS = 2112
C_X = 0
C_F = 27 * XS
FS = 1488
C_W13 = C_F + 26 * FS
C_IDX = C_W13 + 1024
C_VT = C_W13 + 13 * 4096
C_S1 = C_VT + 2048
C_S0 = C_S1 + 2048
C_UB = C_S0 + 2064
C_DUM = C_UB + 4112
C_FLAG = C_DUM + 16
C_MD = C_FLAG + 16
assert C_MD + 2048 <= 163840 and D_BW + 3072 <= 163840
WS_F = 0; WS_BOX = 65536; WS_ST = 262144
OOB = 0x7ff00000

def srd(a, s, ptr, n):
    a("s_mov_b32 s%d, s%d\ns_mov_b32 s%d, s%d\ns_mov_b32 s%d, %d\ns_mov_b32 s%d, 0x20000", s, ptr, s + 1, ptr + 1, s + 2, n, s + 3)
S_IDX, S_TAB, S_W1, S_WS, S_WC, S_DBG, S_OUT, S_M = 32, 36, 40, 44, 48, 52, 56, 96
def sq(s): return "s[%d:%d]" % (s, s + 3)

def generate(cfg):
    sch = build_scheme()
    a = A()
    nst = [0]
    def stamp(k):
        if cfg.STAMP: a("s_memtime s[%d:%d]", 72 + 2 * k, 73 + 2 * k)
    def dump_stamps():
        if not cfg.STAMP: return
        a("s_waitcnt vmcnt(0) lgkmcnt(0)")
        for k in range(12): a("v_mov_b32 v%d, s%d", 224 + k, 72 + 2 * k)
        a("v_mov_b32 v236, s70\nv_mov_b32 v237, s2\nv_mov_b32 v238, s26\nv_mov_b32 v239, 0")
        a("s_lshl_b32 s64, s2, 3\ns_add_u32 s64, s64, s26\ns_lshl_b32 s64, s64, 6\ns_add_u32 s64, s64, %d", WS_ST)
        a("v_mov_b32 v240, s64\ns_mov_b64 exec, 1")
        srd(a, S_WS, 24, 0x100000)
        for k in range(4): a("buffer_store_dwordx4 v[%d:%d], v240, %s, 0 offen offset:%d", 224 + 4 * k, 227 + 4 * k, sq(S_WS), 16 * k)
    WSN = 0x100000 if cfg.STAMP else WS_BOX + 131072

    a("s_cmp_ge_u32 s2, 256\ns_cbranch_scc1 L_end")
    if cfg.STAMP:
        for k in range(12): a("s_mov_b32 s%d, 0", 72 + 2 * k)
        a("s_memrealtime s[70:71]")
    stamp(0)
    a("""s_load_dwordx16 s[4:19], s[0:1], 0
    s_load_dwordx4 s[20:23], s[0:1], 64
    s_load_dwordx2 s[24:25], s[0:1], 80
    v_lshrrev_b32 v1, 6, v0
    v_and_b32 v0, 63, v0
    s_and_b32 s27, s2, 7
    v_readfirstlane_b32 s26, v1
    s_lshr_b32 s28, s2, 3
    s_and_b32 s30, s28, 3
    s_bfe_u32 s29, s28, 0x20002
    s_lshl_b32 s64, s27, 2
    s_add_u32 s29, s29, s64""")
    if cfg.CODEPF:
        a("""s_cmp_lg_u32 s26, 7
        s_cbranch_scc1 L_nopf
        s_getpc_b64 s[64:65]
        L_pfbase:
        s_lshl_b32 s66, s28, 10
        v_and_b32 v2, 7, v0
        v_lshl_add_u32 v2, v2, 7, s66
        v_min_u32 v2, L_codeend-L_pfbase-4, v2
        v_and_b32 v2, -4, v2
        global_load_dword v255, v2, s[64:65]
        L_nopf:""")
    a("s_cmp_ge_u32 s28, 16\ns_cbranch_scc1 L_cin")
    a("s_cmp_ge_u32 s26, 4\ns_cbranch_scc1 L_loader")

    ACC = lambda tt, rt: 128 + 16 * (2 * tt + rt)
    W2R = 64
    XF = lambda st, rt: (16 if st == 0 else 36) + 4 * rt
    WF = lambda st, tt: (24 if st == 0 else 44) + 4 * tt
    a("""s_and_b32 s66, s26, 1
    s_lshr_b32 s67, s26, 1
    v_and_b32 v1, 31, v0
    v_lshrrev_b32 v2, 5, v0
    v_bfe_u32 v3, v0, 2, 2
    v_xor_b32 v8, v2, v3
    v_lshlrev_b32 v8, 4, v8
    v_lshl_add_u32 v4, v1, 6, v8
    s_lshl_b32 s64, s66, 12
    v_add_u32 v4, s64, v4
    v_xor_b32 v5, 32, v4""")
    a("""v_lshl_add_u32 v8, v2, 3, v3
    v_mul_u32_u24 v8, 384, v8
    v_bfe_u32 v9, v0, 4, 1
    v_lshl_add_u32 v8, v9, 5, v8
    v_and_b32 v9, 3, v0
    v_lshl_add_u32 v8, v9, 3, v8
    s_mul_i32 s64, s67, 192
    s_add_u32 s64, s64, 8192
    v_add_u32 v8, s64, v8
    v_bfe_u32 v9, v0, 3, 1
    v_lshlrev_b32 v9, 6, v9
    v_add_u32 v10, v8, v9
    v_sub_u32 v11, v8, v9
    s_cmp_eq_u32 s67, 0
    s_cselect_b64 vcc, -1, 0
    v_cndmask_b32 v6, v11, v10, vcc
    v_cndmask_b32 v7, v10, v11, vcc""")
    a("""s_mul_i32 s64, s30, 384
    s_mul_i32 s65, s67, 192
    s_add_u32 s64, s64, s65
    v_lshl_add_u32 v8, v0, 3, s64
    s_mul_i32 s65, s26, 768
    s_add_u32 s65, s65, %d
    v_lshl_add_u32 v9, v0, 4, s65
    v_lshl_add_u32 v10, v2, 4, s65
    s_waitcnt lgkmcnt(0)
    s_mov_b64 exec, 0xffffff
    global_load_dwordx2 v[12:13], v8, s[14:15]
    global_load_dwordx2 v[14:15], v8, s[16:17]""", D_BW)
    stamp(1)
    srd(a, S_WS, 24, WSN); srd(a, S_DBG, 22, 256)
    a("""s_mov_b64 exec, -1
    s_lshl_b32 s64, s29, 12
    s_lshl_b32 s65, s30, 10
    s_add_u32 s64, s64, s65
    s_lshl_b32 s65, s67, 9
    s_add_u32 s64, s64, s65
    s_lshl_b32 s65, s66, 8
    s_add_u32 s64, s64, s65
    s_add_u32 s64, s64, %d
    v_lshl_add_u32 v60, v0, 2, s64
    v_mov_b32 v61, -1
    v_mov_b32 v62, 1
    buffer_store_dword v61, v60, %s, 0 offen sc1
    s_lshl_b32 s64, s29, 2
    s_waitcnt vmcnt(0)
    s_mov_b64 exec, 1
    buffer_atomic_add v62, off, %s, s64
    s_mov_b64 exec, 0xffffff""", WS_BOX, sq(S_WS), sq(S_DBG))
    a("""v_lshlrev_b32 v16, 16, v12
    v_and_b32 v17, 0xffff0000, v12
    v_lshlrev_b32 v18, 16, v13
    v_and_b32 v19, 0xffff0000, v13
    v_lshlrev_b32 v20, 16, v14
    v_and_b32 v21, 0xffff0000, v14
    v_lshlrev_b32 v22, 16, v15
    v_and_b32 v23, 0xffff0000, v15
    ds_write_b128 v9, v[16:19]
    ds_write_b128 v9, v[20:23] offset:384
    s_mov_b64 exec, -1
    s_waitcnt lgkmcnt(0)""")
    for tt in range(3):
        for q in range(4):
            for rt in range(2):
                a("ds_read_b128 %s, v10 offset:%d", vr(ACC(tt, rt) + 4 * q, 4), 128 * tt + 32 * q)
            a("ds_read_b128 %s, v10 offset:%d", vr(W2R + 16 * tt + 4 * q, 4), 384 + 128 * tt + 32 * q)
    a("""    s_mov_b32 s66, 0
    s_mov_b32 s67, 26
    s_mov_b32 s68, %d
    s_mov_b32 s69, %d
    s_waitcnt lgkmcnt(0)""", -(cfg.R - 1) * SLOT, SLOT)
    def rd_x(st, j, rt): return "ds_read_b128 %s, v%d offset:%d" % (vr(XF(st, rt), 4), 4 + j, 2048 * rt)
    def rd_w(st, j, tt, u): return "ds_read_b64_tr_b16 %s, v%d offset:%d" % (vr(WF(st, tt) + 2 * u, 2), 7 if tt == 1 else 6, 64 * tt + (16 * j + 4 * u) * 384)
    def reads(st, j): return [rd_x(st, j, 0), rd_w(st, j, 0, 0), rd_w(st, j, 0, 1), rd_x(st, j, 1), rd_w(st, j, 1, 0), rd_w(st, j, 1, 1), rd_w(st, j, 2, 0), rd_w(st, j, 2, 1)]
    def mf(st, tt, rt): return "v_mfma_f32_32x32x16_bf16 %s, %s, %s, %s" % (vr(ACC(tt, rt), 16), vr(WF(st, tt), 4), vr(XF(st, rt), 4), vr(ACC(tt, rt), 16))
    a("s_barrier")
    stamp(2)
    for r in reads(0, 0): a(r)
    a("L_dloop:")
    a("s_waitcnt lgkmcnt(0)")
    r = reads(1, 1)
    a(mf(0, 0, 0)); a(r[0]); a(r[1]); a(r[2])
    a(mf(0, 0, 1)); a(r[3]); a(r[4]); a(r[5])
    a(mf(0, 1, 0)); a(r[6]); a(r[7])
    a("s_add_u32 s66, s66, 1\ns_cmp_eq_u32 s66, %d\ns_cselect_b32 s64, s68, s69\ns_cselect_b32 s66, 0, s66", cfg.R)
    a(mf(0, 1, 1)); a("v_add_u32 v4, s64, v4\nv_add_u32 v5, s64, v5")
    a(mf(0, 2, 0)); a("v_add_u32 v6, s64, v6\nv_add_u32 v7, s64, v7")
    a(mf(0, 2, 1))
    a("s_waitcnt lgkmcnt(0)\ns_barrier")
    r = reads(0, 0)
    a(mf(1, 0, 0)); a(r[0]); a(r[1]); a(r[2])
    a(mf(1, 0, 1)); a(r[3]); a(r[4]); a(r[5])
    a(mf(1, 1, 0)); a(r[6]); a(r[7])
    a(mf(1, 1, 1)); a("s_sub_u32 s67, s67, 1")
    a(mf(1, 2, 0)); a("s_cmp_lg_u32 s67, 0")
    a(mf(1, 2, 1))
    a("s_cbranch_scc1 L_dloop")
    stamp(3)
    c1 = -2.0 * math.log2(math.e) * math.sqrt(2.0 / math.pi); c2 = c1 * 0.044715
    a("s_mov_b32 s64, 0x%x\ns_mov_b32 s65, 0x%x\nv_mov_b32 v8, 0x%x\nv_mov_b32 v9, 0x%x", f32bits(c2), f32bits(c2), f32bits(c1), f32bits(c1))
    a("v_mov_b32 v56, 0\nv_mov_b32 v57, 0\nv_mov_b32 v58, 0\nv_mov_b32 v59, 0")
    def gelu(acc, w2, npairs, T, SUM, first_pad=0):
        P = range(npairs)
        x = lambda i: vr(acc + 2 * i, 2); t = lambda i: vr(T + 2 * i, 2)
        for i in P: a("v_pk_mul_f32 %s, %s, %s", t(i), x(i), x(i))
        for i in P: a("v_pk_fma_f32 %s, %s, s[64:65], v[8:9]", t(i), t(i))
        for i in P: a("v_pk_mul_f32 %s, %s, %s", t(i), t(i), x(i))
        for i in range(2 * npairs): a("v_exp_f32 v%d, v%d", T + i, T + i)
        for i in P: a("v_pk_mul_f32 %s, %s, %s", x(i), x(i), vr(w2 + 2 * i, 2))
        for i in P: a("v_pk_add_f32 %s, %s, 1.0 op_sel_hi:[1,0]", t(i), t(i))
        for i in range(2 * npairs): a("v_rcp_f32 v%d, v%d", T + i, T + i)
    def gelu_fin(acc, npairs, T, SUM):
        for i in range(npairs): a("v_pk_fma_f32 %s, %s, %s, %s", vr(SUM, 2), vr(acc + 2 * i, 2), vr(T + 2 * i, 2), vr(SUM, 2))
    pend = None
    k = 0
    for tt in range(3):
        for rt in range(2):
            for hf in range(2):
                T = 112 + 8 * (k % 2); k += 1
                gelu(ACC(tt, rt) + 8 * hf, W2R + 16 * tt + 8 * hf, 4, T, 56 + 2 * rt)
                if pend: gelu_fin(*pend)
                pend = (ACC(tt, rt) + 8 * hf, 4, T, 56 + 2 * rt)
    a("s_nop 0"); gelu_fin(*pend)
    a("""v_add_f32 v56, v56, v57
    v_add_f32 v58, v58, v59
    s_nop 1
    v_permlane32_swap_b32 v56, v58
    v_add_f32 v56, v56, v58
    buffer_store_dword v56, v60, %s, 0 offen sc1""", sq(S_WS))
    stamp(4)
    dump_stamps()
    a("s_endpgm")

    a("L_loader:")
    q = []
    def vm(tag): q.append(tag)
    def wait_for(pred):
        last = max(i for i, t in enumerate(q) if pred(t))
        n = len(q) - 1 - last
        assert n < 64
        a("s_waitcnt vmcnt(%d)", n)
    a("""s_sub_u32 s66, s26, 4
    s_lshl_b32 s64, s29, 2
    s_add_u32 s64, s64, s66
    s_mul_i32 s64, s64, 3328
    s_mul_i32 s67, s66, 3328
    s_add_u32 s67, s67, %d
    s_mov_b32 m0, s67
    v_lshlrev_b32 v1, 4, v0
    s_waitcnt lgkmcnt(0)""", D_IDX)
    srd(a, S_IDX, 4, 425984)
    if cfg.CODEPF: vm("pf")
    for i in range(4):
        if i == 3: a("s_mov_b64 exec, 0xffff")
        a("buffer_load_dwordx4 v1, %s, s64 offen offset:%d lds", sq(S_IDX), 1024 * i); vm("idx")
    a("s_mov_b64 exec, -1")
    stamp(1)
    srd(a, S_W1, 12, 1384448); srd(a, S_TAB, 6, 6400000)
    for ii in range(3):
        a("""s_mul_i32 s64, s66, 192
        s_add_u32 s64, s64, %d
        v_add_u32 v2, s64, v0
        v_mul_u32_u24 v3, 2731, v2
        v_lshrrev_b32 v3, 16, v3
        v_mul_u32_u24 v4, 24, v3
        v_sub_u32 v4, v2, v4
        v_bfe_u32 v5, v3, 1, 1
        v_lshlrev_b32 v5, 2, v5
        v_xor_b32 v4, v4, v5
        v_lshlrev_b32 v4, 4, v4
        v_mul_u32_u24 v3, 1664, v3
        s_mul_i32 s64, s30, 384
        v_add3_u32 v%d, v3, v4, s64""", 64 * ii, 10 + ii)
    if cfg.RHO == "0": a("s_mov_b32 s68, 0")
    elif cfg.RHO == "rt": a("s_and_b32 s68, s29, 3\ns_mul_i32 s68, s68, 13\ns_lshr_b32 s68, s68, 1")
    elif cfg.RHO == "cg": a("s_mul_i32 s68, s30, 13\ns_lshr_b32 s68, s68, 1")
    else: a("s_mov_b32 s68, %d", int(cfg.RHO))
    a("""s_mul_i32 s69, s68, 53248
    s_lshl_b32 s68, s68, 2
    s_mul_i32 s62, s66, 3072
    s_add_u32 s62, s62, 8192
    s_lshl_b32 s63, s66, 11""")
    def ldB(s):
        for ii in range(3):
            a("s_add_u32 m0, s62, %d", (s % cfg.R) * SLOT + 1024 * ii)
            a("s_nop 0")
            a("buffer_load_dwordx4 v%d, %s, s69 offen lds", 10 + ii, sq(S_W1)); vm(("st", s))
        a("s_add_u32 s69, s69, 53248\ns_cmp_eq_u32 s69, %d\ns_cselect_b32 s69, 0, s69", 26 * 53248)
    def rdI(reg):
        a("v_add_u32 v15, s68, v14\nds_read_b32 v%d, v15\nds_read_b32 v%d, v15 offset:1664", reg, reg + 1)
        a("s_add_u32 s68, s68, 4\ns_cmp_eq_u32 s68, 104\ns_cselect_b32 s68, 0, s68")
    def ldA(s, reg):
        for ii in range(2):
            a("s_add_u32 m0, s63, %d", (s % cfg.R) * SLOT + 1024 * ii)
            a("v_lshl_add_u32 v%d, v%d, 6, v13", reg + ii, reg + ii)
            a("buffer_load_dwordx4 v%d, %s, 0 offen lds", reg + ii, sq(S_TAB)); vm(("st", s))
    for s in range(cfg.PRE): ldB(s)
    a("""v_lshrrev_b32 v2, 2, v0
    v_mul_u32_u24 v2, 104, v2
    v_add_u32 v14, s67, v2
    v_and_b32 v2, 3, v0
    v_lshrrev_b32 v3, 4, v0
    v_xor_b32 v2, v2, v3
    v_lshlrev_b32 v13, 4, v2""")
    wait_for(lambda t: t == "idx")
    stamp(2)
    for s in range(cfg.R): rdI(16 + 2 * s)
    for s in range(cfg.R):
        a("s_waitcnt lgkmcnt(%d)", 2 * (cfg.R - 1 - s))
        ldA(s, 16 + 2 * s)
        if s >= cfg.PRE: ldB(s)
    rdI(16)
    stamp(3)
    wait_for(lambda t: t == ("st", 0))
    a("s_barrier")
    stamp(4)
    for s in range(26):
        if s + 1 <= 25: wait_for(lambda t: t == ("st", s + 1))
        a("s_barrier")
        if s == 5: stamp(5)
        if s == 12: stamp(6)
        n = s + cfg.R
        if n <= 25:
            reg = 16 + 2 * (s % 2)
            a("s_waitcnt lgkmcnt(0)")
            if n + 1 <= 25: rdI(16 + 2 * ((s + 1) % 2))
            ldA(n, reg); ldB(n)
    stamp(7)
    dump_stamps()
    a("s_endpgm")

    a("L_cin:")
    a("""v_lshlrev_b32 v1, 2, v0
    s_lshl_b32 s64, s26, 8
    v_add_u32 v1, s64, v1
    v_mov_b32 v2, 0x3f803f80
    v_mov_b32 v3, 0
    ds_write_b32 v1, v2 offset:%d
    s_mov_b32 s65, %d
    s_cmp_eq_u32 s26, 7
    s_cselect_b32 s64, s65, %d
    s_cselect_b64 exec, 1, -1
    v_add_u32 v1, s64, v1
    ds_write_b32 v1, v3
    s_mov_b64 exec, -1
    s_sub_u32 s31, s2, 128
    s_waitcnt lgkmcnt(0)
    s_barrier""", C_X + 26 * XS, C_FLAG - 7 * 256, C_VT)
    srd(a, S_WS, 24, WSN); srd(a, S_DBG, 22, 256)
    a("s_cmp_ge_u32 s26, 4\ns_cbranch_scc1 L_prod")
    srd(a, S_IDX, 4, 425984)
    a("""s_and_b32 s66, s26, 1
    s_lshr_b32 s67, s26, 1
    s_lshl_b32 s64, s29, 3
    s_lshl_b32 s65, s30, 1
    s_add_u32 s64, s64, s65
    s_add_u32 s64, s64, s66
    s_mul_i32 s64, s64, 1664
    s_lshl_b32 s65, s26, 11
    s_add_u32 s65, s65, %d
    s_mov_b32 m0, s65
    v_lshlrev_b32 v1, 4, v0
    buffer_load_dwordx4 v1, %s, s64 offen lds
    buffer_load_dwordx4 v1, %s, s64 offen offset:1024 lds""", C_IDX, sq(S_IDX), sq(S_IDX))
    stamp(1)
    srd(a, S_TAB, 6, 6400000)
    a("""v_lshrrev_b32 v2, 2, v0
    v_mul_u32_u24 v2, 104, v2
    s_lshl_b32 s64, s67, 2
    s_add_u32 s64, s64, s65
    v_add_u32 v14, s64, v2
    v_and_b32 v2, 3, v0
    v_lshrrev_b32 v3, 5, v0
    v_lshlrev_b32 v3, 1, v3
    v_xor_b32 v2, v2, v3
    v_lshlrev_b32 v13, 4, v2
    s_mul_i32 s62, s67, %d
    s_lshl_b32 s64, s66, 10
    s_add_u32 s62, s62, s64
    s_waitcnt vmcnt(0)""", XS)
    stamp(2)
    for n in range(13): a("ds_read_b32 v%d, v14 offset:%d", 16 + n, 8 * n)
    for n in range(13):
        a("s_waitcnt lgkmcnt(%d)", 12 - n)
        a("s_add_u32 m0, s62, %d", C_X + 2 * XS * n)
        a("v_lshl_add_u32 v%d, v%d, 6, v13", 16 + n, 16 + n)
        a("buffer_load_dwordx4 v%d, %s, 0 offen lds", 16 + n, sq(S_TAB))
    stamp(3)
    a("s_branch L_cjoin")

    a("L_prod:")
    a("s_sub_u32 s66, s26, 4")
    if not cfg.HOSTF:
        a("s_cmp_ge_u32 s31, 26\ns_cbranch_scc1 L_noprod")
        srd(a, S_WC, 8, 105456); srd(a, S_M, 10, 156)
        a("s_mul_i32 s67, s66, 9216\ns_add_u32 s67, s67, %d\ns_mul_i32 s65, s66, 352\ns_add_u32 s65, s65, 70304", C_F)
        for n in range(9):
            a("""v_add_u32 v2, %d, v0
            v_mul_u32_u24 v3, 2979, v2
            v_lshrrev_b32 v3, 16, v3
            v_mul_u32_u24 v4, 22, v3
            v_sub_u32 v4, v2, v4
            v_mul_u32_u24 v3, 1352, v3
            s_add_u32 m0, s67, %d
            v_lshl_add_u32 v3, v4, 4, v3
            buffer_load_dwordx4 v3, %s, s65 offen lds""", 64 * n, 1024 * n, sq(S_WC))
        a("""v_lshrrev_b32 v2, 4, v0
        v_lshlrev_b32 v5, 4, v2
        buffer_load_dwordx4 v[16:19], v5, %s, 0 offen offset:104""", sq(S_M))
        a("""v_mul_u32_u24 v5, 1352, v2
        v_and_b32 v6, 15, v0
        v_lshl_add_u32 v5, v6, 2, v5
        s_mul_i32 s64, s66, 10816
        s_mul_i32 s65, s31, 52
        s_add_u32 s64, s64, s65
        s_add_u32 s64, s64, 35152
        s_lshl_b32 s65, s66, 9
        s_add_u32 m0, s65, %d
        s_add_u32 s63, s64, 5408
        buffer_load_dword v5, %s, s64 offen lds
        s_add_u32 m0, s65, %d
        s_nop 0
        buffer_load_dword v5, %s, s63 offen lds""", C_S1, sq(S_WC), C_S1 + 256, sq(S_WC))
        a("s_getpc_b64 s[68:69]\nL_tb:\ns_add_u32 s68, s68, L_table-L_tb\ns_addc_u32 s69, s69, 0")
        a("v_min_u32 v7, 47, v0\nv_lshlrev_b32 v7, 5, v7")
        a("s_cmp_eq_u32 s66, 0\ns_cbranch_scc1 L_px0\ns_cmp_eq_u32 s66, 1\ns_cbranch_scc1 L_px1\ns_cmp_eq_u32 s66, 2\ns_cbranch_scc1 L_pxe")
        a("""v_lshlrev_b32 v8, 2, v0
        v_cmp_gt_u32 vcc, 13, v0
        v_mov_b32 v9, %d
        s_mov_b32 m0, %d
        v_cndmask_b32 v8, v9, v8, vcc
        buffer_load_dword v8, %s, 0 offen offset:52 lds
        s_branch L_pxe""", OOB, C_VT + 28 * 64 - 52, sq(S_M))
        a("""L_px0:
        global_load_dwordx4 v[20:23], v7, s[68:69] offset:1536
        global_load_dwordx4 v[24:27], v7, s[68:69] offset:1552
        v_mov_b32 v28, 0
        v_mov_b32 v29, 0
        s_lshl_b32 s64, s31, 1
        buffer_load_short_d16_hi v29, off, %s, s64
        s_branch L_pxe""", sq(S_M))
        a("""L_px1:
        global_load_dwordx4 v[20:23], v7, s[68:69]
        global_load_dwordx4 v[24:27], v7, s[68:69] offset:16
        s_mul_i32 s64, s31, 1352
        s_mov_b32 m0, %d
        v_lshlrev_b32 v8, 4, v0
        buffer_load_dwordx4 v8, %s, s64 offen lds
        buffer_load_dwordx4 v8, %s, s64 offen offset:1024 lds
        L_pxe:""", C_S0, sq(S_WC), sq(S_WC))
        stamp(1)
        a("""v_bfe_u32 v3, v0, 2, 2
        v_lshl_add_u32 v3, v2, 3, v3
        v_add_u32 v4, 4, v3
        v_min_u32 v3, 25, v3
        v_min_u32 v4, 25, v4
        v_mul_u32_u24 v3, 352, v3
        v_mul_u32_u24 v4, 352, v4
        v_and_b32 v5, 3, v0
        v_lshlrev_b32 v5, 3, v5
        v_add3_u32 v10, v3, v5, s67
        v_add3_u32 v11, v4, v5, s67
        s_mul_i32 s64, s66, 176
        v_add_u32 v6, s64, v6
        v_mov_b32 v9, %d""", C_DUM)
        for m in range(11):
            a("""v_add_u32 v3, %d, v6
            v_mul_u32_u24 v4, 2521, v3
            v_lshrrev_b32 v4, 16, v4
            v_mul_u32_u24 v5, 26, v4
            v_sub_u32 v5, v3, v5
            v_lshlrev_b32 v5, 6, v5
            v_lshl_add_u32 v5, v4, 1, v5
            v_cmp_gt_u32 vcc, 676, v3
            v_add_u32 v5, %d, v5
            s_nop 0
            v_cndmask_b32 v%d, v9, v5, vcc""", 16 * m, C_VT, 32 + m)
        a("s_waitcnt vmcnt(0)")
        stamp(2)
        for m in range(11):
            a("ds_read_b64_tr_b16 %s, v10 offset:%d", vr(48 + 4 * m, 2), 32 * m)
            a("ds_read_b64_tr_b16 %s, v11 offset:%d", vr(50 + 4 * m, 2), 32 * m)
        for m in range(11):
            a("s_waitcnt lgkmcnt(%d)", min(15, 2 * (10 - m)))
            a("v_mfma_f32_16x16x32_bf16 %s, v[16:19], %s, 0", vr(96 + 4 * m, 4), vr(48 + 4 * m, 4))
        a("s_nop 1")
        for m in range(11):
            if m >= 8: a("s_nop 1")
            a("v_cvt_pk_bf16_f32 v%d, v%d, v%d", 48 + m, 96 + 4 * m, 96 + 4 * m)
            a("ds_write_b16 v%d, v%d", 32 + m, 48 + m)
        a("""v_mov_b32 v3, %d
        v_mov_b32 v4, 1
        s_waitcnt lgkmcnt(0)
        s_mov_b64 exec, 1
        ds_add_u32 v3, v4
        s_mov_b64 exec, -1""", C_FLAG)
        a("s_cmp_ge_u32 s66, 2\ns_cbranch_scc1 L_cjoin")
        for i in range(8):
            a("v_and_b32 v%d, 0xffff, v%d\nv_lshrrev_b32 v%d, 16, v%d", 64 + 2 * i, 20 + i, 65 + 2 * i, 20 + i)
        a("""v_lshrrev_b32 v5, 1, v0
        v_and_b32 v6, 1, v0
        v_lshl_add_u32 v5, v5, 2, v6
        s_mul_i32 s63, s31, %d
        s_cmp_eq_u32 s66, 1
        s_cbranch_scc1 L_pf0""", FS)
        a("""v_add_u32 v5, 2, v5
        v_add_u32 v6, 44, v0
        v_cmp_gt_u32 vcc, 44, v0
        v_mov_b32 v7, %d
        v_and_b32 v8, 31, v0
        v_cndmask_b32 v5, v6, v5, vcc
        v_lshlrev_b32 v5, 4, v5
        ds_write_b64 v7, v[28:29]
        v_lshrrev_b32 v9, 5, v0
        v_lshlrev_b32 v10, 6, v8
        v_lshl_add_u32 v10, v9, 4, v10
        v_add_u32 v10, %d, v10
        v_bfe_u32 v11, v0, 2, 2
        v_lshl_add_u32 v11, v9, 3, v11
        v_lshlrev_b32 v11, 6, v11
        v_bfe_u32 v12, v0, 4, 1
        v_lshl_add_u32 v11, v12, 5, v11
        v_and_b32 v12, 3, v0
        v_lshl_add_u32 v11, v12, 3, v11
        v_add_u32 v11, %d, v11
        v_lshlrev_b32 v12, 9, v9
        v_lshl_add_u32 v12, v8, 2, v12
        v_add_u32 v12, %d, v12
        s_mov_b32 s65, 0x40000
        L_vspin:
        s_sub_u32 s65, s65, 1
        s_cbranch_scc1 L_vok
        ds_read_b32 v4, v3
        s_waitcnt lgkmcnt(0)
        v_readfirstlane_b32 s64, v4
        s_cmp_lg_u32 s64, 4
        s_cbranch_scc1 L_vspin
        L_vok:""", C_UB + 4096, C_VT, C_S1, C_UB)
        stamp(3)
        a("""ds_read_b128 v[32:35], v10
        ds_read_b64_tr_b16 v[40:41], v11
        ds_read_b64_tr_b16 v[42:43], v11 offset:256
        ds_read_b128 v[36:39], v10 offset:32
        ds_read_b64_tr_b16 v[44:45], v11 offset:1024
        ds_read_b64_tr_b16 v[46:47], v11 offset:1280
        s_waitcnt lgkmcnt(3)
        v_mfma_f32_32x32x16_bf16 v[96:111], v[32:35], v[40:43], 0
        s_waitcnt lgkmcnt(0)
        v_mfma_f32_32x32x16_bf16 v[96:111], v[36:39], v[44:47], v[96:111]
        s_nop 11""")
        for i in range(16): a("ds_write_b32 v12, v%d offset:%d", 96 + i, (8 * (i // 4) + i % 4) * 128)
        for i in range(16): a("v_add_u32 v%d, %d, v%d", 64 + i, C_UB, 64 + i)
        a("s_waitcnt lgkmcnt(0)")
        for i in range(16): a("ds_read_b32 v%d, v%d", 80 + i, 64 + i)
        a("s_mov_b32 s64, -1\ns_mov_b32 s65, 0xffff\ns_branch L_pfin")
        a("L_pf0:")
        a("v_lshlrev_b32 v5, 4, v5\nv_mov_b32 v7, %d\nv_mov_b32 v8, 0\nds_write_b32 v7, v8", C_S0 + 2048)
        for i in range(16): a("v_mov_b32 v%d, 0\nv_add_u32 v%d, %d, v%d", 80 + i, 64 + i, C_S0, 64 + i)
        a("s_waitcnt lgkmcnt(0)")
        for i in range(16): a("ds_read_u16_d16_hi v%d, v%d", 80 + i, 64 + i)
        a("s_mov_b32 s64, -1\ns_mov_b32 s65, 0xfff")
        a("L_pfin:")
        a("s_waitcnt lgkmcnt(0)")
        for e in range(8): a("v_add_f32 v%d, v%d, v%d", 80 + 2 * e, 80 + 2 * e, 81 + 2 * e)
        for e in range(4): a("v_cvt_pk_bf16_f32 v%d, v%d, v%d", 96 + e, 80 + 4 * e, 82 + 4 * e)
        a("""s_mov_b64 exec, s[64:65]
        buffer_store_dwordx4 v[96:99], v5, %s, s63 offen sc1
        v_mov_b32 v4, 1
        s_mov_b32 s64, 128
        s_waitcnt vmcnt(0)
        s_mov_b64 exec, 1
        buffer_atomic_add v4, off, %s, s64
        s_mov_b64 exec, -1""", sq(S_WS), sq(S_DBG))
        stamp(4)
        a("L_noprod:")
    a("s_cmp_lg_u32 s66, 0\ns_cbranch_scc1 L_cjoin")
    if not cfg.HOSTF:
        a("""s_mov_b32 s64, 128
        s_mov_b32 s67, 0x20000
        L_fspin:
        s_sub_u32 s67, s67, 1
        s_cbranch_scc1 L_fok
        buffer_load_dword v4, off, %s, s64 sc1
        s_waitcnt vmcnt(0)
        v_readfirstlane_b32 s65, v4
        s_cmp_lg_u32 s65, 52
        s_cbranch_scc1 L_fspin
        L_fok:""", sq(S_DBG))
    stamp(5)
    a("v_lshlrev_b32 v1, 4, v0")
    for i in range(38):
        if i % 4 == 0: a("s_mov_b32 m0, %d\ns_mov_b32 s64, %d", C_F + 1024 * i, WS_F + 1024 * i)
        a("buffer_load_dwordx4 v1, %s, s64 offen offset:%d sc1 lds", sq(S_WS), 1024 * (i % 4))

    a("L_cjoin:")
    srd(a, S_W1, 12, 1384448)
    order = sch["order"]; fld = sch["fld"]
    a("""v_lshrrev_b32 v1, 5, v0
    v_bfe_u32 v2, v0, 2, 2
    v_lshl_add_u32 v2, v1, 2, v2
    v_lshlrev_b32 v2, 3, v2
    v_bfe_u32 v3, v0, 4, 1
    s_bfe_u32 s64, s26, 0x10001
    v_xor_b32 v3, s64, v3
    v_lshlrev_b32 v3, 5, v3
    v_and_b32 v12, 3, v0
    v_lshl_add_u32 v3, v12, 3, v3
    s_lshl_b32 s64, s26, 8
    v_add_u32 v3, s64, v3""")
    for T in range(7):
        by = [fld(h, order[4 * T + rr]) for h in range(2) for rr in range(4)]
        lo = sum(b << (8 * i) for i, b in enumerate(by[:4])); hi = sum(b << (8 * i) for i, b in enumerate(by[4:]))
        a("s_mov_b32 s64, 0x%x\ns_mov_b32 s65, 0x%x\nv_lshrrev_b64 v[12:13], v2, s[64:65]\nv_and_b32 v12, 0xff, v12\nv_mul_u32_u24 v12, %d, v12\nv_add_u32 v%d, v12, v3", lo, hi, XS, 4 + T)
    a("""v_and_b32 v12, 31, v0
    v_subrev_u32 v13, 16, v12
    v_cmp_gt_u32 vcc, 26, v12
    v_lshlrev_b32 v14, 4, v1
    v_add_u32 v14, %d, v14
    v_cndmask_b32 v12, v13, v12, vcc
    v_mul_u32_u24 v12, %d, v12
    v_add_u32 v11, v12, v14""", C_F, FS)
    a("""s_and_b32 s66, s26, 3
    s_lshr_b32 s67, s26, 2
    v_lshrrev_b32 v12, 4, v0
    v_bfe_u32 v13, v0, 2, 2
    v_lshl_add_u32 v14, v12, 3, v13
    v_lshlrev_b32 v14, 7, v14
    v_bfe_u32 v15, v0, 3, 1
    v_and_b32 v13, 1, v12
    v_lshl_add_u32 v15, v13, 1, v15
    v_xor_b32 v15, s66, v15
    v_lshl_add_u32 v14, v15, 5, v14
    v_and_b32 v15, 3, v0
    v_lshl_add_u32 v14, v15, 3, v14
    v_add_u32 v140, %d, v14
    v_and_b32 v13, 15, v0
    v_bfe_u32 v14, v0, 3, 1
    v_lshlrev_b32 v14, 1, v14
    v_xor_b32 v14, v14, v12
    v_lshlrev_b32 v14, 4, v14
    v_lshl_add_u32 v14, v13, 6, v14
    s_lshl_b32 s64, s67, 10
    v_add_u32 v141, s64, v14
    s_lshl_b32 s64, s66, 5
    s_add_u32 s64, s64, 1536
    v_lshl_add_u32 v14, v12, 3, s64
    global_load_dwordx2 v[252:253], v14, s[14:15]
    global_load_dwordx2 v[244:245], v14, s[16:17]
    global_load_short_d16_hi v246, v247, s[18:19]""".replace("global_load_short_d16_hi v246, v247", "v_mov_b32 v246, 0\nv_mov_b32 v247, 0\nglobal_load_short_d16_hi v246, v247"), C_W13)
    a("""v_lshrrev_b32 v12, 3, v0
    v_bfe_u32 v13, v0, 4, 1
    s_and_b32 s64, s26, 1
    s_lshl_b32 s64, s64, 1
    v_or_b32 v13, s64, v13
    v_bfe_u32 v14, v0, 1, 2
    v_xor_b32 v13, v13, v14
    v_lshlrev_b32 v13, 5, v13
    v_and_b32 v14, 1, v0
    v_lshl_add_u32 v13, v14, 4, v13
    v_mul_u32_u24 v12, 1664, v12
    s_mul_i32 s64, s66, 13312
    s_add_u32 s64, s64, 1536
    v_add3_u32 v142, v12, v13, s64
    s_mul_i32 s62, s67, 53248
    s_lshl_b32 s63, s26, 10
    s_add_u32 s63, s63, %d""", C_W13)
    a("""v_lshrrev_b32 v12, 4, v0
    v_and_b32 v13, 1, v12
    v_lshrrev_b32 v14, 1, v12
    v_lshl_add_u32 v12, v13, 1, v14
    s_lshl_b32 s64, s26, 2
    v_add_u32 v12, s64, v12
    v_and_b32 v13, 15, v0
    v_and_b32 v14, 15, v12
    v_lshl_add_u32 v14, v13, 4, v14
    s_lshl_b32 s64, s67, 8
    v_add_u32 v14, s64, v14
    v_lshlrev_b32 v14, 2, v14
    v_add_u32 v254, %d, v14
    s_lshl_b32 s64, s30, 5
    v_add_u32 v12, s64, v12
    v_lshlrev_b32 v14, 2, v12
    v_lshl_add_u32 v14, v13, 9, v14
    s_lshl_b32 s64, s29, 12
    s_add_u32 s64, s64, %d
    v_add_u32 v14, s64, v14
    v_mov_b32 v15, %d
    v_cmp_gt_u32 vcc, 8, v13
    s_lshl_b32 s64, s29, 8
    v_lshl_add_u32 v12, v12, 1, s64
    v_cndmask_b32 v143, v15, v14, vcc
    v_cmp_eq_u32 vcc, 0, v13
    s_lshl_b32 s61, s29, 2
    s_mov_b32 s60, 0
    v_cndmask_b32 v243, v15, v12, vcc""", C_MD, WS_BOX, OOB)
    srd(a, S_OUT, 20, 8192)
    a("s_waitcnt vmcnt(0)")
    a("""v_lshlrev_b32 v136, 16, v252
    v_and_b32 v137, 0xffff0000, v252
    v_lshlrev_b32 v138, 16, v253
    v_and_b32 v139, 0xffff0000, v253
    v_lshlrev_b32 v248, 16, v244
    v_and_b32 v249, 0xffff0000, v244
    v_lshlrev_b32 v250, 16, v245
    v_and_b32 v251, 0xffff0000, v245
    s_barrier""")
    stamp(6)
    XP, XFR, TMP, Z, FR, AC0, AC1, RR = 16, 32, 60, 68, 76, 100 + 8, 116 + 8, 132 + 8
    FR, AC0, AC1, RR = 76, 192, 208, 224
    slot_of = [0, 1, 2] * 5 + [0, 1, 2, 3] * 2
    def frag(g, tau): return FR + 8 * slot_of[g] + 4 * tau
    def rdF(g, tau):
        off = (1408 + 32 * tau) if g == 0 else (64 * (g - 1) + 32 * tau)
        return "ds_read_b128 %s, v11 offset:%d" % (vr(frag(g, tau), 4), off)
    def rdX(T): return "ds_read_b64_tr_b16 %s, v%d" % (vr(XP + 2 * T, 2), 4 + T)
    def dmaW13(chunk):
        for n in range(7):
            if n == 6: a("s_cmp_ge_u32 s26, 4\ns_cbranch_scc1 L_w13skip%d", chunk)
            a("s_add_u32 m0, s63, %d\ns_add_u32 s64, s62, %d\nbuffer_load_dwordx4 v142, %s, s64 offen lds", 8192 * n, (13 * chunk + 2 * n) * 53248, sq(S_W1))
        a("L_w13skip%d:", chunk)
    for T in range(7): a(rdX(T))
    for g in range(2):
        for tau in range(2): a(rdF(g, tau))
    dmaW13(0)
    a("buffer_load_dword v242, off, %s, s61 sc1", sq(S_DBG))
    pos = {f: i for i, f in enumerate(order[:27]) if f != 26}
    xf = {}
    k = 0
    for i in range(27):
        if order[i] != 26: xf[order[i]] = XFR + k; k += 1
    def unpack():
        o = []
        for i in range(27):
            f = order[i]
            if f == 26: continue
            o.append(("v_lshlrev_b32 v%d, 16, v%d" if i % 2 == 0 else "v_and_b32 v%d, 0xffff0000, v%d") % (xf[f], XP + i // 2))
        return o
    slots = sch["slots"]
    def zops(t):
        o = []
        for hf in range(2):
            for e in range(4 * hf, 4 * hf + 4):
                x, y = slots[8 * t + e]
                o.append("v_mul_f32 v%d, v%d, v%d" % (TMP + e, xf[x], xf[y]))
            for e2 in range(2 * hf, 2 * hf + 2):
                o.append("v_cvt_pk_bf16_f32 v%d, v%d, v%d" % (Z + 4 * (t % 2) + e2, TMP + 2 * e2, TMP + 2 * e2 + 1))
        return o
    def mfc(acc, fr, b, c): return "v_mfma_f32_32x32x16_bf16 %s, %s, %s, %s" % (vr(acc, 16), vr(fr, 4), vr(b, 4), c)
    a("s_waitcnt lgkmcnt(0)")
    for o in unpack(): a(o)
    a("L_cloop:")
    dq = []
    def ds(t, tag): a(t); dq.append(tag)
    def dwait(tag):
        if tag not in dq: return
        n = len(dq) - 1 - max(i for i, t in enumerate(dq) if t == tag)
        a("s_waitcnt lgkmcnt(%d)", min(n, 15))
    z0 = zops(0)
    a(mfc(AC1, frag(0, 0), XP, "0"))
    for o in z0[:6]: a(o)
    ds(rdF(2, 0), ("F", 2))
    a(mfc(AC1, frag(0, 1), XP + 4, vr(AC1, 16)))
    for o in z0[6:]: a(o)
    ds(rdF(2, 1), ("F", 2))
    a("s_nop 0")
    for t in range(22):
        g = t + 1
        gn = (g + 2) % 23
        dwait(("F", g))
        zn = zops(t + 1) if t < 21 else []
        a(mfc(AC0, frag(g, 0), Z + 4 * (t % 2), "0" if t == 0 else vr(AC0, 16)))
        for o in zn[:6]: a(o)
        ds(rdF(gn, 0), ("F", gn if gn > 2 else -gn - 1))
        if 2 <= t < 9: a("v_add_u32 v%d, 64, v%d", 4 + t - 2, 4 + t - 2)
        a(mfc(AC1, frag(g, 1), Z + 4 * (t % 2), vr(AC1, 16)))
        for o in zn[6:]: a(o)
        ds(rdF(gn, 1), ("F", gn if gn > 2 else -gn - 1))
        if 10 <= t < 17: ds(rdX(t - 10), "X")
        elif t < 21: pass
    a("s_waitcnt lgkmcnt(0)")
    for o in unpack(): a(o)
    a("v_mov_b32 v%d, v%d\nv_mov_b32 v%d, v%d\nv_mov_b32 v%d, v%d", RR, RR + 1, RR + 1, RR + 2, RR + 2, RR + 3)
    a("v_mul_f32 v%d, v%d, v%d\nv_mul_f32 v%d, v%d, v%d", TMP, AC0 + 12, AC1 + 12, TMP + 1, AC0, AC1)
    a("v_fmac_f32 v%d, v%d, v%d\nv_mul_f32 v%d, v%d, v%d", TMP, AC0 + 13, AC1 + 13, TMP + 2, AC0 + 1, AC1 + 1)
    a("s_mov_b32 vcc_lo, -1\ns_mov_b32 vcc_hi, 0")
    for i in range(2, 12): a("v_fmac_f32 v%d, v%d, v%d", TMP + 1 + i % 2, AC0 + i, AC1 + i)
    a("v_cndmask_b32 v%d, 0, v%d, vcc", TMP, TMP)
    a("v_add_f32 v%d, v%d, v%d", TMP + 1, TMP + 1, TMP + 2)
    a("v_add_f32 v%d, v%d, v%d", RR + 3, TMP, TMP + 1)
    a("s_add_u32 s60, s60, 1\ns_cmp_eq_u32 s60, 2\ns_cbranch_scc1 L_cloop\ns_cmp_eq_u32 s60, 4\ns_cbranch_scc1 L_cfin")
    def phase(chunk):
        for n in range(13):
            a("ds_read_b64_tr_b16 %s, v140 offset:%d", vr(144 + 8 * (n % 6), 2), 4096 * n)
            a("ds_read_b64_tr_b16 %s, v140 offset:%d", vr(146 + 8 * (n % 6), 2), 4096 * n + 512)
            a("ds_read_b128 %s, v141 offset:%d", vr(148 + 8 * (n % 6), 4), XS * (13 * chunk + n))
            if n >= 4:
                m = n - 4
                a("s_waitcnt lgkmcnt(12)")
                a("v_mfma_f32_16x16x32_bf16 v[136:139], %s, %s, v[136:139]", vr(144 + 8 * (m % 6), 4), vr(148 + 8 * (m % 6), 4))
        for m in range(9, 13):
            a("s_waitcnt lgkmcnt(%d)", 3 * (12 - m))
            a("v_mfma_f32_16x16x32_bf16 v[136:139], %s, %s, v[136:139]", vr(144 + 8 * (m % 6), 4), vr(148 + 8 * (m % 6), 4))
    a("s_waitcnt vmcnt(0)")
    a("s_cmp_eq_u32 s60, 3\ns_cbranch_scc1 L_phb")
    a("s_barrier")
    phase(0)
    a("s_barrier")
    dmaW13(1)
    stamp(7)
    a("s_branch L_cloop")
    a("L_phb:")
    a("""s_mov_b32 s65, 0x20000
    L_cspin:
    v_readfirstlane_b32 s64, v242
    s_cmp_eq_u32 s64, 16
    s_cbranch_scc1 L_cok
    s_sub_u32 s65, s65, 1
    s_cbranch_scc1 L_cok
    buffer_load_dword v242, off, %s, s61 sc1
    s_waitcnt vmcnt(0)
    s_branch L_cspin
    L_cok:
    s_barrier""", sq(S_DBG))
    phase(1)
    a("s_mov_b32 s64, 0x%x\ns_mov_b32 s65, 0x%x\nv_mov_b32 v144, 0x%x\nv_mov_b32 v145, 0x%x", f32bits(c2), f32bits(c2), f32bits(c1), f32bits(c1))
    a("s_lshl_b32 s66, s26, 8\ns_add_u32 s66, s66, %d\nv_lshl_add_u32 v152, v0, 2, s66\ns_nop 1", C_MD)
    for i in range(2): a("v_pk_mul_f32 %s, %s, %s", vr(146 + 2 * i, 2), vr(136 + 2 * i, 2), vr(136 + 2 * i, 2))
    for i in range(2): a("v_pk_fma_f32 %s, %s, s[64:65], v[144:145]", vr(146 + 2 * i, 2), vr(146 + 2 * i, 2))
    for i in range(2): a("v_pk_mul_f32 %s, %s, %s", vr(146 + 2 * i, 2), vr(146 + 2 * i, 2), vr(136 + 2 * i, 2))
    for i in range(4): a("v_exp_f32 v%d, v%d", 146 + i, 146 + i)
    for i in range(2): a("v_pk_mul_f32 %s, %s, %s", vr(136 + 2 * i, 2), vr(136 + 2 * i, 2), vr(248 + 2 * i, 2))
    for i in range(2): a("v_pk_add_f32 %s, %s, 1.0 op_sel_hi:[1,0]", vr(146 + 2 * i, 2), vr(146 + 2 * i, 2))
    for i in range(4): a("v_rcp_f32 v%d, v%d", 146 + i, 146 + i)
    a("""s_nop 0
    v_pk_mul_f32 v[136:137], v[136:137], v[146:147]
    v_pk_fma_f32 v[136:137], v[138:139], v[148:149], v[136:137]
    v_add_f32 v136, v136, v137
    ds_write_b32 v152, v136
    s_waitcnt lgkmcnt(0)""")
    stamp(8)
    a("s_branch L_cloop")
    a("L_cfin:")
    stamp(9)
    a("""buffer_load_dword v241, v143, %s, 0 offen sc1
    s_barrier
    ds_read_b32 v240, v254
    v_permlane32_swap_b32 v%d, v%d
    v_permlane32_swap_b32 v%d, v%d
    v_add_f32 v%d, v%d, v%d
    v_add_f32 v%d, v%d, v%d
    s_nop 1
    v_permlane16_swap_b32 v%d, v%d
    v_add_f32 v%d, v%d, v%d
    s_waitcnt lgkmcnt(0)
    v_add_f32 v%d, v%d, v240
    s_mov_b32 s65, 0x20000
    L_pspin:
    s_waitcnt vmcnt(0)
    v_cmp_eq_u32 vcc, -1, v241
    s_cbranch_vccz L_pok
    s_sub_u32 s65, s65, 1
    s_cbranch_scc1 L_pok
    buffer_load_dword v241, v143, %s, 0 offen sc1
    s_branch L_pspin
    L_pok:
    v_add_f32 v%d, v%d, v241""", sq(S_WS), RR, RR + 1, RR + 2, RR + 3, RR, RR, RR + 1, RR + 2, RR + 2, RR + 3, RR, RR + 2, RR, RR, RR + 2, RR, RR, sq(S_WS), RR, RR)
    for sh in (8, 4, 2, 1):
        a("s_nop 1\nv_add_f32_dpp v%d, v%d, v%d row_ror:%d row_mask:0xf bank_mask:0xf", RR, RR, RR, sh)
    a("""v_add_f32 v%d, v%d, v246
    v_cvt_pk_bf16_f32 v%d, v%d, v%d
    buffer_store_short v%d, v243, %s, 0 offen""", RR, RR, RR, RR, RR, RR, sq(S_OUT))
    stamp(10)
    dump_stamps()
    a("L_end:\ns_endpgm")
    body = a.text()

    t0 = []; t1 = []
    Z0 = 2048; Z1 = 4096; C1 = 4100
    for c in range(48):
        r0 = []; r1 = []
        for e in range(8):
            if c < 44:
                pr = sch["pairs"][c & 1][8 * (c >> 1) + e]
                if pr is None: r0 += [Z0, Z0]; r1 += [Z1, Z1]
                else:
                    x, y = pr
                    r0 += [(x * 26 + y) * 2, (y * 26 + x) * 2 if x != y else Z0]
                    r1 += [x * 128 + y * 4, y * 128 + x * 4 if x != y else Z1]
            else:
                u = (c - 44) >> 1; h = (c - 44) & 1; p = 8 * u + e
                r0 += [Z0, Z0]
                if p < 13: r1 += [28 * 128 + fld(h, order[p]) * 4, Z1]
                elif p == 13 and h == 0: r1 += [C1, Z1]
                else: r1 += [Z1, Z1]
        t0.append(r0); t1.append(r1)
    tab = ".p2align 6\n.type L_table,@object\nL_table:\n" + "".join(".short " + ", ".join(map(str, r)) + "\n" for r in t0 + t1) + ".size L_table, 3072\nL_codeend:\n"
    hdr = open("standalone__deep_cross_xdeepfm__recsys.s.ref").read().split("; Override launch")[0]
    out = hdr + "; Generated by a script (own generator). Roles: workgroups with (id>>3)<16 run the MLP GEMM tile,\n; the others run the CIN quadratic forms and combine.\n"
    out += "; @launch grid=(256,1,1) block=(512,1,1) lds=163840\n"
    out += '.amdgcn_target "amdgcn-amd-amdhsa--gfx950"\n.text\n.globl %s\n.p2align 8\n.type %s,@function\n%s:\n' % (KN, KN, KN)
    out += body + tab
    out += """.section .rodata,"a"
.p2align 6
.amdhsa_kernel %s
  .amdhsa_next_free_vgpr 256
  .amdhsa_next_free_sgpr 102
  .amdhsa_accum_offset 256
  .amdhsa_group_segment_fixed_size 0
  .amdhsa_kernarg_size 88
  .amdhsa_user_sgpr_count 2
  .amdhsa_user_sgpr_kernarg_segment_ptr 1
  .amdhsa_system_sgpr_workgroup_id_x 1
  .amdhsa_float_denorm_mode_32 3
.end_amdhsa_kernel
""" % KN
    nb = lint(body)
    return out, nb

if __name__ == "__main__":
    cfg = Cfg()
    path = sys.argv[1]
    for kv in sys.argv[2:]:
        k, v = kv.split("=")
        old = getattr(cfg, k)
        setattr(cfg, k, v if isinstance(old, str) else (bool(int(v)) if isinstance(old, bool) else int(v)))
    out, nb = generate(cfg)
    open(path, "w").write(out)
    print("written", path, "hazards:", nb)
```

```python
import sys, math, struct
from scheme import build as build_scheme
from lint import lint

KN = "standalone__deep_cross_xdeepfm__recsys_kernel"
class Cfg:
    PRE = 2
    R = 7
    RHO = "0"
    STAMP = False
    HOSTF = False
    CODEPF = True
    PRIO = 0
    PROBE = "none"
    PN = 64
def f32bits(x): return struct.unpack("<I", struct.pack("<f", x))[0]

class A:
    def __init__(s): s.L = []
    def __call__(s, t, *a):
        if a: t = t % a
        for l in t.split("\n"):
            l = l.strip()
            if l: s.L.append(l if l.endswith(":") else "    " + l)
    def text(s): return "\n".join(s.L) + "\n"
def vr(a, n): return "v[%d:%d]" % (a, a + n - 1)

SLOT = 20480
D_IDX = 7 * SLOT
D_BW = D_IDX + 13312
XS = 2112
C_X = 0
C_F = 27 * XS
FS = 1488
C_W13 = C_F + 26 * FS
C_IDX = C_W13 + 1024
C_VT = C_W13 + 13 * 4096
C_S1 = C_VT + 2048
C_S0 = C_S1 + 2048
C_UB = C_S0 + 2064
C_DUM = C_UB + 4112
C_FLAG = C_DUM + 16
C_MD = C_FLAG + 16
assert C_MD + 2048 <= 163840 and D_BW + 3072 <= 163840
WS_F = 0; WS_BOX = 65536; WS_ST = 262144
OOB = 0x7ff00000

def srd(a, s, ptr, n):
    a("s_mov_b32 s%d, s%d\ns_mov_b32 s%d, s%d\ns_mov_b32 s%d, %d\ns_mov_b32 s%d, 0x20000", s, ptr, s + 1, ptr + 1, s + 2, n, s + 3)
S_IDX, S_TAB, S_W1, S_WS, S_WC, S_DBG, S_OUT, S_M = 32, 36, 40, 44, 48, 52, 56, 96
def sq(s): return "s[%d:%d]" % (s, s + 3)

def generate(cfg):
    sch = build_scheme()
    a = A()
    nst = [0]
    def stamp(k):
        if cfg.STAMP: a("s_memtime s[%d:%d]", 72 + 2 * k, 73 + 2 * k)
    def dump_stamps():
        if not cfg.STAMP: return
        a("s_waitcnt vmcnt(0) lgkmcnt(0)")
        for k in range(12): a("v_mov_b32 v%d, s%d", 224 + k, 72 + 2 * k)
        a("v_mov_b32 v236, s70\nv_mov_b32 v237, s2\nv_mov_b32 v238, s26\nv_mov_b32 v239, 0")
        a("s_lshl_b32 s64, s2, 3\ns_add_u32 s64, s64, s26\ns_lshl_b32 s64, s64, 6\ns_add_u32 s64, s64, %d", WS_ST)
        a("v_mov_b32 v240, s64\ns_mov_b64 exec, 1")
        srd(a, S_WS, 24, 0x100000)
        for k in range(4): a("buffer_store_dwordx4 v[%d:%d], v240, %s, 0 offen offset:%d", 224 + 4 * k, 227 + 4 * k, sq(S_WS), 16 * k)
    WSN = 0x100000 if cfg.STAMP else WS_BOX + 131072

    a("s_cmp_ge_u32 s2, 256\ns_cbranch_scc1 L_end")
    if cfg.STAMP:
        for k in range(12): a("s_mov_b32 s%d, 0", 72 + 2 * k)
        a("s_memrealtime s[70:71]")
    stamp(0)
    a("""s_load_dwordx16 s[4:19], s[0:1], 0
    s_load_dwordx4 s[20:23], s[0:1], 64
    s_load_dwordx2 s[24:25], s[0:1], 80
    v_lshrrev_b32 v1, 6, v0
    v_and_b32 v0, 63, v0
    s_and_b32 s27, s2, 7
    v_readfirstlane_b32 s26, v1
    s_lshr_b32 s28, s2, 3
    s_and_b32 s30, s28, 3
    s_bfe_u32 s29, s28, 0x20002
    s_lshl_b32 s64, s27, 2
    s_add_u32 s29, s29, s64""")
    if cfg.PROBE == "spin":
        a("s_memrealtime s[100:101]")
    elif cfg.PROBE != "none":
        ptr, stride, lim = {"table": (6, 128, 6400000), "ws": (24, 128, 1 << 27), "wsfar": (24, 4096, 1 << 28), "w1": (12, 128, 1384448), "idx": (4, 128, 425984)}[cfg.PROBE]
        a("s_waitcnt lgkmcnt(0)")
        srd(a, S_M, ptr, lim)
        a("s_mul_i32 s64, s2, %d\nv_mov_b32 v2, s64\ns_mov_b32 s65, %d\ns_cmp_lg_u32 s26, 0\ns_cbranch_scc1 L_probe_e", stride * cfg.PN, cfg.PN)
        if cfg.PROBE.startswith("ws"): a("v_add_u32 v2, 0x400000, v2")
        a("L_probe:\nbuffer_load_dword v3, v2, %s, 0 offen\ns_waitcnt vmcnt(0)\nv_and_b32 v3, 0, v3\nv_add3_u32 v2, v2, v3, %s\ns_sub_u32 s65, s65, 1\ns_cmp_lg_u32 s65, 0\ns_cbranch_scc1 L_probe\nL_probe_e:\ns_barrier" , sq(S_M), "64, v2\nv_add_u32 v2, 64" if False else "0")
        a.L = [l.replace("v_add3_u32 v2, v2, v3, 0", "v_add_u32 v2, v2, v3\n    v_add_u32 v2, %d, v2" % stride) for l in a.L]
    if cfg.CODEPF:
        a("""s_cmp_lg_u32 s26, 7
        s_cbranch_scc1 L_nopf
        s_getpc_b64 s[64:65]
        L_pfbase:
        s_lshl_b32 s66, s28, 10
        v_and_b32 v2, 7, v0
        v_lshl_add_u32 v2, v2, 7, s66
        v_min_u32 v2, L_codeend-L_pfbase-4, v2
        v_and_b32 v2, -4, v2
        global_load_dword v255, v2, s[64:65]
        L_nopf:""")
    a("s_cmp_ge_u32 s28, 16\ns_cbranch_scc1 L_cin")
    a("s_cmp_ge_u32 s26, 4\ns_cbranch_scc1 L_loader")

    ACC = lambda tt, rt: 128 + 16 * (2 * tt + rt)
    W2R = 64
    XF = lambda st, rt: (16 if st == 0 else 36) + 4 * rt
    WF = lambda st, tt: (24 if st == 0 else 44) + 4 * tt
    a("""s_and_b32 s66, s26, 1
    s_lshr_b32 s67, s26, 1
    v_and_b32 v1, 31, v0
    v_lshrrev_b32 v2, 5, v0
    v_bfe_u32 v3, v0, 2, 2
    v_xor_b32 v8, v2, v3
    v_lshlrev_b32 v8, 4, v8
    v_lshl_add_u32 v4, v1, 6, v8
    s_lshl_b32 s64, s66, 12
    v_add_u32 v4, s64, v4
    v_xor_b32 v5, 32, v4""")
    a("""v_lshl_add_u32 v8, v2, 3, v3
    v_mul_u32_u24 v8, 384, v8
    v_bfe_u32 v9, v0, 4, 1
    v_lshl_add_u32 v8, v9, 5, v8
    v_and_b32 v9, 3, v0
    v_lshl_add_u32 v8, v9, 3, v8
    s_mul_i32 s64, s67, 192
    s_add_u32 s64, s64, 8192
    v_add_u32 v8, s64, v8
    v_bfe_u32 v9, v0, 3, 1
    v_lshlrev_b32 v9, 6, v9
    v_add_u32 v10, v8, v9
    v_sub_u32 v11, v8, v9
    s_cmp_eq_u32 s67, 0
    s_cselect_b64 vcc, -1, 0
    v_cndmask_b32 v6, v11, v10, vcc
    v_cndmask_b32 v7, v10, v11, vcc""")
    a("""s_mul_i32 s64, s30, 384
    s_mul_i32 s65, s67, 192
    s_add_u32 s64, s64, s65
    v_lshl_add_u32 v8, v0, 3, s64
    s_mul_i32 s65, s26, 768
    s_add_u32 s65, s65, %d
    v_lshl_add_u32 v9, v0, 4, s65
    v_lshl_add_u32 v10, v2, 4, s65
    s_waitcnt lgkmcnt(0)
    s_mov_b64 exec, 0xffffff
    global_load_dwordx2 v[12:13], v8, s[14:15]
    global_load_dwordx2 v[14:15], v8, s[16:17]""", D_BW)
    stamp(1)
    srd(a, S_WS, 24, WSN); srd(a, S_DBG, 22, 256)
    a("""s_mov_b64 exec, -1
    s_lshl_b32 s64, s29, 12
    s_lshl_b32 s65, s30, 10
    s_add_u32 s64, s64, s65
    s_lshl_b32 s65, s67, 9
    s_add_u32 s64, s64, s65
    s_lshl_b32 s65, s66, 8
    s_add_u32 s64, s64, s65
    s_add_u32 s64, s64, %d
    v_lshl_add_u32 v60, v0, 2, s64
    v_mov_b32 v61, -1
    v_mov_b32 v62, 1
    buffer_store_dword v61, v60, %s, 0 offen sc1
    s_lshl_b32 s64, s29, 2
    s_waitcnt vmcnt(0)
    s_mov_b64 exec, 1
    buffer_atomic_add v62, off, %s, s64
    s_mov_b64 exec, 0xffffff""", WS_BOX, sq(S_WS), sq(S_DBG))
    a("""v_lshlrev_b32 v16, 16, v12
    v_and_b32 v17, 0xffff0000, v12
    v_lshlrev_b32 v18, 16, v13
    v_and_b32 v19, 0xffff0000, v13
    v_lshlrev_b32 v20, 16, v14
    v_and_b32 v21, 0xffff0000, v14
    v_lshlrev_b32 v22, 16, v15
    v_and_b32 v23, 0xffff0000, v15
    ds_write_b128 v9, v[16:19]
    ds_write_b128 v9, v[20:23] offset:384
    s_mov_b64 exec, -1
    s_waitcnt lgkmcnt(0)""")
    for tt in range(3):
        for q in range(4):
            for rt in range(2):
                a("ds_read_b128 %s, v10 offset:%d", vr(ACC(tt, rt) + 4 * q, 4), 128 * tt + 32 * q)
            a("ds_read_b128 %s, v10 offset:%d", vr(W2R + 16 * tt + 4 * q, 4), 384 + 128 * tt + 32 * q)
    a("""    s_mov_b32 s66, 0
    s_mov_b32 s67, 26
    s_mov_b32 s68, %d
    s_mov_b32 s69, %d
    s_waitcnt lgkmcnt(0)""", -(cfg.R - 1) * SLOT, SLOT)
    def rd_x(st, j, rt): return "ds_read_b128 %s, v%d offset:%d" % (vr(XF(st, rt), 4), 4 + j, 2048 * rt)
    def rd_w(st, j, tt, u): return "ds_read_b64_tr_b16 %s, v%d offset:%d" % (vr(WF(st, tt) + 2 * u, 2), 7 if tt == 1 else 6, 64 * tt + (16 * j + 4 * u) * 384)
    def reads(st, j): return [rd_x(st, j, 0), rd_w(st, j, 0, 0), rd_w(st, j, 0, 1), rd_x(st, j, 1), rd_w(st, j, 1, 0), rd_w(st, j, 1, 1), rd_w(st, j, 2, 0), rd_w(st, j, 2, 1)]
    def mf(st, tt, rt): return "v_mfma_f32_32x32x16_bf16 %s, %s, %s, %s" % (vr(ACC(tt, rt), 16), vr(WF(st, tt), 4), vr(XF(st, rt), 4), vr(ACC(tt, rt), 16))
    a("s_barrier")
    stamp(2)
    for r in reads(0, 0): a(r)
    a("L_dloop:")
    a("s_waitcnt lgkmcnt(0)")
    r = reads(1, 1)
    a(mf(0, 0, 0)); a(r[0]); a(r[1]); a(r[2])
    a(mf(0, 0, 1)); a(r[3]); a(r[4]); a(r[5])
    a(mf(0, 1, 0)); a(r[6]); a(r[7])
    a("s_add_u32 s66, s66, 1\ns_cmp_eq_u32 s66, %d\ns_cselect_b32 s64, s68, s69\ns_cselect_b32 s66, 0, s66", cfg.R)
    a(mf(0, 1, 1)); a("v_add_u32 v4, s64, v4\nv_add_u32 v5, s64, v5")
    a(mf(0, 2, 0)); a("v_add_u32 v6, s64, v6\nv_add_u32 v7, s64, v7")
    a(mf(0, 2, 1))
    a("s_waitcnt lgkmcnt(0)\ns_barrier")
    r = reads(0, 0)
    a(mf(1, 0, 0)); a(r[0]); a(r[1]); a(r[2])
    a(mf(1, 0, 1)); a(r[3]); a(r[4]); a(r[5])
    a(mf(1, 1, 0)); a(r[6]); a(r[7])
    a(mf(1, 1, 1)); a("s_sub_u32 s67, s67, 1")
    a(mf(1, 2, 0)); a("s_cmp_lg_u32 s67, 0")
    a(mf(1, 2, 1))
    a("s_cbranch_scc1 L_dloop")
    stamp(3)
    c1 = -2.0 * math.log2(math.e) * math.sqrt(2.0 / math.pi); c2 = c1 * 0.044715
    a("s_mov_b32 s64, 0x%x\ns_mov_b32 s65, 0x%x\nv_mov_b32 v8, 0x%x\nv_mov_b32 v9, 0x%x", f32bits(c2), f32bits(c2), f32bits(c1), f32bits(c1))
    a("v_mov_b32 v56, 0\nv_mov_b32 v57, 0\nv_mov_b32 v58, 0\nv_mov_b32 v59, 0")
    def gelu(acc, w2, npairs, T, SUM, first_pad=0):
        P = range(npairs)
        x = lambda i: vr(acc + 2 * i, 2); t = lambda i: vr(T + 2 * i, 2)
        for i in P: a("v_pk_mul_f32 %s, %s, %s", t(i), x(i), x(i))
        for i in P: a("v_pk_fma_f32 %s, %s, s[64:65], v[8:9]", t(i), t(i))
        for i in P: a("v_pk_mul_f32 %s, %s, %s", t(i), t(i), x(i))
        for i in range(2 * npairs): a("v_exp_f32 v%d, v%d", T + i, T + i)
        for i in P: a("v_pk_mul_f32 %s, %s, %s", x(i), x(i), vr(w2 + 2 * i, 2))
        for i in P: a("v_pk_add_f32 %s, %s, 1.0 op_sel_hi:[1,0]", t(i), t(i))
        for i in range(2 * npairs): a("v_rcp_f32 v%d, v%d", T + i, T + i)
    def gelu_fin(acc, npairs, T, SUM):
        for i in range(npairs): a("v_pk_fma_f32 %s, %s, %s, %s", vr(SUM, 2), vr(acc + 2 * i, 2), vr(T + 2 * i, 2), vr(SUM, 2))
    pend = None
    k = 0
    for tt in range(3):
        for rt in range(2):
            for hf in range(2):
                T = 112 + 8 * (k % 2); k += 1
                gelu(ACC(tt, rt) + 8 * hf, W2R + 16 * tt + 8 * hf, 4, T, 56 + 2 * rt)
                if pend: gelu_fin(*pend)
                pend = (ACC(tt, rt) + 8 * hf, 4, T, 56 + 2 * rt)
    a("s_nop 0"); gelu_fin(*pend)
    a("""v_add_f32 v56, v56, v57
    v_add_f32 v58, v58, v59
    s_nop 1
    v_permlane32_swap_b32 v56, v58
    v_add_f32 v56, v56, v58
    buffer_store_dword v56, v60, %s, 0 offen sc1""", sq(S_WS))
    stamp(4)
    dump_stamps()
    a("s_endpgm")

    a("L_loader:")
    q = []
    def vm(tag): q.append(tag)
    def wait_for(pred):
        last = max(i for i, t in enumerate(q) if pred(t))
        n = len(q) - 1 - last
        assert n < 64
        a("s_waitcnt vmcnt(%d)", n)
    a("""s_sub_u32 s66, s26, 4
    s_lshl_b32 s64, s29, 2
    s_add_u32 s64, s64, s66
    s_mul_i32 s64, s64, 3328
    s_mul_i32 s67, s66, 3328
    s_add_u32 s67, s67, %d
    s_mov_b32 m0, s67
    v_lshlrev_b32 v1, 4, v0
    s_waitcnt lgkmcnt(0)""", D_IDX)
    srd(a, S_IDX, 4, 425984)
    if cfg.CODEPF: vm("pf")
    for i in range(4):
        if i == 3: a("s_mov_b64 exec, 0xffff")
        a("buffer_load_dwordx4 v1, %s, s64 offen offset:%d lds", sq(S_IDX), 1024 * i); vm("idx")
    a("s_mov_b64 exec, -1")
    stamp(1)
    srd(a, S_W1, 12, 1384448); srd(a, S_TAB, 6, 6400000)
    for ii in range(3):
        a("""s_mul_i32 s64, s66, 192
        s_add_u32 s64, s64, %d
        v_add_u32 v2, s64, v0
        v_mul_u32_u24 v3, 2731, v2
        v_lshrrev_b32 v3, 16, v3
        v_mul_u32_u24 v4, 24, v3
        v_sub_u32 v4, v2, v4
        v_bfe_u32 v5, v3, 1, 1
        v_lshlrev_b32 v5, 2, v5
        v_xor_b32 v4, v4, v5
        v_lshlrev_b32 v4, 4, v4
        v_mul_u32_u24 v3, 1664, v3
        s_mul_i32 s64, s30, 384
        v_add3_u32 v%d, v3, v4, s64""", 64 * ii, 10 + ii)
    if cfg.RHO == "0": a("s_mov_b32 s68, 0")
    elif cfg.RHO == "rt": a("s_and_b32 s68, s29, 3\ns_mul_i32 s68, s68, 13\ns_lshr_b32 s68, s68, 1")
    elif cfg.RHO == "cg": a("s_mul_i32 s68, s30, 13\ns_lshr_b32 s68, s68, 1")
    else: a("s_mov_b32 s68, %d", int(cfg.RHO))
    a("""s_mul_i32 s69, s68, 53248
    s_lshl_b32 s68, s68, 2
    s_mul_i32 s62, s66, 3072
    s_add_u32 s62, s62, 8192
    s_lshl_b32 s63, s66, 11""")
    def ldB(s):
        for ii in range(3):
            a("s_add_u32 m0, s62, %d", (s % cfg.R) * SLOT + 1024 * ii)
            a("s_nop 0")
            a("buffer_load_dwordx4 v%d, %s, s69 offen lds", 10 + ii, sq(S_W1)); vm(("st", s))
        a("s_add_u32 s69, s69, 53248\ns_cmp_eq_u32 s69, %d\ns_cselect_b32 s69, 0, s69", 26 * 53248)
    def rdI(reg):
        a("v_add_u32 v15, s68, v14\nds_read_b32 v%d, v15\nds_read_b32 v%d, v15 offset:1664", reg, reg + 1)
        a("s_add_u32 s68, s68, 4\ns_cmp_eq_u32 s68, 104\ns_cselect_b32 s68, 0, s68")
    def ldA(s, reg):
        for ii in range(2):
            a("s_add_u32 m0, s63, %d", (s % cfg.R) * SLOT + 1024 * ii)
            a("v_lshl_add_u32 v%d, v%d, 6, v13", reg + ii, reg + ii)
            a("buffer_load_dwordx4 v%d, %s, 0 offen lds", reg + ii, sq(S_TAB)); vm(("st", s))
    for s in range(cfg.PRE): ldB(s)
    a("""v_lshrrev_b32 v2, 2, v0
    v_mul_u32_u24 v2, 104, v2
    v_add_u32 v14, s67, v2
    v_and_b32 v2, 3, v0
    v_lshrrev_b32 v3, 4, v0
    v_xor_b32 v2, v2, v3
    v_lshlrev_b32 v13, 4, v2""")
    wait_for(lambda t: t == "idx")
    stamp(2)
    for s in range(cfg.R): rdI(16 + 2 * s)
    for s in range(cfg.R):
        a("s_waitcnt lgkmcnt(%d)", 2 * (cfg.R - 1 - s))
        ldA(s, 16 + 2 * s)
        if s >= cfg.PRE: ldB(s)
    rdI(16)
    stamp(3)
    wait_for(lambda t: t == ("st", 0))
    a("s_barrier")
    stamp(4)
    for s in range(26):
        if s + 1 <= 25: wait_for(lambda t: t == ("st", s + 1))
        a("s_barrier")
        if s == 5: stamp(5)
        if s == 12: stamp(6)
        n = s + cfg.R
        if n <= 25:
            reg = 16 + 2 * (s % 2)
            a("s_waitcnt lgkmcnt(0)")
            if n + 1 <= 25: rdI(16 + 2 * ((s + 1) % 2))
            ldA(n, reg); ldB(n)
    stamp(7)
    dump_stamps()
    a("s_endpgm")

    a("L_cin:")
    a("""v_lshlrev_b32 v1, 2, v0
    s_lshl_b32 s64, s26, 8
    v_add_u32 v1, s64, v1
    v_mov_b32 v2, 0x3f803f80
    v_mov_b32 v3, 0
    ds_write_b32 v1, v2 offset:%d
    s_mov_b32 s65, %d
    s_cmp_eq_u32 s26, 7
    s_cselect_b32 s64, s65, %d
    s_cselect_b64 exec, 1, -1
    v_add_u32 v1, s64, v1
    ds_write_b32 v1, v3
    s_mov_b64 exec, -1
    s_sub_u32 s31, s2, 128
    s_waitcnt lgkmcnt(0)
    s_barrier""", C_X + 26 * XS, C_FLAG - 7 * 256, C_VT)
    srd(a, S_WS, 24, WSN); srd(a, S_DBG, 22, 256)
    a("s_cmp_ge_u32 s26, 4\ns_cbranch_scc1 L_prod")
    srd(a, S_IDX, 4, 425984)
    a("""s_and_b32 s66, s26, 1
    s_lshr_b32 s67, s26, 1
    s_lshl_b32 s64, s29, 3
    s_lshl_b32 s65, s30, 1
    s_add_u32 s64, s64, s65
    s_add_u32 s64, s64, s66
    s_mul_i32 s64, s64, 1664
    s_lshl_b32 s65, s26, 11
    s_add_u32 s65, s65, %d
    s_mov_b32 m0, s65
    v_lshlrev_b32 v1, 4, v0
    buffer_load_dwordx4 v1, %s, s64 offen lds
    buffer_load_dwordx4 v1, %s, s64 offen offset:1024 lds""", C_IDX, sq(S_IDX), sq(S_IDX))
    stamp(1)
    srd(a, S_TAB, 6, 6400000)
    a("""v_lshrrev_b32 v2, 2, v0
    v_mul_u32_u24 v2, 104, v2
    s_lshl_b32 s64, s67, 2
    s_add_u32 s64, s64, s65
    v_add_u32 v14, s64, v2
    v_and_b32 v2, 3, v0
    v_lshrrev_b32 v3, 5, v0
    v_lshlrev_b32 v3, 1, v3
    v_xor_b32 v2, v2, v3
    v_lshlrev_b32 v13, 4, v2
    s_mul_i32 s62, s67, %d
    s_lshl_b32 s64, s66, 10
    s_add_u32 s62, s62, s64
    s_waitcnt vmcnt(0)""", XS)
    stamp(2)
    for n in range(13): a("ds_read_b32 v%d, v14 offset:%d", 16 + n, 8 * n)
    for n in range(13):
        a("s_waitcnt lgkmcnt(%d)", 12 - n)
        a("s_add_u32 m0, s62, %d", C_X + 2 * XS * n)
        a("v_lshl_add_u32 v%d, v%d, 6, v13", 16 + n, 16 + n)
        a("buffer_load_dwordx4 v%d, %s, 0 offen lds", 16 + n, sq(S_TAB))
    stamp(3)
    a("s_branch L_cjoin")

    a("L_prod:")
    a("s_sub_u32 s66, s26, 4")
    if not cfg.HOSTF:
        a("s_cmp_ge_u32 s31, 26\ns_cbranch_scc1 L_noprod")
        srd(a, S_WC, 8, 105456); srd(a, S_M, 10, 156)
        a("s_mul_i32 s67, s66, 9216\ns_add_u32 s67, s67, %d\ns_mul_i32 s65, s66, 352\ns_add_u32 s65, s65, 70304", C_F)
        for n in range(9):
            a("""v_add_u32 v2, %d, v0
            v_mul_u32_u24 v3, 2979, v2
            v_lshrrev_b32 v3, 16, v3
            v_mul_u32_u24 v4, 22, v3
            v_sub_u32 v4, v2, v4
            v_mul_u32_u24 v3, 1352, v3
            s_add_u32 m0, s67, %d
            v_lshl_add_u32 v3, v4, 4, v3
            buffer_load_dwordx4 v3, %s, s65 offen lds""", 64 * n, 1024 * n, sq(S_WC))
        a("""v_lshrrev_b32 v2, 4, v0
        v_lshlrev_b32 v5, 4, v2
        buffer_load_dwordx4 v[16:19], v5, %s, 0 offen offset:104""", sq(S_M))
        a("""v_mul_u32_u24 v5, 1352, v2
        v_and_b32 v6, 15, v0
        v_lshl_add_u32 v5, v6, 2, v5
        s_mul_i32 s64, s66, 10816
        s_mul_i32 s65, s31, 52
        s_add_u32 s64, s64, s65
        s_add_u32 s64, s64, 35152
        s_lshl_b32 s65, s66, 9
        s_add_u32 m0, s65, %d
        s_add_u32 s63, s64, 5408
        buffer_load_dword v5, %s, s64 offen lds
        s_add_u32 m0, s65, %d
        s_nop 0
        buffer_load_dword v5, %s, s63 offen lds""", C_S1, sq(S_WC), C_S1 + 256, sq(S_WC))
        a("s_getpc_b64 s[68:69]\nL_tb:\ns_add_u32 s68, s68, L_table-L_tb\ns_addc_u32 s69, s69, 0")
        a("v_min_u32 v7, 47, v0\nv_lshlrev_b32 v7, 5, v7")
        a("s_cmp_eq_u32 s66, 0\ns_cbranch_scc1 L_px0\ns_cmp_eq_u32 s66, 1\ns_cbranch_scc1 L_px1\ns_cmp_eq_u32 s66, 2\ns_cbranch_scc1 L_pxe")
        a("""v_lshlrev_b32 v8, 2, v0
        v_cmp_gt_u32 vcc, 13, v0
        v_mov_b32 v9, %d
        s_mov_b32 m0, %d
        v_cndmask_b32 v8, v9, v8, vcc
        buffer_load_dword v8, %s, 0 offen offset:52 lds
        s_branch L_pxe""", OOB, C_VT + 28 * 64 - 52, sq(S_M))
        a("""L_px0:
        global_load_dwordx4 v[20:23], v7, s[68:69] offset:1536
        global_load_dwordx4 v[24:27], v7, s[68:69] offset:1552
        v_mov_b32 v28, 0
        v_mov_b32 v29, 0
        s_lshl_b32 s64, s31, 1
        buffer_load_short_d16_hi v29, off, %s, s64
        s_branch L_pxe""", sq(S_M))
        a("""L_px1:
        global_load_dwordx4 v[20:23], v7, s[68:69]
        global_load_dwordx4 v[24:27], v7, s[68:69] offset:16
        s_mul_i32 s64, s31, 1352
        s_mov_b32 m0, %d
        v_lshlrev_b32 v8, 4, v0
        buffer_load_dwordx4 v8, %s, s64 offen lds
        buffer_load_dwordx4 v8, %s, s64 offen offset:1024 lds
        L_pxe:""", C_S0, sq(S_WC), sq(S_WC))
        stamp(1)
        a("""v_bfe_u32 v3, v0, 2, 2
        v_lshl_add_u32 v3, v2, 3, v3
        v_add_u32 v4, 4, v3
        v_min_u32 v3, 25, v3
        v_min_u32 v4, 25, v4
        v_mul_u32_u24 v3, 352, v3
        v_mul_u32_u24 v4, 352, v4
        v_and_b32 v5, 3, v0
        v_lshlrev_b32 v5, 3, v5
        v_add3_u32 v10, v3, v5, s67
        v_add3_u32 v11, v4, v5, s67
        s_mul_i32 s64, s66, 176
        v_add_u32 v6, s64, v6
        v_mov_b32 v9, %d""", C_DUM)
        for m in range(11):
            a("""v_add_u32 v3, %d, v6
            v_mul_u32_u24 v4, 2521, v3
            v_lshrrev_b32 v4, 16, v4
            v_mul_u32_u24 v5, 26, v4
            v_sub_u32 v5, v3, v5
            v_lshlrev_b32 v5, 6, v5
            v_lshl_add_u32 v5, v4, 1, v5
            v_cmp_gt_u32 vcc, 676, v3
            v_add_u32 v5, %d, v5
            s_nop 0
            v_cndmask_b32 v%d, v9, v5, vcc""", 16 * m, C_VT, 32 + m)
        a("s_waitcnt vmcnt(0)")
        stamp(2)
        for m in range(11):
            a("ds_read_b64_tr_b16 %s, v10 offset:%d", vr(48 + 4 * m, 2), 32 * m)
            a("ds_read_b64_tr_b16 %s, v11 offset:%d", vr(50 + 4 * m, 2), 32 * m)
        for m in range(11):
            a("s_waitcnt lgkmcnt(%d)", min(15, 2 * (10 - m)))
            a("v_mfma_f32_16x16x32_bf16 %s, v[16:19], %s, 0", vr(96 + 4 * m, 4), vr(48 + 4 * m, 4))
        a("s_nop 1")
        for m in range(11):
            if m >= 8: a("s_nop 1")
            a("v_cvt_pk_bf16_f32 v%d, v%d, v%d", 48 + m, 96 + 4 * m, 96 + 4 * m)
            a("ds_write_b16 v%d, v%d", 32 + m, 48 + m)
        a("""v_mov_b32 v3, %d
        v_mov_b32 v4, 1
        s_waitcnt lgkmcnt(0)
        s_mov_b64 exec, 1
        ds_add_u32 v3, v4
        s_mov_b64 exec, -1""", C_FLAG)
        a("s_cmp_ge_u32 s66, 2\ns_cbranch_scc1 L_cjoin")
        for i in range(8):
            a("v_and_b32 v%d, 0xffff, v%d\nv_lshrrev_b32 v%d, 16, v%d", 64 + 2 * i, 20 + i, 65 + 2 * i, 20 + i)
        a("""v_lshrrev_b32 v5, 1, v0
        v_and_b32 v6, 1, v0
        v_lshl_add_u32 v5, v5, 2, v6
        s_mul_i32 s63, s31, %d
        s_cmp_eq_u32 s66, 1
        s_cbranch_scc1 L_pf0""", FS)
        a("""v_add_u32 v5, 2, v5
        v_add_u32 v6, 44, v0
        v_cmp_gt_u32 vcc, 44, v0
        v_mov_b32 v7, %d
        v_and_b32 v8, 31, v0
        v_cndmask_b32 v5, v6, v5, vcc
        v_lshlrev_b32 v5, 4, v5
        ds_write_b64 v7, v[28:29]
        v_lshrrev_b32 v9, 5, v0
        v_lshlrev_b32 v10, 6, v8
        v_lshl_add_u32 v10, v9, 4, v10
        v_add_u32 v10, %d, v10
        v_bfe_u32 v11, v0, 2, 2
        v_lshl_add_u32 v11, v9, 3, v11
        v_lshlrev_b32 v11, 6, v11
        v_bfe_u32 v12, v0, 4, 1
        v_lshl_add_u32 v11, v12, 5, v11
        v_and_b32 v12, 3, v0
        v_lshl_add_u32 v11, v12, 3, v11
        v_add_u32 v11, %d, v11
        v_lshlrev_b32 v12, 9, v9
        v_lshl_add_u32 v12, v8, 2, v12
        v_add_u32 v12, %d, v12
        s_mov_b32 s65, 0x40000
        L_vspin:
        s_sub_u32 s65, s65, 1
        s_cbranch_scc1 L_vok
        ds_read_b32 v4, v3
        s_waitcnt lgkmcnt(0)
        v_readfirstlane_b32 s64, v4
        s_cmp_lg_u32 s64, 4
        s_cbranch_scc1 L_vspin
        L_vok:""", C_UB + 4096, C_VT, C_S1, C_UB)
        stamp(3)
        a("""ds_read_b128 v[32:35], v10
        ds_read_b64_tr_b16 v[40:41], v11
        ds_read_b64_tr_b16 v[42:43], v11 offset:256
        ds_read_b128 v[36:39], v10 offset:32
        ds_read_b64_tr_b16 v[44:45], v11 offset:1024
        ds_read_b64_tr_b16 v[46:47], v11 offset:1280
        s_waitcnt lgkmcnt(3)
        v_mfma_f32_32x32x16_bf16 v[96:111], v[32:35], v[40:43], 0
        s_waitcnt lgkmcnt(0)
        v_mfma_f32_32x32x16_bf16 v[96:111], v[36:39], v[44:47], v[96:111]
        s_nop 11""")
        for i in range(16): a("ds_write_b32 v12, v%d offset:%d", 96 + i, (8 * (i // 4) + i % 4) * 128)
        for i in range(16): a("v_add_u32 v%d, %d, v%d", 64 + i, C_UB, 64 + i)
        a("s_waitcnt lgkmcnt(0)")
        for i in range(16): a("ds_read_b32 v%d, v%d", 80 + i, 64 + i)
        a("s_mov_b32 s64, -1\ns_mov_b32 s65, 0xffff\ns_branch L_pfin")
        a("L_pf0:")
        a("v_lshlrev_b32 v5, 4, v5\nv_mov_b32 v7, %d\nv_mov_b32 v8, 0\nds_write_b32 v7, v8", C_S0 + 2048)
        for i in range(16): a("v_mov_b32 v%d, 0\nv_add_u32 v%d, %d, v%d", 80 + i, 64 + i, C_S0, 64 + i)
        a("s_waitcnt lgkmcnt(0)")
        for i in range(16): a("ds_read_u16_d16_hi v%d, v%d", 80 + i, 64 + i)
        a("s_mov_b32 s64, -1\ns_mov_b32 s65, 0xfff")
        a("L_pfin:")
        a("s_waitcnt lgkmcnt(0)")
        for e in range(8): a("v_add_f32 v%d, v%d, v%d", 80 + 2 * e, 80 + 2 * e, 81 + 2 * e)
        for e in range(4): a("v_cvt_pk_bf16_f32 v%d, v%d, v%d", 96 + e, 80 + 4 * e, 82 + 4 * e)
        a("""s_mov_b64 exec, s[64:65]
        buffer_store_dwordx4 v[96:99], v5, %s, s63 offen sc1
        v_mov_b32 v4, 1
        s_mov_b32 s64, 128
        s_waitcnt vmcnt(0)
        s_mov_b64 exec, 1
        buffer_atomic_add v4, off, %s, s64
        s_mov_b64 exec, -1""", sq(S_WS), sq(S_DBG))
        stamp(4)
        a("L_noprod:")
    a("s_cmp_lg_u32 s66, 0\ns_cbranch_scc1 L_cjoin")
    if not cfg.HOSTF:
        a("""s_mov_b32 s64, 128
        s_mov_b32 s67, 0x20000
        L_fspin:
        s_sub_u32 s67, s67, 1
        s_cbranch_scc1 L_fok
        buffer_load_dword v4, off, %s, s64 sc1
        s_waitcnt vmcnt(0)
        v_readfirstlane_b32 s65, v4
        s_cmp_lt_u32 s65, 52
        s_cbranch_scc1 L_fspin
        L_fok:""", sq(S_DBG))
    stamp(5)
    a("v_lshlrev_b32 v1, 4, v0")
    for i in range(38):
        if i % 4 == 0: a("s_mov_b32 m0, %d\ns_mov_b32 s64, %d", C_F + 1024 * i, WS_F + 1024 * i)
        a("buffer_load_dwordx4 v1, %s, s64 offen offset:%d sc1 lds", sq(S_WS), 1024 * (i % 4))

    a("L_cjoin:")
    srd(a, S_W1, 12, 1384448)
    order = sch["order"]; fld = sch["fld"]
    a("""v_lshrrev_b32 v1, 5, v0
    v_bfe_u32 v2, v0, 2, 2
    v_lshl_add_u32 v2, v1, 2, v2
    v_lshlrev_b32 v2, 3, v2
    v_bfe_u32 v3, v0, 4, 1
    s_bfe_u32 s64, s26, 0x10001
    v_xor_b32 v3, s64, v3
    v_lshlrev_b32 v3, 5, v3
    v_and_b32 v12, 3, v0
    v_lshl_add_u32 v3, v12, 3, v3
    s_lshl_b32 s64, s26, 8
    v_add_u32 v3, s64, v3""")
    for T in range(7):
        by = [fld(h, order[4 * T + rr]) for h in range(2) for rr in range(4)]
        lo = sum(b << (8 * i) for i, b in enumerate(by[:4])); hi = sum(b << (8 * i) for i, b in enumerate(by[4:]))
        a("s_mov_b32 s64, 0x%x\ns_mov_b32 s65, 0x%x\nv_lshrrev_b64 v[12:13], v2, s[64:65]\nv_and_b32 v12, 0xff, v12\nv_mul_u32_u24 v12, %d, v12\nv_add_u32 v%d, v12, v3", lo, hi, XS, 4 + T)
    a("""v_and_b32 v12, 31, v0
    v_subrev_u32 v13, 16, v12
    v_cmp_gt_u32 vcc, 26, v12
    v_lshlrev_b32 v14, 4, v1
    v_add_u32 v14, %d, v14
    v_cndmask_b32 v12, v13, v12, vcc
    v_mul_u32_u24 v12, %d, v12
    v_add_u32 v11, v12, v14""", C_F, FS)
    a("""s_and_b32 s66, s26, 3
    s_lshr_b32 s67, s26, 2
    v_lshrrev_b32 v12, 4, v0
    v_bfe_u32 v13, v0, 2, 2
    v_lshl_add_u32 v14, v12, 3, v13
    v_lshlrev_b32 v14, 7, v14
    v_bfe_u32 v15, v0, 3, 1
    v_and_b32 v13, 1, v12
    v_lshl_add_u32 v15, v13, 1, v15
    v_xor_b32 v15, s66, v15
    v_lshl_add_u32 v14, v15, 5, v14
    v_and_b32 v15, 3, v0
    v_lshl_add_u32 v14, v15, 3, v14
    v_add_u32 v140, %d, v14
    v_and_b32 v13, 15, v0
    v_bfe_u32 v14, v0, 3, 1
    v_lshlrev_b32 v14, 1, v14
    v_xor_b32 v14, v14, v12
    v_lshlrev_b32 v14, 4, v14
    v_lshl_add_u32 v14, v13, 6, v14
    s_lshl_b32 s64, s67, 10
    v_add_u32 v141, s64, v14
    s_lshl_b32 s64, s66, 5
    s_add_u32 s64, s64, 1536
    v_lshl_add_u32 v14, v12, 3, s64
    global_load_dwordx2 v[252:253], v14, s[14:15]
    global_load_dwordx2 v[244:245], v14, s[16:17]
    global_load_short_d16_hi v246, v247, s[18:19]""".replace("global_load_short_d16_hi v246, v247", "v_mov_b32 v246, 0\nv_mov_b32 v247, 0\nglobal_load_short_d16_hi v246, v247"), C_W13)
    a("""v_lshrrev_b32 v12, 3, v0
    v_bfe_u32 v13, v0, 4, 1
    s_and_b32 s64, s26, 1
    s_lshl_b32 s64, s64, 1
    v_or_b32 v13, s64, v13
    v_bfe_u32 v14, v0, 1, 2
    v_xor_b32 v13, v13, v14
    v_lshlrev_b32 v13, 5, v13
    v_and_b32 v14, 1, v0
    v_lshl_add_u32 v13, v14, 4, v13
    v_mul_u32_u24 v12, 1664, v12
    s_mul_i32 s64, s66, 13312
    s_add_u32 s64, s64, 1536
    v_add3_u32 v142, v12, v13, s64
    s_mul_i32 s62, s67, 53248
    s_lshl_b32 s63, s26, 10
    s_add_u32 s63, s63, %d""", C_W13)
    a("""v_lshrrev_b32 v12, 4, v0
    v_and_b32 v13, 1, v12
    v_lshrrev_b32 v14, 1, v12
    v_lshl_add_u32 v12, v13, 1, v14
    s_lshl_b32 s64, s26, 2
    v_add_u32 v12, s64, v12
    v_and_b32 v13, 15, v0
    v_and_b32 v14, 15, v12
    v_lshl_add_u32 v14, v13, 4, v14
    s_lshl_b32 s64, s67, 8
    v_add_u32 v14, s64, v14
    v_lshlrev_b32 v14, 2, v14
    v_add_u32 v254, %d, v14
    s_lshl_b32 s64, s30, 5
    v_add_u32 v12, s64, v12
    v_lshlrev_b32 v14, 2, v12
    v_lshl_add_u32 v14, v13, 9, v14
    s_lshl_b32 s64, s29, 12
    s_add_u32 s64, s64, %d
    v_add_u32 v14, s64, v14
    v_mov_b32 v15, %d
    v_cmp_gt_u32 vcc, 8, v13
    s_lshl_b32 s64, s29, 8
    v_lshl_add_u32 v12, v12, 1, s64
    v_cndmask_b32 v143, v15, v14, vcc
    v_cmp_eq_u32 vcc, 0, v13
    s_lshl_b32 s61, s29, 2
    s_mov_b32 s60, 0
    v_cndmask_b32 v243, v15, v12, vcc""", C_MD, WS_BOX, OOB)
    srd(a, S_OUT, 20, 8192)
    a("s_waitcnt vmcnt(0)")
    a("""v_lshlrev_b32 v136, 16, v252
    v_and_b32 v137, 0xffff0000, v252
    v_lshlrev_b32 v138, 16, v253
    v_and_b32 v139, 0xffff0000, v253
    v_lshlrev_b32 v248, 16, v244
    v_and_b32 v249, 0xffff0000, v244
    v_lshlrev_b32 v250, 16, v245
    v_and_b32 v251, 0xffff0000, v245
    s_barrier""")
    stamp(6)
    XP, XFR, TMP, Z, FR, AC0, AC1, RR = 16, 32, 60, 68, 76, 100 + 8, 116 + 8, 132 + 8
    FR, AC0, AC1, RR = 76, 192, 208, 224
    slot_of = [0, 1, 2] * 5 + [0, 1, 2, 3] * 2
    def frag(g, tau): return FR + 8 * slot_of[g] + 4 * tau
    def rdF(g, tau):
        off = (1408 + 32 * tau) if g == 0 else (64 * (g - 1) + 32 * tau)
        return "ds_read_b128 %s, v11 offset:%d" % (vr(frag(g, tau), 4), off)
    def rdX(T): return "ds_read_b64_tr_b16 %s, v%d" % (vr(XP + 2 * T, 2), 4 + T)
    def dmaW13(chunk):
        for n in range(7):
            if n == 6: a("s_cmp_ge_u32 s26, 4\ns_cbranch_scc1 L_w13skip%d", chunk)
            a("s_add_u32 m0, s63, %d\ns_add_u32 s64, s62, %d\nbuffer_load_dwordx4 v142, %s, s64 offen lds", 8192 * n, (13 * chunk + 2 * n) * 53248, sq(S_W1))
        a("L_w13skip%d:", chunk)
    for T in range(7): a(rdX(T))
    for g in range(2):
        for tau in range(2): a(rdF(g, tau))
    dmaW13(0)
    a("buffer_load_dword v242, off, %s, s61 sc1", sq(S_DBG))
    pos = {f: i for i, f in enumerate(order[:27]) if f != 26}
    xf = {}
    k = 0
    for i in range(27):
        if order[i] != 26: xf[order[i]] = XFR + k; k += 1
    def unpack():
        o = []
        for i in range(27):
            f = order[i]
            if f == 26: continue
            o.append(("v_lshlrev_b32 v%d, 16, v%d" if i % 2 == 0 else "v_and_b32 v%d, 0xffff0000, v%d") % (xf[f], XP + i // 2))
        return o
    slots = sch["slots"]
    def zops(t):
        o = []
        for hf in range(2):
            for e in range(4 * hf, 4 * hf + 4):
                x, y = slots[8 * t + e]
                o.append("v_mul_f32 v%d, v%d, v%d" % (TMP + e, xf[x], xf[y]))
            for e2 in range(2 * hf, 2 * hf + 2):
                o.append("v_cvt_pk_bf16_f32 v%d, v%d, v%d" % (Z + 4 * (t % 2) + e2, TMP + 2 * e2, TMP + 2 * e2 + 1))
        return o
    def mfc(acc, fr, b, c): return "v_mfma_f32_32x32x16_bf16 %s, %s, %s, %s" % (vr(acc, 16), vr(fr, 4), vr(b, 4), c)
    a("s_waitcnt lgkmcnt(0)")
    for o in unpack(): a(o)
    a("L_cloop:")
    dq = []
    def ds(t, tag): a(t); dq.append(tag)
    def dwait(tag):
        if tag not in dq: return
        n = len(dq) - 1 - max(i for i, t in enumerate(dq) if t == tag)
        a("s_waitcnt lgkmcnt(%d)", min(n, 15))
    z0 = zops(0)
    a(mfc(AC1, frag(0, 0), XP, "0"))
    for o in z0[:6]: a(o)
    ds(rdF(2, 0), ("F", 2))
    a(mfc(AC1, frag(0, 1), XP + 4, vr(AC1, 16)))
    for o in z0[6:]: a(o)
    ds(rdF(2, 1), ("F", 2))
    a("s_nop 0")
    for t in range(22):
        g = t + 1
        gn = (g + 2) % 23
        dwait(("F", g))
        zn = zops(t + 1) if t < 21 else []
        a(mfc(AC0, frag(g, 0), Z + 4 * (t % 2), "0" if t == 0 else vr(AC0, 16)))
        for o in zn[:6]: a(o)
        ds(rdF(gn, 0), ("F", gn if gn > 2 else -gn - 1))
        if 2 <= t < 9: a("v_add_u32 v%d, 64, v%d", 4 + t - 2, 4 + t - 2)
        a(mfc(AC1, frag(g, 1), Z + 4 * (t % 2), vr(AC1, 16)))
        for o in zn[6:]: a(o)
        ds(rdF(gn, 1), ("F", gn if gn > 2 else -gn - 1))
        if 10 <= t < 17: ds(rdX(t - 10), "X")
        elif t < 21: pass
    a("s_waitcnt lgkmcnt(0)")
    for o in unpack(): a(o)
    a("v_mov_b32 v%d, v%d\nv_mov_b32 v%d, v%d\nv_mov_b32 v%d, v%d", RR, RR + 1, RR + 1, RR + 2, RR + 2, RR + 3)
    a("v_mul_f32 v%d, v%d, v%d\nv_mul_f32 v%d, v%d, v%d", TMP, AC0 + 12, AC1 + 12, TMP + 1, AC0, AC1)
    a("v_fmac_f32 v%d, v%d, v%d\nv_mul_f32 v%d, v%d, v%d", TMP, AC0 + 13, AC1 + 13, TMP + 2, AC0 + 1, AC1 + 1)
    a("s_mov_b32 vcc_lo, -1\ns_mov_b32 vcc_hi, 0")
    for i in range(2, 12): a("v_fmac_f32 v%d, v%d, v%d", TMP + 1 + i % 2, AC0 + i, AC1 + i)
    a("v_cndmask_b32 v%d, 0, v%d, vcc", TMP, TMP)
    a("v_add_f32 v%d, v%d, v%d", TMP + 1, TMP + 1, TMP + 2)
    a("v_add_f32 v%d, v%d, v%d", RR + 3, TMP, TMP + 1)
    a("s_add_u32 s60, s60, 1\ns_cmp_eq_u32 s60, 2\ns_cbranch_scc1 L_cloop\ns_cmp_eq_u32 s60, 4\ns_cbranch_scc1 L_cfin")
    def phase(chunk):
        for n in range(13):
            a("ds_read_b64_tr_b16 %s, v140 offset:%d", vr(144 + 8 * (n % 6), 2), 4096 * n)
            a("ds_read_b64_tr_b16 %s, v140 offset:%d", vr(146 + 8 * (n % 6), 2), 4096 * n + 512)
            a("ds_read_b128 %s, v141 offset:%d", vr(148 + 8 * (n % 6), 4), XS * (13 * chunk + n))
            if n >= 4:
                m = n - 4
                a("s_waitcnt lgkmcnt(12)")
                a("v_mfma_f32_16x16x32_bf16 v[136:139], %s, %s, v[136:139]", vr(144 + 8 * (m % 6), 4), vr(148 + 8 * (m % 6), 4))
        for m in range(9, 13):
            a("s_waitcnt lgkmcnt(%d)", 3 * (12 - m))
            a("v_mfma_f32_16x16x32_bf16 v[136:139], %s, %s, v[136:139]", vr(144 + 8 * (m % 6), 4), vr(148 + 8 * (m % 6), 4))
    a("s_waitcnt vmcnt(0)")
    a("s_cmp_eq_u32 s60, 3\ns_cbranch_scc1 L_phb")
    a("s_barrier")
    phase(0)
    a("s_barrier")
    dmaW13(1)
    stamp(7)
    a("s_branch L_cloop")
    a("L_phb:")
    a("""s_mov_b32 s65, 0x20000
    L_cspin:
    v_readfirstlane_b32 s64, v242
    s_cmp_ge_u32 s64, 16
    s_cbranch_scc1 L_cok
    s_sub_u32 s65, s65, 1
    s_cbranch_scc1 L_cok
    buffer_load_dword v242, off, %s, s61 sc1
    s_waitcnt vmcnt(0)
    s_branch L_cspin
    L_cok:
    s_barrier""", sq(S_DBG))
    phase(1)
    a("s_mov_b32 s64, 0x%x\ns_mov_b32 s65, 0x%x\nv_mov_b32 v144, 0x%x\nv_mov_b32 v145, 0x%x", f32bits(c2), f32bits(c2), f32bits(c1), f32bits(c1))
    a("s_lshl_b32 s66, s26, 8\ns_add_u32 s66, s66, %d\nv_lshl_add_u32 v152, v0, 2, s66\ns_nop 1", C_MD)
    for i in range(2): a("v_pk_mul_f32 %s, %s, %s", vr(146 + 2 * i, 2), vr(136 + 2 * i, 2), vr(136 + 2 * i, 2))
    for i in range(2): a("v_pk_fma_f32 %s, %s, s[64:65], v[144:145]", vr(146 + 2 * i, 2), vr(146 + 2 * i, 2))
    for i in range(2): a("v_pk_mul_f32 %s, %s, %s", vr(146 + 2 * i, 2), vr(146 + 2 * i, 2), vr(136 + 2 * i, 2))
    for i in range(4): a("v_exp_f32 v%d, v%d", 146 + i, 146 + i)
    for i in range(2): a("v_pk_mul_f32 %s, %s, %s", vr(136 + 2 * i, 2), vr(136 + 2 * i, 2), vr(248 + 2 * i, 2))
    for i in range(2): a("v_pk_add_f32 %s, %s, 1.0 op_sel_hi:[1,0]", vr(146 + 2 * i, 2), vr(146 + 2 * i, 2))
    for i in range(4): a("v_rcp_f32 v%d, v%d", 146 + i, 146 + i)
    a("""s_nop 0
    v_pk_mul_f32 v[136:137], v[136:137], v[146:147]
    v_pk_fma_f32 v[136:137], v[138:139], v[148:149], v[136:137]
    v_add_f32 v136, v136, v137
    ds_write_b32 v152, v136
    s_waitcnt lgkmcnt(0)""")
    stamp(8)
    a("s_branch L_cloop")
    a("L_cfin:")
    stamp(9)
    a("""buffer_load_dword v241, v143, %s, 0 offen sc1
    s_barrier
    ds_read_b32 v240, v254
    v_permlane32_swap_b32 v%d, v%d
    v_permlane32_swap_b32 v%d, v%d
    v_add_f32 v%d, v%d, v%d
    v_add_f32 v%d, v%d, v%d
    s_nop 1
    v_permlane16_swap_b32 v%d, v%d
    v_add_f32 v%d, v%d, v%d
    s_waitcnt lgkmcnt(0)
    v_add_f32 v%d, v%d, v240
    s_mov_b32 s65, 0x20000
    L_pspin:
    s_waitcnt vmcnt(0)
    v_cmp_eq_u32 vcc, -1, v241
    s_cbranch_vccz L_pok
    s_sub_u32 s65, s65, 1
    s_cbranch_scc1 L_pok
    buffer_load_dword v241, v143, %s, 0 offen sc1
    s_branch L_pspin
    L_pok:
    v_add_f32 v%d, v%d, v241""", sq(S_WS), RR, RR + 1, RR + 2, RR + 3, RR, RR, RR + 1, RR + 2, RR + 2, RR + 3, RR, RR + 2, RR, RR, RR + 2, RR, RR, sq(S_WS), RR, RR)
    for sh in (8, 4, 2, 1):
        a("s_nop 1\nv_add_f32_dpp v%d, v%d, v%d row_ror:%d row_mask:0xf bank_mask:0xf", RR, RR, RR, sh)
    a("""v_add_f32 v%d, v%d, v246
    v_cvt_pk_bf16_f32 v%d, v%d, v%d
    buffer_store_short v%d, v243, %s, 0 offen""", RR, RR, RR, RR, RR, RR, sq(S_OUT))
    stamp(10)
    if cfg.PROBE == "spin":
        a("s_waitcnt lgkmcnt(0)\nL_sp:\ns_memrealtime s[64:65]\ns_waitcnt lgkmcnt(0)\ns_sub_u32 s64, s64, s100\ns_cmp_lt_u32 s64, %d\ns_cbranch_scc1 L_sp", cfg.PN * 100)
    dump_stamps()
    a("L_end:\ns_endpgm")
    body = a.text()

    t0 = []; t1 = []
    Z0 = 2048; Z1 = 4096; C1 = 4100
    for c in range(48):
        r0 = []; r1 = []
        for e in range(8):
            if c < 44:
                pr = sch["pairs"][c & 1][8 * (c >> 1) + e]
                if pr is None: r0 += [Z0, Z0]; r1 += [Z1, Z1]
                else:
                    x, y = pr
                    r0 += [(x * 26 + y) * 2, (y * 26 + x) * 2 if x != y else Z0]
                    r1 += [x * 128 + y * 4, y * 128 + x * 4 if x != y else Z1]
            else:
                u = (c - 44) >> 1; h = (c - 44) & 1; p = 8 * u + e
                r0 += [Z0, Z0]
                if p < 13: r1 += [28 * 128 + fld(h, order[p]) * 4, Z1]
                elif p == 13 and h == 0: r1 += [C1, Z1]
                else: r1 += [Z1, Z1]
        t0.append(r0); t1.append(r1)
    tab = ".p2align 6\n.type L_table,@object\nL_table:\n" + "".join(".short " + ", ".join(map(str, r)) + "\n" for r in t0 + t1) + ".size L_table, 3072\nL_codeend:\n"
    hdr = open("standalone__deep_cross_xdeepfm__recsys.s.ref").read().split("; Override launch")[0]
    out = hdr + "; Generated by a script (own generator). Roles: workgroups with (id>>3)<16 run the MLP GEMM tile,\n; the others run the CIN quadratic forms and combine.\n"
    out += "; @launch grid=(256,1,1) block=(512,1,1) lds=163840\n"
    out += '.amdgcn_target "amdgcn-amd-amdhsa--gfx950"\n.text\n.globl %s\n.p2align 8\n.type %s,@function\n%s:\n' % (KN, KN, KN)
    out += body + tab
    out += """.section .rodata,"a"
.p2align 6
.amdhsa_kernel %s
  .amdhsa_next_free_vgpr 256
  .amdhsa_next_free_sgpr 102
  .amdhsa_accum_offset 256
  .amdhsa_group_segment_fixed_size 0
  .amdhsa_kernarg_size 88
  .amdhsa_user_sgpr_count 2
  .amdhsa_user_sgpr_kernarg_segment_ptr 1
  .amdhsa_system_sgpr_workgroup_id_x 1
  .amdhsa_float_denorm_mode_32 3
.end_amdhsa_kernel
""" % KN
    nb = lint(body)
    return out, nb

if __name__ == "__main__":
    cfg = Cfg()
    path = sys.argv[1]
    for kv in sys.argv[2:]:
        k, v = kv.split("=")
        old = getattr(cfg, k)
        setattr(cfg, k, v if isinstance(old, str) else (bool(int(v)) if isinstance(old, bool) else int(v)))
    out, nb = generate(cfg)
    open(path, "w").write(out)
    print("written", path, "hazards:", nb)
```

```python
import sys, math, struct
from scheme import build as build_scheme
from lint import lint

KN = "standalone__deep_cross_xdeepfm__recsys_kernel"
class Cfg:
    PRE = 0
    NI = 2
    CATCH = 2
    WPF_D = 3
    WPF_C = 0
    APF = 1
    WREST = 1
    GF0 = 8
    R = 7
    RHO = "0"
    STAMP = False
    HOSTF = False
    CODEPF = True
    PRIO = 0
    PROBE = "none"
    PN = 64
def f32bits(x): return struct.unpack("<I", struct.pack("<f", x))[0]

class A:
    def __init__(s): s.L = []
    def __call__(s, t, *a):
        if a: t = t % a
        for l in t.split("\n"):
            l = l.strip()
            if l: s.L.append(l if l.endswith(":") else "    " + l)
    def text(s): return "\n".join(s.L) + "\n"
def vr(a, n): return "v[%d:%d]" % (a, a + n - 1)

SLOT = 20480
D_IDX = 7 * SLOT
D_BW = D_IDX + 13312
XS = 2112
C_X = 0
C_VT = 26 * XS
C_IDX = 24 * XS
C_ST = 27 * XS
C_W0 = C_ST; C_W1 = C_ST + 35152; C_W2 = C_ST + 70304
C_U = C_W2 + 4; C_L = C_U + 35152
C_F = C_ST
FS = 1488
C_W13 = C_F + 26 * FS
C_MD = C_W13 + 13 * 4096
assert C_L + 1352 <= 163840 and C_ST + 104 * 1024 <= 163840 and C_MD + 2048 <= 163840 and D_BW + 3072 <= 163840
WS_F = 0; WS_BOX = 65536; WS_ST = 262144
OOB = 0x7ff00000

def srd(a, s, ptr, n):
    a("s_mov_b32 s%d, s%d\ns_mov_b32 s%d, s%d\ns_mov_b32 s%d, %d\ns_mov_b32 s%d, 0x20000", s, ptr, s + 1, ptr + 1, s + 2, n, s + 3)
S_IDX, S_TAB, S_W1, S_WS, S_WC, S_DBG, S_OUT, S_M = 32, 36, 40, 44, 48, 52, 56, 96
def sq(s): return "s[%d:%d]" % (s, s + 3)

def generate(cfg):
    sch = build_scheme()
    a = A()
    nst = [0]
    def stamp(k):
        if cfg.STAMP: a("s_memtime s[%d:%d]", 72 + 2 * k, 73 + 2 * k)
    def dump_stamps():
        if not cfg.STAMP: return
        a("s_waitcnt vmcnt(0) lgkmcnt(0)")
        for k in range(12): a("v_mov_b32 v%d, s%d", 224 + k, 72 + 2 * k)
        a("v_mov_b32 v236, s70\nv_mov_b32 v237, s2\nv_mov_b32 v238, s26\nv_mov_b32 v239, 0")
        a("s_lshl_b32 s64, s2, 3\ns_add_u32 s64, s64, s26\ns_lshl_b32 s64, s64, 6\ns_add_u32 s64, s64, %d", WS_ST)
        a("v_mov_b32 v240, s64\ns_mov_b64 exec, 1")
        srd(a, S_WS, 24, 0x100000)
        for k in range(4): a("buffer_store_dwordx4 v[%d:%d], v240, %s, 0 offen offset:%d", 224 + 4 * k, 227 + 4 * k, sq(S_WS), 16 * k)
    WSN = 0x100000 if cfg.STAMP else WS_BOX + 131072

    a("s_cmp_ge_u32 s2, 256\ns_cbranch_scc1 L_end")
    if cfg.STAMP:
        for k in range(12): a("s_mov_b32 s%d, 0", 72 + 2 * k)
        a("s_memrealtime s[70:71]")
    stamp(0)
    a("""s_load_dwordx16 s[4:19], s[0:1], 0
    s_load_dwordx4 s[20:23], s[0:1], 64
    s_load_dwordx2 s[24:25], s[0:1], 80
    v_lshrrev_b32 v1, 6, v0
    v_and_b32 v0, 63, v0
    s_and_b32 s27, s2, 7
    v_readfirstlane_b32 s26, v1
    s_lshr_b32 s28, s2, 3
    s_and_b32 s30, s28, 3
    s_bfe_u32 s29, s28, 0x20002
    s_lshl_b32 s64, s27, 2
    s_add_u32 s29, s29, s64""")
    if cfg.PROBE == "spin":
        a("s_memrealtime s[100:101]")
    elif cfg.PROBE.startswith("bw"):
        base = int(cfg.PROBE[2:]) << 20
        a("s_waitcnt lgkmcnt(0)")
        srd(a, S_M, 24, 1 << 28)
        a("s_lshl_b32 s64, s2, 3\ns_add_u32 s64, s64, s26\ns_lshl_b32 s64, s64, 14\ns_add_u32 s64, s64, %d\nv_lshlrev_b32 v2, 4, v0\ns_mov_b32 m0, 0\ns_mov_b32 s65, 16", base)
        a("L_probe:\nbuffer_load_dwordx4 v2, %s, s64 offen lds\ns_add_u32 s64, s64, 1024\ns_sub_u32 s65, s65, 1\ns_cmp_lg_u32 s65, 0\ns_cbranch_scc1 L_probe\ns_waitcnt vmcnt(0)\ns_barrier", sq(S_M))
    elif cfg.PROBE != "none":
        ptr, stride, lim = {"table": (6, 128, 6400000), "ws": (24, 128, 1 << 27), "wsfar": (24, 4096, 1 << 28), "w1": (12, 128, 1384448), "idx": (4, 128, 425984)}[cfg.PROBE]
        a("s_waitcnt lgkmcnt(0)")
        srd(a, S_M, ptr, lim)
        a("s_mul_i32 s64, s2, %d\nv_mov_b32 v2, s64\ns_mov_b32 s65, %d\ns_cmp_lg_u32 s26, 0\ns_cbranch_scc1 L_probe_e", stride * cfg.PN, cfg.PN)
        if cfg.PROBE.startswith("ws"): a("v_add_u32 v2, 0x400000, v2")
        a("L_probe:\nbuffer_load_dword v3, v2, %s, 0 offen\ns_waitcnt vmcnt(0)\nv_and_b32 v3, 0, v3\nv_add3_u32 v2, v2, v3, %s\ns_sub_u32 s65, s65, 1\ns_cmp_lg_u32 s65, 0\ns_cbranch_scc1 L_probe\nL_probe_e:\ns_barrier" , sq(S_M), "64, v2\nv_add_u32 v2, 64" if False else "0")
        a.L = [l.replace("v_add3_u32 v2, v2, v3, 0", "v_add_u32 v2, v2, v3\n    v_add_u32 v2, %d, v2" % stride) for l in a.L]
    if cfg.CODEPF:
        a("""s_cmp_lg_u32 s26, 7
        s_cbranch_scc1 L_nopf
        s_getpc_b64 s[64:65]
        L_pfbase:
        s_lshl_b32 s66, s28, 10
        v_and_b32 v2, 7, v0
        v_lshl_add_u32 v2, v2, 7, s66
        v_min_u32 v2, L_codeend-L_pfbase-4, v2
        v_and_b32 v2, -4, v2
        global_load_dword v255, v2, s[64:65]
        L_nopf:""")
    a("s_cmp_ge_u32 s28, 16\ns_cbranch_scc1 L_cin")
    a("s_cmp_ge_u32 s26, 4\ns_cbranch_scc1 L_loader")

    ACC = lambda tt, rt: 128 + 16 * (2 * tt + rt)
    W2R = 64
    XF = lambda st, rt: (16 if st == 0 else 36) + 4 * rt
    WF = lambda st, tt: (24 if st == 0 else 44) + 4 * tt
    a("""s_and_b32 s66, s26, 1
    s_lshr_b32 s67, s26, 1
    v_and_b32 v1, 31, v0
    v_lshrrev_b32 v2, 5, v0
    v_bfe_u32 v3, v0, 2, 2
    v_xor_b32 v8, v2, v3
    v_lshlrev_b32 v8, 4, v8
    v_lshl_add_u32 v4, v1, 6, v8
    s_lshl_b32 s64, s66, 12
    v_add_u32 v4, s64, v4
    v_xor_b32 v5, 32, v4""")
    a("""v_lshl_add_u32 v8, v2, 3, v3
    v_mul_u32_u24 v8, 384, v8
    v_bfe_u32 v9, v0, 4, 1
    v_lshl_add_u32 v8, v9, 5, v8
    v_and_b32 v9, 3, v0
    v_lshl_add_u32 v8, v9, 3, v8
    s_mul_i32 s64, s67, 192
    s_add_u32 s64, s64, 8192
    v_add_u32 v8, s64, v8
    v_bfe_u32 v9, v0, 3, 1
    v_lshlrev_b32 v9, 6, v9
    v_add_u32 v10, v8, v9
    v_sub_u32 v11, v8, v9
    s_cmp_eq_u32 s67, 0
    s_cselect_b64 vcc, -1, 0
    v_cndmask_b32 v6, v11, v10, vcc
    v_cndmask_b32 v7, v10, v11, vcc""")
    a("""s_mul_i32 s64, s30, 384
    s_mul_i32 s65, s67, 192
    s_add_u32 s64, s64, s65
    v_lshl_add_u32 v8, v0, 3, s64
    s_mul_i32 s65, s26, 768
    s_add_u32 s65, s65, %d
    v_lshl_add_u32 v9, v0, 4, s65
    v_lshl_add_u32 v10, v2, 4, s65
    s_waitcnt lgkmcnt(0)
    s_mov_b64 exec, 0xffffff
    global_load_dwordx2 v[12:13], v8, s[14:15]
    global_load_dwordx2 v[14:15], v8, s[16:17]""", D_BW)
    stamp(1)
    srd(a, S_WS, 24, WSN); srd(a, S_DBG, 22, 256)
    a("""s_mov_b64 exec, -1
    s_lshl_b32 s64, s29, 12
    s_lshl_b32 s65, s30, 10
    s_add_u32 s64, s64, s65
    s_lshl_b32 s65, s67, 9
    s_add_u32 s64, s64, s65
    s_lshl_b32 s65, s66, 8
    s_add_u32 s64, s64, s65
    s_add_u32 s64, s64, %d
    v_lshl_add_u32 v60, v0, 2, s64
    v_mov_b32 v61, -1
    v_mov_b32 v62, 1
    buffer_store_dword v61, v60, %s, 0 offen sc1
    s_lshl_b32 s64, s29, 2
    s_waitcnt vmcnt(0)
    s_mov_b64 exec, 1
    buffer_atomic_add v62, off, %s, s64
    s_mov_b64 exec, 0xffffff""", WS_BOX, sq(S_WS), sq(S_DBG))
    a("""v_lshlrev_b32 v16, 16, v12
    v_and_b32 v17, 0xffff0000, v12
    v_lshlrev_b32 v18, 16, v13
    v_and_b32 v19, 0xffff0000, v13
    v_lshlrev_b32 v20, 16, v14
    v_and_b32 v21, 0xffff0000, v14
    v_lshlrev_b32 v22, 16, v15
    v_and_b32 v23, 0xffff0000, v15
    ds_write_b128 v9, v[16:19]
    ds_write_b128 v9, v[20:23] offset:384
    s_mov_b64 exec, -1
    s_waitcnt lgkmcnt(0)""")
    for tt in range(3):
        for q in range(4):
            for rt in range(2):
                a("ds_read_b128 %s, v10 offset:%d", vr(ACC(tt, rt) + 4 * q, 4), 128 * tt + 32 * q)
            a("ds_read_b128 %s, v10 offset:%d", vr(W2R + 16 * tt + 4 * q, 4), 384 + 128 * tt + 32 * q)
    a("""    s_mov_b32 s66, 0
    s_mov_b32 s67, 26
    s_mov_b32 s68, %d
    s_mov_b32 s69, %d
    s_waitcnt lgkmcnt(0)""", -(cfg.R - 1) * SLOT, SLOT)
    def rd_x(st, j, rt): return "ds_read_b128 %s, v%d offset:%d" % (vr(XF(st, rt), 4), 4 + j, 2048 * rt)
    def rd_w(st, j, tt, u): return "ds_read_b64_tr_b16 %s, v%d offset:%d" % (vr(WF(st, tt) + 2 * u, 2), 7 if tt == 1 else 6, 64 * tt + (16 * j + 4 * u) * 384)
    def reads(st, j): return [rd_x(st, j, 0), rd_w(st, j, 0, 0), rd_w(st, j, 0, 1), rd_x(st, j, 1), rd_w(st, j, 1, 0), rd_w(st, j, 1, 1), rd_w(st, j, 2, 0), rd_w(st, j, 2, 1)]
    def mf(st, tt, rt): return "v_mfma_f32_32x32x16_bf16 %s, %s, %s, %s" % (vr(ACC(tt, rt), 16), vr(WF(st, tt), 4), vr(XF(st, rt), 4), vr(ACC(tt, rt), 16))
    a("s_barrier")
    stamp(2)
    for r in reads(0, 0): a(r)
    a("L_dloop:")
    a("s_waitcnt lgkmcnt(0)")
    r = reads(1, 1)
    a(mf(0, 0, 0)); a(r[0]); a(r[1]); a(r[2])
    a(mf(0, 0, 1)); a(r[3]); a(r[4]); a(r[5])
    a(mf(0, 1, 0)); a(r[6]); a(r[7])
    a("s_add_u32 s66, s66, 1\ns_cmp_eq_u32 s66, %d\ns_cselect_b32 s64, s68, s69\ns_cselect_b32 s66, 0, s66", cfg.R)
    a(mf(0, 1, 1)); a("v_add_u32 v4, s64, v4\nv_add_u32 v5, s64, v5")
    a(mf(0, 2, 0)); a("v_add_u32 v6, s64, v6\nv_add_u32 v7, s64, v7")
    a(mf(0, 2, 1))
    a("s_waitcnt lgkmcnt(0)\ns_barrier")
    r = reads(0, 0)
    a(mf(1, 0, 0)); a(r[0]); a(r[1]); a(r[2])
    a(mf(1, 0, 1)); a(r[3]); a(r[4]); a(r[5])
    a(mf(1, 1, 0)); a(r[6]); a(r[7])
    a(mf(1, 1, 1)); a("s_sub_u32 s67, s67, 1")
    a(mf(1, 2, 0)); a("s_cmp_lg_u32 s67, 0")
    a(mf(1, 2, 1))
    a("s_cbranch_scc1 L_dloop")
    stamp(3)
    c1 = -2.0 * math.log2(math.e) * math.sqrt(2.0 / math.pi); c2 = c1 * 0.044715
    a("s_mov_b32 s64, 0x%x\ns_mov_b32 s65, 0x%x\nv_mov_b32 v8, 0x%x\nv_mov_b32 v9, 0x%x", f32bits(c2), f32bits(c2), f32bits(c1), f32bits(c1))
    a("v_mov_b32 v56, 0\nv_mov_b32 v57, 0\nv_mov_b32 v58, 0\nv_mov_b32 v59, 0")
    def gelu(acc, w2, npairs, T, SUM, first_pad=0):
        P = range(npairs)
        x = lambda i: vr(acc + 2 * i, 2); t = lambda i: vr(T + 2 * i, 2)
        for i in P: a("v_pk_mul_f32 %s, %s, %s", t(i), x(i), x(i))
        for i in P: a("v_pk_fma_f32 %s, %s, s[64:65], v[8:9]", t(i), t(i))
        for i in P: a("v_pk_mul_f32 %s, %s, %s", t(i), t(i), x(i))
        for i in range(2 * npairs): a("v_exp_f32 v%d, v%d", T + i, T + i)
        for i in P: a("v_pk_mul_f32 %s, %s, %s", x(i), x(i), vr(w2 + 2 * i, 2))
        for i in P: a("v_pk_add_f32 %s, %s, 1.0 op_sel_hi:[1,0]", t(i), t(i))
        for i in range(2 * npairs): a("v_rcp_f32 v%d, v%d", T + i, T + i)
    def gelu_fin(acc, npairs, T, SUM):
        for i in range(npairs): a("v_pk_fma_f32 %s, %s, %s, %s", vr(SUM, 2), vr(acc + 2 * i, 2), vr(T + 2 * i, 2), vr(SUM, 2))
    pend = None
    k = 0
    for tt in range(3):
        for rt in range(2):
            for hf in range(2):
                T = 112 + 8 * (k % 2); k += 1
                gelu(ACC(tt, rt) + 8 * hf, W2R + 16 * tt + 8 * hf, 4, T, 56 + 2 * rt)
                if pend: gelu_fin(*pend)
                pend = (ACC(tt, rt) + 8 * hf, 4, T, 56 + 2 * rt)
    a("s_nop 0"); gelu_fin(*pend)
    a("""v_add_f32 v56, v56, v57
    v_add_f32 v58, v58, v59
    s_nop 1
    v_permlane32_swap_b32 v56, v58
    v_add_f32 v56, v56, v58
    buffer_store_dword v56, v60, %s, 0 offen sc1""", sq(S_WS))
    stamp(4)
    dump_stamps()
    a("s_endpgm")

    a("L_loader:")
    q = []
    def vm(tag): q.append(tag)
    def wait_for(pred):
        last = max(i for i, t in enumerate(q) if pred(t))
        n = len(q) - 1 - last
        assert n < 64
        a("s_waitcnt vmcnt(%d)", n)
    a("""s_sub_u32 s66, s26, 4
    s_lshl_b32 s64, s29, 2
    s_add_u32 s64, s64, s66
    s_mul_i32 s64, s64, 3328
    s_mul_i32 s67, s66, 3328
    s_add_u32 s67, s67, %d
    s_mov_b32 m0, s67
    v_lshlrev_b32 v1, 4, v0
    s_waitcnt lgkmcnt(0)""", D_IDX)
    srd(a, S_IDX, 4, 425984)
    if cfg.CODEPF: vm("pf")
    for i in range(4):
        if i == 3: a("s_mov_b64 exec, 0xffff")
        a("buffer_load_dwordx4 v1, %s, s64 offen offset:%d lds", sq(S_IDX), 1024 * i); vm("idx")
    a("s_mov_b64 exec, -1")
    srd(a, S_W1, 12, 1384448)
    NE = 16 * (cfg.WPF_D + cfg.WPF_C)
    if cfg.WPF_D:
        a("v_lshlrev_b32 v34, 7, v0\ns_lshl_b32 s64, s66, %d\ns_add_u32 s64, s64, s28\ns_lshl_b32 s64, s64, 13\ns_cmp_lt_u32 s66, %d\ns_cselect_b32 s64, s64, %d", 5 if cfg.WPF_C else 4, cfg.WPF_D, OOB)
        a("buffer_load_dword v35, v34, %s, s64 offen", sq(S_W1)); vm("wpf")
    stamp(1)
    srd(a, S_TAB, 6, 6400000)
    for ii in range(3):
        a("""s_mul_i32 s64, s66, 192
        s_add_u32 s64, s64, %d
        v_add_u32 v2, s64, v0
        v_mul_u32_u24 v3, 2731, v2
        v_lshrrev_b32 v3, 16, v3
        v_mul_u32_u24 v4, 24, v3
        v_sub_u32 v4, v2, v4
        v_bfe_u32 v5, v3, 1, 1
        v_lshlrev_b32 v5, 2, v5
        v_xor_b32 v4, v4, v5
        v_lshlrev_b32 v4, 4, v4
        v_mul_u32_u24 v3, 1664, v3
        s_mul_i32 s64, s30, 384
        v_add3_u32 v%d, v3, v4, s64""", 64 * ii, 10 + ii)
    if cfg.RHO == "0": a("s_mov_b32 s68, 0")
    elif cfg.RHO == "rt": a("s_and_b32 s68, s29, 3\ns_mul_i32 s68, s68, 13\ns_lshr_b32 s68, s68, 1")
    elif cfg.RHO == "cg": a("s_mul_i32 s68, s30, 13\ns_lshr_b32 s68, s68, 1")
    else: a("s_mov_b32 s68, %d", int(cfg.RHO))
    a("""s_mul_i32 s69, s68, 53248
    s_lshl_b32 s68, s68, 2
    s_mul_i32 s62, s66, 3072
    s_add_u32 s62, s62, 8192
    s_lshl_b32 s63, s66, 11""")
    def ldB(s):
        for ii in range(3):
            a("s_add_u32 m0, s62, %d", (s % cfg.R) * SLOT + 1024 * ii)
            a("s_nop 0")
            a("buffer_load_dwordx4 v%d, %s, s69 offen lds", 10 + ii, sq(S_W1)); vm(("st", s))
        a("s_add_u32 s69, s69, 53248\ns_cmp_eq_u32 s69, %d\ns_cselect_b32 s69, 0, s69", 26 * 53248)
    def rdI(reg):
        a("v_add_u32 v15, s68, v14\nds_read_b32 v%d, v15\nds_read_b32 v%d, v15 offset:1664", reg, reg + 1)
        a("s_add_u32 s68, s68, 4\ns_cmp_eq_u32 s68, 104\ns_cselect_b32 s68, 0, s68")
    def ldA(s, reg):
        for ii in range(2):
            a("s_add_u32 m0, s63, %d", (s % cfg.R) * SLOT + 1024 * ii)
            a("v_lshl_add_u32 v%d, v%d, 6, v13", reg + ii, reg + ii)
            a("buffer_load_dwordx4 v%d, %s, 0 offen lds", reg + ii, sq(S_TAB)); vm(("st", s))
    for s in range(cfg.PRE): ldB(s)
    a("""v_lshrrev_b32 v2, 2, v0
    v_mul_u32_u24 v2, 104, v2
    v_add_u32 v14, s67, v2
    v_and_b32 v2, 3, v0
    v_lshrrev_b32 v3, 4, v0
    v_xor_b32 v2, v2, v3
    v_lshlrev_b32 v13, 4, v2""")
    if cfg.APF:
        a("v_and_b32 v2, 7, v0\ns_lshl_b32 s64, s30, 3\nv_add_u32 v2, s64, v2\nv_mul_u32_u24 v2, 104, v2\nv_lshrrev_b32 v3, 3, v0\nv_lshl_add_u32 v2, v3, 2, v2\nv_add_u32 v36, s67, v2")
    wait_for(lambda t: t == "idx")
    stamp(2)
    if cfg.APF:
        a("ds_read_b32 v36, v36")
    for s in range(cfg.NI): rdI(16 + 2 * s)
    if cfg.APF:
        a("s_waitcnt lgkmcnt(%d)\nv_lshlrev_b32 v36, 6, v36\nbuffer_load_dword v37, v36, %s, 0 offen", 2 * cfg.NI, sq(S_TAB)); vm("apf")
    for s in range(cfg.NI):
        a("s_waitcnt lgkmcnt(%d)", 2 * (cfg.NI - 1 - s))
        ldA(s, 16 + 2 * s)
        if s >= cfg.PRE: ldB(s)
    nxt = cfg.NI
    nrd = cfg.NI
    ireg = lambda n: 16 + 2 * (n % 4)
    def read_ahead(upto):
        nonlocal nrd
        while nrd <= min(upto, 25): rdI(ireg(nrd)); nrd += 1
    assert cfg.NI <= 4
    a("s_nop 0")
    read_ahead(nxt + cfg.CATCH - 1)
    stamp(3)
    wait_for(lambda t: t == ("st", 0))
    a("s_barrier")
    stamp(4)
    def issue(limit):
        nonlocal nxt
        todo = [n for n in range(nxt, min(nxt + cfg.CATCH, 26)) if n <= limit]
        if not todo: return
        a("s_waitcnt lgkmcnt(0)")
        for n in todo:
            ldA(n, ireg(n)); ldB(n)
        nxt = todo[-1] + 1
        read_ahead(nxt + cfg.CATCH - 1)
    issue(cfg.R - 1)
    marks = {2: 5, 5: 6, 9: 7, 14: 8, 19: 9}
    for s in range(26):
        if s + 1 <= 25: wait_for(lambda t: t == ("st", s + 1))
        a("s_barrier")
        if s in marks: stamp(marks[s])
        issue(s + cfg.R)
    assert nxt == 26
    stamp(10)
    dump_stamps()
    a("s_endpgm")

    a("L_cin:")
    order = sch["order"]; fld = sch["fld"]
    a("""v_lshlrev_b32 v1, 2, v0
    s_lshl_b32 s64, s26, 8
    v_add_u32 v1, s64, v1
    v_mov_b32 v3, 0
    ds_write_b32 v1, v3 offset:%d
    s_sub_u32 s31, s28, 16
    v_lshlrev_b32 v2, 4, v0
    s_lshl_b32 s64, s29, 3
    s_lshl_b32 s65, s30, 1
    s_add_u32 s64, s64, s65
    s_add_u32 s64, s64, s26
    s_mul_i32 s64, s64, 1664
    s_mul_i32 s65, s26, %d
    s_add_u32 m0, s65, %d
    s_cmp_ge_u32 s26, 2
    s_waitcnt lgkmcnt(0)
    s_cbranch_scc1 L_c1""", C_VT, XS, C_IDX)
    srd(a, S_IDX, 4, 425984)
    a("""buffer_load_dwordx4 v2, %s, s64 offen lds
    buffer_load_dwordx4 v2, %s, s64 offen offset:1024 lds
    L_c1:""", sq(S_IDX), sq(S_IDX))
    srd(a, S_WC, 8, 105456)
    a("""s_cmp_lg_u32 s26, 2
    s_cbranch_scc1 L_c2
    s_lshl_b32 s64, s31, 13
    v_lshlrev_b32 v4, 7, v0
    buffer_load_dword v255, v4, %s, s64 offen
    L_c2:""", sq(S_WC))
    srd(a, S_M, 10, 156)
    a("""v_lshrrev_b32 v5, 4, v0
    v_lshlrev_b32 v4, 4, v5
    buffer_load_dwordx4 v[16:19], v4, %s, 0 offen offset:104""", sq(S_M))
    for n in range(13):
        lo, hi = 8 * n, 8 * n + 7
        f = lambda o: 68 + o if o < 36 else (o - 2 if o < 70 else o - 70)
        if f(hi) - f(lo) == 7: a("s_add_u32 s64, s26, %d", f(lo))
        else:
            cut = (36 if hi < 70 else 70) - lo
            a("s_cmp_lt_u32 s26, %d\ns_cselect_b32 s64, %d, %d\ns_add_u32 s64, s64, s26", cut, f(lo), f(hi) - 7) if max(f(lo), abs(f(hi) - 7)) <= 64 else \
            a("s_mov_b32 s65, %d\ns_cmp_lt_u32 s26, %d\ns_cselect_b32 s64, s65, %d\ns_add_u32 s64, s64, s26", f(lo), cut, f(hi) - 7)
        a("s_lshl_b32 s64, s64, 10\ns_add_u32 m0, s64, %d\ns_nop 0\nbuffer_load_dwordx4 v2, %s, s64 offen lds", C_ST, sq(S_WC))
    stamp(1)
    a("""v_lshlrev_b32 v6, 2, v0
    v_and_b32 v7, 15, v0
    v_bfe_u32 v8, v0, 5, 1
    v_lshl_add_u32 v8, v8, 4, v7
    v_min_u32 v8, 25, v8
    v_lshlrev_b32 v9, 1, v8
    v_mov_b32 v21, 0
    buffer_load_dword v20, v6, %s, 0 offen offset:52
    buffer_load_short_d16_hi v21, v9, %s, 0 offen""", sq(S_M), sq(S_M))
    srd(a, S_TAB, 6, 6400000); srd(a, S_W1, 12, 1384448); srd(a, S_WS, 24, WSN); srd(a, S_DBG, 22, 256); srd(a, S_OUT, 20, 8192)
    a("""v_bfe_u32 v3, v0, 2, 2
    v_lshl_add_u32 v4, v5, 3, v3
    v_add_u32 v12, 4, v4
    v_min_u32 v4, 25, v4
    v_min_u32 v12, 25, v12
    v_mul_u32_u24 v4, 1352, v4
    v_mul_u32_u24 v12, 1352, v12
    v_and_b32 v13, 3, v0
    v_lshlrev_b32 v13, 3, v13
    s_mul_i32 s66, s26, 96
    s_min_u32 s66, s66, 580
    s_lshl_b32 s64, s66, 1
    s_add_u32 s64, s64, %d
    v_add3_u32 v10, v4, v13, s64
    v_add3_u32 v11, v12, v13, s64
    v_add_u32 v6, s66, v7""", C_W2)
    for m in range(6):
        a("""v_add_u32 v4, %d, v6
        v_mul_u32_u24 v12, 2521, v4
        v_lshrrev_b32 v12, 16, v12
        v_mul_u32_u24 v14, 26, v12
        v_sub_u32 v14, v4, v14
        v_lshlrev_b32 v14, 6, v14
        v_lshl_add_u32 v%d, v12, 1, v14""", 16 * m, 32 + m)
    a("""v_lshrrev_b32 v1, 5, v0
    v_lshl_add_u32 v4, v1, 3, v3
    v_bfe_u32 v12, v0, 4, 1
    v_lshl_add_u32 v12, v12, 5, v13
    s_mul_i32 s64, s26, 104
    s_add_u32 s64, s64, %d
    v_add_u32 v12, s64, v12""", C_W1)
    for k in range(4):
        a("v_add_u32 v14, %d, v4\nv_min_u32 v14, 25, v14\nv_mul_u32_u24 v14, 1352, v14\nv_add_u32 v%d, v14, v12", 16 * (k >> 1) + 4 * (k & 1), 40 + k)
    a("""v_and_b32 v4, 31, v0
    v_lshlrev_b32 v44, 6, v4
    v_lshl_add_u32 v44, v1, 4, v44
    v_mul_u32_u24 v12, 52, v4
    v_add_u32 v12, %d, v12
    v_mov_b32 v14, %d
    v_cmp_gt_u32 vcc, 26, v4
    v_mov_b32 v15, 104
    v_mov_b32 v22, 2704
    v_cndmask_b32 v12, v14, v12, vcc
    v_cndmask_b32 v14, v15, v22, vcc
    v_lshl_add_u32 v12, v1, 3, v12
    s_add_u32 s67, s26, 8
    s_min_u32 s67, s67, 12
    v_mad_u32_u24 v46, v14, s26, v12
    v_mad_u32_u24 v48, v14, s67, v12
    v_lshrrev_b32 v14, 1, v14
    v_add3_u32 v47, v46, v14, -4
    v_add3_u32 v49, v48, v14, -4
    s_sub_u32 s67, s67, s26
    s_mul_i32 s67, s67, 104""", C_U, C_L)
    a("""v_bfe_u32 v4, v0, 4, 1
    v_mul_u32_u24 v50, 1352, v8
    v_mul_u32_u24 v12, %d, v4
    v_add3_u32 v50, v50, v12, %s
    v_mul_u32_u24 v51, 52, v8
    v_add_u32 v51, %d, v51
    v_mul_u32_u24 v52, %d, v8
    v_lshl_add_u32 v52, v4, 5, v52
    v_add_u32 v52, %d, v52""".replace("v_add3_u32 v50, v50, v12, %s", "v_add_u32 v50, v50, v12\nv_add_u32 v50, %d, v50"), C_U - C_W0, C_W0, C_L, FS, C_F)
    a("""v_lshrrev_b32 v12, 2, v0
    v_mul_u32_u24 v12, 104, v12
    v_and_b32 v14, 3, v0
    v_lshlrev_b32 v4, 1, v4
    v_xor_b32 v14, v14, v4
    v_lshlrev_b32 v53, 4, v14""")
    for n in range(4):
        a("s_add_u32 s64, s26, %d\ns_cmp_ge_u32 s64, 26\ns_cselect_b32 s65, 26, 0\ns_sub_u32 s64, s64, s65", (cfg.GF0 + 8 * n) % 26)
        a("s_mul_i32 s%d, s64, %d\ns_lshl_b32 s64, s64, 2\nv_add_u32 v%d, s64, v12", 56 + 0 if False else 100 - 0 if False else (60 + n), XS, 24 + n)
    for i in range(32): a("v_mov_b32 v%d, 0", 64 + i)
    a("s_waitcnt vmcnt(10) lgkmcnt(0)\ns_barrier")
    stamp(2)
    for m in range(6):
        a("ds_read_b64_tr_b16 %s, v10 offset:%d", vr(96 + 4 * m, 2), 32 * m)
        a("ds_read_b64_tr_b16 %s, v11 offset:%d", vr(98 + 4 * m, 2), 32 * m)
    for m in range(6):
        a("s_waitcnt lgkmcnt(%d)", 2 * (5 - m))
        a("v_mfma_f32_16x16x32_bf16 %s, v[16:19], %s, 0", vr(120 + 4 * m, 4), vr(96 + 4 * m, 4))
    for n in range(4):
        a("ds_read_b32 v%d, v%d offset:%d\nds_read_b32 v%d, v%d offset:%d", 56 + n, 24 + n, C_IDX, 60 + n, 24 + n, C_IDX + XS)
    for m in range(6):
        a("v_cvt_pk_bf16_f32 v%d, v%d, v%d", 96 + m, 120 + 4 * m, 120 + 4 * m)
        a("ds_write_b16 v%d, v%d offset:%d", 32 + m, 96 + m, C_VT)
    a("""v_lshlrev_b32 v6, 2, v0
    s_waitcnt vmcnt(0)
    s_mov_b64 exec, 0x1fff
    ds_write_b32 v6, v20 offset:%d
    s_mov_b64 exec, -1
    s_waitcnt lgkmcnt(0)
    s_barrier""", C_VT + 26 * 64)
    stamp(3)
    def gather(n, sh):
        r = (56 if sh == 0 else 60) + n
        return "s_add_u32 m0, s%d, %d\nv_lshl_add_u32 v%d, v%d, 6, v53\nbuffer_load_dwordx4 v%d, %s, 0 offen lds" % (60 + n, C_X + 1024 * sh, r, r, r, sq(S_TAB))
    a("ds_read_b128 v[96:99], v44 offset:%d\nds_read_b128 v[100:103], v44 offset:%d", C_VT, C_VT + 32)
    def uread(par, base):
        for k in range(4): a("ds_read_b64_tr_b16 %s, v%d offset:%d", vr(base + 2 * k, 2), 40 + k, 48 * par)
    uread(0, 104); uread(1, 112)
    for n in range(3): a(gather(n, 0))
    for k in range(4): a("v_add_u32 v%d, s67, v%d", 40 + k, 40 + k)
    a("s_mov_b32 s64, 0x7ffffff\ns_mov_b32 s65, 0x7ffffff")
    def umfma(base, acc):
        a("v_mfma_f32_32x32x16_bf16 %s, %s, v[96:99], 0", vr(acc, 16), vr(base, 4))
        a("v_mfma_f32_32x32x16_bf16 %s, %s, v[100:103], %s", vr(acc, 16), vr(base + 4, 4), vr(acc, 16))
    def uwrite(acc, par, areg, tmp):
        for i in range(8): a("v_cvt_pk_bf16_f32 v%d, v%d, v%d", tmp + i, acc + 2 * i, acc + 2 * i + 1)
        full = [i for i in range(6) if not (par == 1 and i == 0)]
        low = [6] if par == 0 else [6, 7]
        a("s_mov_b64 exec, s[64:65]")
        for i in full: a("ds_write_b32 v%d, v%d offset:%d", areg, tmp + i, 16 * (i >> 1) + 4 * (i & 1))
        a("s_mov_b32 exec_hi, 0")
        for i in low: a("ds_write_b32 v%d, v%d offset:%d", areg, tmp + i, 16 * (i >> 1) + 4 * (i & 1))
        if par == 1:
            a("s_mov_b32 exec_lo, 0\ns_mov_b32 exec_hi, s65\nds_write_b32 v%d, v%d", areg, tmp)
        a("s_mov_b64 exec, -1")
    a("s_waitcnt lgkmcnt(4)"); umfma(104, 128)
    a("s_waitcnt lgkmcnt(0)"); umfma(112, 144)
    uread(0, 176); uread(1, 184)
    a("s_nop 1")
    uwrite(128, 0, 46, 192)
    a("s_waitcnt lgkmcnt(11)"); umfma(176, 128)
    uwrite(144, 1, 47, 200)
    a("s_waitcnt lgkmcnt(15)"); umfma(184, 144)
    uwrite(128, 0, 48, 192)
    uwrite(144, 1, 49, 200)
    a("s_waitcnt lgkmcnt(0)\ns_barrier")
    stamp(4)
    for w in range(1, 8): a("s_cmp_eq_u32 s26, %d\ns_cbranch_scc1 L_fold%d", w, w)
    RES = 96
    for w in range(8):
        a("L_fold%d:", w)
        chunks = [w + 8 * k for k in range(5)] + [40 + w]
        halves = []
        for ci, c in enumerate(chunks):
            for hf in range(2):
                rd = []; ops = []
                base = 64 + 8 * ((2 * ci + hf) % 4); nr = 0
                vals = []
                for e in range(4 * hf, 4 * hf + 4):
                    if c < 44:
                        pr = sch["pairs"][c & 1][8 * (c >> 1) + e]
                        if pr is None: vals.append("0"); continue
                        x, y = pr
                        rd.append("ds_read_u16_d16_hi v%d, v50 offset:%d" % (base + nr, 52 * x + 2 * y)); nr += 1
                        if x == y: vals.append("v%d" % (base + nr - 1)); continue
                        rd.append("ds_read_u16_d16_hi v%d, v50 offset:%d" % (base + nr, 52 * y + 2 * x)); nr += 1
                        t = 120 + e
                        ops.append("v_add_f32 v%d, v%d, v%d" % (t, base + nr - 2, base + nr - 1)); vals.append("v%d" % t)
                    else:
                        u = (c - 44) >> 1; h = (c - 44) & 1; p = 8 * u + e
                        if p < 13:
                            rd.append("ds_read_u16_d16_hi v%d, v51 offset:%d" % (base + nr, 2 * fld(h, order[p]))); nr += 1
                            vals.append("v%d" % (base + nr - 1))
                        elif p == 13 and h == 0: vals.append("v21")
                        else: vals.append("0")
                for k in range(2):
                    ops.append("v_cvt_pk_bf16_f32 v%d, %s, %s" % (RES + 4 * ci + 2 * hf + k, vals[2 * k], vals[2 * k + 1]))
                halves.append((rd, ops))
        extra = {1: [(3, 0)] if w < 2 else [], 3: [(0, 1)], 5: [(1, 1)], 7: [(2, 1)], 9: [(3, 1)] if w < 2 else []}
        for r in halves[0][0]: a(r)
        for i in range(12):
            if i + 1 < 12:
                for r in halves[i + 1][0]: a(r)
                a("s_waitcnt lgkmcnt(%d)", len(halves[i + 1][0]))
            else: a("s_waitcnt lgkmcnt(0)")
            for o in halves[i][1]: a(o)
            for g in extra.get(i, []): a(gather(*g))
        a("s_barrier")
        for ci, c in enumerate(chunks):
            if c < 44: a("ds_write_b128 v52, %s offset:%d", vr(RES + 4 * ci, 4), 64 * (c >> 1) + 16 * (c & 1))
            else: a("s_mov_b32 exec_lo, 0xffff0000\ns_mov_b32 exec_hi, 0xffff0000\nds_write_b128 v52, %s offset:%d\ns_mov_b64 exec, -1", vr(RES + 4 * ci, 4), 1408 + 16 * (c - 44) - 32)
        a("s_mov_b32 s3, %d", 4 if w < 2 else 3)
        if w < 7: a("s_branch L_folded")
    a("L_folded:")
    stamp(5)
    a("""v_lshlrev_b32 v1, 2, v0
    s_lshl_b32 s64, s26, 8
    v_add_u32 v1, s64, v1
    v_mov_b32 v2, 0x3f803f80
    ds_write_b32 v1, v2 offset:%d""", C_X + 26 * XS)
    a("""v_lshrrev_b32 v1, 5, v0
    v_bfe_u32 v2, v0, 2, 2
    v_lshl_add_u32 v2, v1, 2, v2
    v_lshlrev_b32 v2, 3, v2
    v_bfe_u32 v3, v0, 4, 1
    s_lshr_b32 s67, s26, 2
    v_xor_b32 v3, s67, v3
    v_lshlrev_b32 v3, 5, v3
    v_and_b32 v12, 3, v0
    v_lshl_add_u32 v3, v12, 3, v3
    s_lshl_b32 s64, s26, 6
    v_add_u32 v3, s64, v3""")
    for T in range(7):
        by = [fld(h, order[4 * T + rr]) for h in range(2) for rr in range(4)]
        lo = sum(b << (8 * i) for i, b in enumerate(by[:4])); hi = sum(b << (8 * i) for i, b in enumerate(by[4:]))
        a("s_mov_b32 s64, 0x%x\ns_mov_b32 s65, 0x%x\nv_lshrrev_b64 v[12:13], v2, s[64:65]\nv_and_b32 v12, 0xff, v12\nv_mul_u32_u24 v12, %d, v12\nv_add_u32 v%d, v12, v3", lo, hi, XS, 4 + T)
    a("""v_and_b32 v12, 31, v0
    v_subrev_u32 v13, 16, v12
    v_cmp_gt_u32 vcc, 26, v12
    v_lshlrev_b32 v14, 4, v1
    v_add_u32 v14, %d, v14
    v_cndmask_b32 v12, v13, v12, vcc
    v_mul_u32_u24 v12, %d, v12
    v_add_u32 v11, v12, v14
    s_cmp_eq_u32 s3, 4
    s_cbranch_scc1 L_xw4
    s_waitcnt vmcnt(3) lgkmcnt(0)
    s_branch L_xw
    L_xw4:
    s_waitcnt vmcnt(4) lgkmcnt(0)
    L_xw:
    s_barrier""", C_F, FS)
    stamp(6)
    XP, XFR, TMP, Z = 16, 32, 60, 68
    FR, AC0, AC1, RR = 76, 192, 208, 224
    slot_of = [0, 1, 2] * 5 + [0, 1, 2, 3] * 2
    def frag(g, tau): return FR + 8 * slot_of[g] + 4 * tau
    def rdF(g, tau):
        off = (1408 + 32 * tau) if g == 0 else (64 * (g - 1) + 32 * tau)
        return "ds_read_b128 %s, v11 offset:%d" % (vr(frag(g, tau), 4), off)
    def rdX(T): return "ds_read_b64_tr_b16 %s, v%d" % (vr(XP + 2 * T, 2), 4 + T)
    for T in range(7): a(rdX(T))
    for g in range(2):
        for tau in range(2): a(rdF(g, tau))
    if cfg.WREST:
        NE = 16 * (cfg.WPF_D + cfg.WPF_C)
        a("s_lshl_b32 s64, s26, 4\ns_add_u32 s64, s64, s31\ns_add_u32 s64, s64, %d\ns_lshl_b32 s64, s64, 13\nv_lshlrev_b32 v12, 7, v0\nbuffer_load_dword v255, v12, %s, s64 offen", NE, sq(S_W1))
        if NE + 128 < 169: a("s_add_u32 s64, s64, %d\nbuffer_load_dword v255, v12, %s, s64 offen", 128 << 13, sq(S_W1))
    a("""s_and_b32 s66, s26, 3
    v_lshrrev_b32 v12, 4, v0
    v_bfe_u32 v13, v0, 2, 2
    v_lshl_add_u32 v14, v12, 3, v13
    v_lshlrev_b32 v14, 7, v14
    v_bfe_u32 v15, v0, 3, 1
    v_and_b32 v13, 1, v12
    v_lshl_add_u32 v15, v13, 1, v15
    v_xor_b32 v15, s66, v15
    v_lshl_add_u32 v14, v15, 5, v14
    v_and_b32 v15, 3, v0
    v_lshl_add_u32 v14, v15, 3, v14
    v_add_u32 v140, %d, v14
    v_and_b32 v13, 15, v0
    v_bfe_u32 v14, v0, 2, 1
    v_lshlrev_b32 v14, 1, v14
    v_xor_b32 v14, v14, v12
    v_lshlrev_b32 v14, 4, v14
    v_lshl_add_u32 v14, v13, 6, v14
    s_lshl_b32 s64, s67, 10
    v_add_u32 v141, s64, v14
    s_lshl_b32 s64, s66, 5
    s_add_u32 s64, s64, 1536
    v_lshl_add_u32 v14, v12, 3, s64
    v_mov_b32 v246, 0
    v_mov_b32 v247, 0
    global_load_dwordx2 v[252:253], v14, s[14:15]
    global_load_dwordx2 v[244:245], v14, s[16:17]
    global_load_short_d16_hi v246, v247, s[18:19]""", C_W13)
    a("""v_lshrrev_b32 v12, 3, v0
    v_bfe_u32 v13, v0, 4, 1
    s_and_b32 s64, s26, 1
    s_lshl_b32 s64, s64, 1
    v_or_b32 v13, s64, v13
    v_bfe_u32 v14, v0, 1, 2
    v_xor_b32 v13, v13, v14
    v_lshlrev_b32 v13, 5, v13
    v_and_b32 v14, 1, v0
    v_lshl_add_u32 v13, v14, 4, v13
    v_mul_u32_u24 v12, 1664, v12
    s_mul_i32 s64, s66, 13312
    s_add_u32 s64, s64, 1536
    v_add3_u32 v142, v12, v13, s64
    s_mul_i32 s62, s67, 53248
    s_lshl_b32 s63, s26, 10
    s_add_u32 s63, s63, %d
    s_cmp_lt_u32 s26, 4
    s_cselect_b32 s3, 2, 0""", C_W13)
    a("""v_lshrrev_b32 v12, 4, v0
    v_and_b32 v13, 1, v12
    v_lshrrev_b32 v14, 1, v12
    v_lshl_add_u32 v12, v13, 1, v14
    v_lshl_add_u32 v12, v12, 3, s26
    v_and_b32 v14, 15, v12
    v_lshl_add_u32 v14, v13, 8, v14
    v_and_b32 v13, 15, v0
    v_lshl_add_u32 v14, v13, 4, v14
    v_lshlrev_b32 v14, 2, v14
    v_add_u32 v254, %d, v14
    s_lshl_b32 s64, s30, 5
    v_add_u32 v12, s64, v12
    v_lshlrev_b32 v14, 2, v12
    v_lshl_add_u32 v14, v13, 9, v14
    s_lshl_b32 s64, s29, 12
    s_add_u32 s64, s64, %d
    v_add_u32 v14, s64, v14
    v_mov_b32 v15, %d
    v_cmp_gt_u32 vcc, 8, v13
    s_lshl_b32 s64, s29, 8
    v_lshl_add_u32 v12, v12, 1, s64
    v_cndmask_b32 v143, v15, v14, vcc
    v_cmp_eq_u32 vcc, 0, v13
    s_lshl_b32 s61, s29, 2
    s_mov_b32 s60, 0
    v_cndmask_b32 v243, v15, v12, vcc
    buffer_load_dword v242, off, %s, s61 sc1""", C_MD, WS_BOX, OOB, sq(S_DBG))
    pos = {f: i for i, f in enumerate(order[:27]) if f != 26}
    xf = {}
    k = 0
    for i in range(27):
        if order[i] != 26: xf[order[i]] = XFR + k; k += 1
    def unpack():
        o = []
        for i in range(27):
            f = order[i]
            if f == 26: continue
            o.append(("v_lshlrev_b32 v%d, 16, v%d" if i % 2 == 0 else "v_and_b32 v%d, 0xffff0000, v%d") % (xf[f], XP + i // 2))
        return o
    slots = sch["slots"]
    def zops(t):
        o = []
        for hf in range(2):
            for e in range(4 * hf, 4 * hf + 4):
                x, y = slots[8 * t + e]
                o.append("v_mul_f32 v%d, v%d, v%d" % (TMP + e, xf[x], xf[y]))
            for e2 in range(2 * hf, 2 * hf + 2):
                o.append("v_cvt_pk_bf16_f32 v%d, v%d, v%d" % (Z + 4 * (t % 2) + e2, TMP + 2 * e2, TMP + 2 * e2 + 1))
        return o
    def mfc(acc, fr, b, c): return "v_mfma_f32_32x32x16_bf16 %s, %s, %s, %s" % (vr(acc, 16), vr(fr, 4), vr(b, 4), c)
    a("s_waitcnt lgkmcnt(0)")
    for o in unpack(): a(o)
    a("L_cloop:")
    dq = []
    def ds(t, tag): a(t); dq.append(tag)
    def dwait(tag):
        if tag not in dq: return
        n = len(dq) - 1 - max(i for i, t in enumerate(dq) if t == tag)
        a("s_waitcnt lgkmcnt(%d)", min(n, 15))
    z0 = zops(0)
    a(mfc(AC1, frag(0, 0), XP, "0"))
    for o in z0[:6]: a(o)
    ds(rdF(2, 0), ("F", 2))
    a(mfc(AC1, frag(0, 1), XP + 4, vr(AC1, 16)))
    for o in z0[6:]: a(o)
    ds(rdF(2, 1), ("F", 2))
    a("s_nop 0")
    for t in range(22):
        g = t + 1
        gn = (g + 2) % 23
        dwait(("F", g))
        zn = zops(t + 1) if t < 21 else []
        a(mfc(AC0, frag(g, 0), Z + 4 * (t % 2), "0" if t == 0 else vr(AC0, 16)))
        for o in zn[:6]: a(o)
        ds(rdF(gn, 0), ("F", gn if gn > 2 else -gn - 1))
        if 2 <= t < 9: a("v_add_u32 v%d, 0x200, v%d", 4 + t - 2, 4 + t - 2)
        if t % 3 == 1 and t // 3 < 7:
            n = t // 3
            a("s_cmp_lt_u32 s60, %s\ns_cbranch_scc0 L_w13_%d\ns_add_u32 m0, s63, %d\ns_add_u32 s64, s62, %d\nbuffer_load_dwordx4 v142, %s, s64 offen lds\nL_w13_%d:", "s3" if n == 6 else "2", n, 8192 * n, 2 * n * 53248, sq(S_W1), n)
        a(mfc(AC1, frag(g, 1), Z + 4 * (t % 2), vr(AC1, 16)))
        for o in zn[6:]: a(o)
        ds(rdF(gn, 1), ("F", gn if gn > 2 else -gn - 1))
        if 10 <= t < 17: ds(rdX(t - 10), "X")
        elif t < 21: pass
    a("s_waitcnt lgkmcnt(0)")
    for o in unpack(): a(o)
    a("v_mov_b32 v%d, v%d\nv_mov_b32 v%d, v%d\nv_mov_b32 v%d, v%d", RR, RR + 1, RR + 1, RR + 2, RR + 2, RR + 3)
    a("v_mul_f32 v%d, v%d, v%d\nv_mul_f32 v%d, v%d, v%d", TMP, AC0 + 12, AC1 + 12, TMP + 1, AC0, AC1)
    a("v_fmac_f32 v%d, v%d, v%d\nv_mul_f32 v%d, v%d, v%d", TMP, AC0 + 13, AC1 + 13, TMP + 2, AC0 + 1, AC1 + 1)
    a("s_mov_b32 vcc_lo, -1\ns_mov_b32 vcc_hi, 0")
    for i in range(2, 12): a("v_fmac_f32 v%d, v%d, v%d", TMP + 1 + i % 2, AC0 + i, AC1 + i)
    a("v_cndmask_b32 v%d, 0, v%d, vcc", TMP, TMP)
    a("v_add_f32 v%d, v%d, v%d", TMP + 1, TMP + 1, TMP + 2)
    a("v_add_f32 v%d, v%d, v%d", RR + 3, TMP, TMP + 1)
    a("s_add_u32 s60, s60, 1\ns_cmp_eq_u32 s60, 2\ns_cbranch_scc1 L_cloop\ns_cmp_eq_u32 s60, 4\ns_cbranch_scc1 L_cfin")
    def phase(chunk):
        for n in range(13):
            a("ds_read_b64_tr_b16 %s, v140 offset:%d", vr(144 + 8 * (n % 6), 2), 4096 * n)
            a("ds_read_b64_tr_b16 %s, v140 offset:%d", vr(146 + 8 * (n % 6), 2), 4096 * n + 512)
            a("ds_read_b128 %s, v141 offset:%d", vr(148 + 8 * (n % 6), 4), XS * (13 * chunk + n))
            if n >= 4:
                m = n - 4
                a("s_waitcnt lgkmcnt(12)")
                a("v_mfma_f32_16x16x32_bf16 v[136:139], %s, %s, v[136:139]", vr(144 + 8 * (m % 6), 4), vr(148 + 8 * (m % 6), 4))
        for m in range(9, 13):
            a("s_waitcnt lgkmcnt(%d)", 3 * (12 - m))
            a("v_mfma_f32_16x16x32_bf16 v[136:139], %s, %s, v[136:139]", vr(144 + 8 * (m % 6), 4), vr(148 + 8 * (m % 6), 4))
    a("s_waitcnt vmcnt(0)")
    a("s_cmp_eq_u32 s60, 3\ns_cbranch_scc1 L_phb")
    stamp(7)
    a("""s_barrier
    v_lshlrev_b32 v136, 16, v252
    v_and_b32 v137, 0xffff0000, v252
    v_lshlrev_b32 v138, 16, v253
    v_and_b32 v139, 0xffff0000, v253
    v_lshlrev_b32 v248, 16, v244
    v_and_b32 v249, 0xffff0000, v244
    v_lshlrev_b32 v250, 16, v245
    v_and_b32 v251, 0xffff0000, v245
    s_add_u32 s62, s62, %d""", 13 * 53248)
    phase(0)
    a("s_barrier")
    stamp(8)
    a("s_branch L_cloop")
    a("L_phb:")
    a("""s_mov_b32 s65, 0x20000
    L_cspin:
    v_readfirstlane_b32 s64, v242
    s_cmp_ge_u32 s64, 16
    s_cbranch_scc1 L_cok
    s_sub_u32 s65, s65, 1
    s_cbranch_scc1 L_cok
    buffer_load_dword v242, off, %s, s61 sc1
    s_waitcnt vmcnt(0)
    s_branch L_cspin
    L_cok:
    s_barrier""", sq(S_DBG))
    phase(1)
    a("s_mov_b32 s64, 0x%x\ns_mov_b32 s65, 0x%x\nv_mov_b32 v144, 0x%x\nv_mov_b32 v145, 0x%x", f32bits(c2), f32bits(c2), f32bits(c1), f32bits(c1))
    a("s_lshl_b32 s66, s26, 8\ns_add_u32 s66, s66, %d\nv_lshl_add_u32 v152, v0, 2, s66\ns_nop 1", C_MD)
    for i in range(2): a("v_pk_mul_f32 %s, %s, %s", vr(146 + 2 * i, 2), vr(136 + 2 * i, 2), vr(136 + 2 * i, 2))
    for i in range(2): a("v_pk_fma_f32 %s, %s, s[64:65], v[144:145]", vr(146 + 2 * i, 2), vr(146 + 2 * i, 2))
    for i in range(2): a("v_pk_mul_f32 %s, %s, %s", vr(146 + 2 * i, 2), vr(146 + 2 * i, 2), vr(136 + 2 * i, 2))
    for i in range(4): a("v_exp_f32 v%d, v%d", 146 + i, 146 + i)
    for i in range(2): a("v_pk_mul_f32 %s, %s, %s", vr(136 + 2 * i, 2), vr(136 + 2 * i, 2), vr(248 + 2 * i, 2))
    for i in range(2): a("v_pk_add_f32 %s, %s, 1.0 op_sel_hi:[1,0]", vr(146 + 2 * i, 2), vr(146 + 2 * i, 2))
    for i in range(4): a("v_rcp_f32 v%d, v%d", 146 + i, 146 + i)
    a("""s_nop 0
    v_pk_mul_f32 v[136:137], v[136:137], v[146:147]
    v_pk_fma_f32 v[136:137], v[138:139], v[148:149], v[136:137]
    v_add_f32 v136, v136, v137
    ds_write_b32 v152, v136
    s_waitcnt lgkmcnt(0)""")
    stamp(9)
    a("s_branch L_cloop")
    a("L_cfin:")
    stamp(10)
    a("""buffer_load_dword v241, v143, %s, 0 offen sc1
    s_barrier
    ds_read_b32 v240, v254
    v_permlane32_swap_b32 v%d, v%d
    v_permlane32_swap_b32 v%d, v%d
    v_add_f32 v%d, v%d, v%d
    v_add_f32 v%d, v%d, v%d
    s_nop 1
    v_permlane16_swap_b32 v%d, v%d
    v_add_f32 v%d, v%d, v%d
    s_waitcnt lgkmcnt(0)
    v_add_f32 v%d, v%d, v240
    s_mov_b32 s65, 0x20000
    L_pspin:
    s_waitcnt vmcnt(0)
    v_cmp_eq_u32 vcc, -1, v241
    s_cbranch_vccz L_pok
    s_sub_u32 s65, s65, 1
    s_cbranch_scc1 L_pok
    buffer_load_dword v241, v143, %s, 0 offen sc1
    s_branch L_pspin
    L_pok:
    v_add_f32 v%d, v%d, v241""", sq(S_WS), RR, RR + 1, RR + 2, RR + 3, RR, RR, RR + 1, RR + 2, RR + 2, RR + 3, RR, RR + 2, RR, RR, RR + 2, RR, RR, sq(S_WS), RR, RR)
    for sh in (8, 4, 2, 1):
        a("s_nop 1\nv_add_f32_dpp v%d, v%d, v%d row_ror:%d row_mask:0xf bank_mask:0xf", RR, RR, RR, sh)
    a("""v_add_f32 v%d, v%d, v246
    v_cvt_pk_bf16_f32 v%d, v%d, v%d
    buffer_store_short v%d, v243, %s, 0 offen""", RR, RR, RR, RR, RR, RR, sq(S_OUT))
    stamp(11)
    if cfg.PROBE == "spin":
        a("s_waitcnt lgkmcnt(0)\nL_sp:\ns_memrealtime s[64:65]\ns_waitcnt lgkmcnt(0)\ns_sub_u32 s64, s64, s100\ns_cmp_lt_u32 s64, %d\ns_cbranch_scc1 L_sp", cfg.PN * 100)
    dump_stamps()
    a("L_end:\ns_endpgm")
    body = a.text()

    tab = "L_codeend:\n"
    hdr = open("standalone__deep_cross_xdeepfm__recsys.s.ref").read().split("; Override launch")[0]
    out = hdr + "; Generated by a script (own generator). Roles: workgroups with (id>>3)<16 run the MLP GEMM tile,\n; the others run the CIN quadratic forms and combine.\n"
    out += "; @launch grid=(256,1,1) block=(512,1,1) lds=163840\n"
    out += '.amdgcn_target "amdgcn-amd-amdhsa--gfx950"\n.text\n.globl %s\n.p2align 8\n.type %s,@function\n%s:\n' % (KN, KN, KN)
    out += body + tab
    out += """.section .rodata,"a"
.p2align 6
.amdhsa_kernel %s
  .amdhsa_next_free_vgpr 256
  .amdhsa_next_free_sgpr 102
  .amdhsa_accum_offset 256
  .amdhsa_group_segment_fixed_size 0
  .amdhsa_kernarg_size 88
  .amdhsa_user_sgpr_count 2
  .amdhsa_user_sgpr_kernarg_segment_ptr 1
  .amdhsa_system_sgpr_workgroup_id_x 1
  .amdhsa_float_denorm_mode_32 3
.end_amdhsa_kernel
""" % KN
    nb = lint(body)
    return out, nb

if __name__ == "__main__":
    cfg = Cfg()
    path = sys.argv[1]
    for kv in sys.argv[2:]:
        k, v = kv.split("=")
        old = getattr(cfg, k)
        setattr(cfg, k, v if isinstance(old, str) else (bool(int(v)) if isinstance(old, bool) else int(v)))
    out, nb = generate(cfg)
    open(path, "w").write(out)
    print("written", path, "hazards:", nb)
```

```python
import itertools
NF = 26
def pi(i): return (5 * i + 1) % NF
def build():
    seen = set(); S0 = []
    for a in range(NF):
        if a in seen: continue
        orb = [a]; x = pi(a)
        while x != a: orb.append(x); x = pi(x)
        assert len(orb) % 2 == 0
        seen.update(orb); S0 += orb[(len(S0) // 2) % 2::2]
    assert len(S0) == 13 and set(S0) | {pi(a) for a in S0} == set(range(NF))
    seen = set(); S13 = []
    for a in range(13):
        if a in seen: continue
        orb = [a]; x = pi(a) % 13
        while x != a: orb.append(x); x = pi(x) % 13
        seen.update(orb); S13 += orb[0::2]
    assert len(S13) == 7
    slots = []
    for d in (1, 2, 3, 4, 7, 8):
        for a in range(NF): slots.append((a, (a + d) % NF))
    slots += [(a, a) for a in S0]
    slots += [(a, a + 13) for a in S13]
    assert len(slots) == 176
    base_slots = slots
    def finish(slots):
        used = set(); pairs = [[None] * 176, [None] * 176]
        for h in range(2):
            for s, (a, b) in enumerate(slots):
                x, y = (a, b) if h == 0 else (pi(a), pi(b))
                key = (min(x, y), max(x, y))
                if key not in used: used.add(key); pairs[h][s] = (x, y)
        assert len(used) == 351
        return pairs
    used = set(); pairs = [[None] * 176, [None] * 176]
    for h in range(2):
        for s, (a, b) in enumerate(slots):
            x, y = (a, b) if h == 0 else (pi(a), pi(b))
            key = (min(x, y), max(x, y))
            if key in used: pairs[h][s] = None
            else: used.add(key); pairs[h][s] = (x, y)
    assert len(used) == 351
    rest = [a for a in range(NF) if a not in S0]
    slot = {}; seen = []
    for a in range(NF):
        if a in slot: continue
        x = a
        while x not in slot: slot[x] = len(slot); x = pi(x)
    slot[26] = 26
    import random
    rnd = random.Random(1)
    def fld(h, a): return 26 if a == 26 else (a if h == 0 else pi(a))
    def cost(o):
        c = 0
        for T in range(4):
            for h in range(2):
                cl = [slot[fld(h, a)] % 2 for a in set(o[4*T:4*T+4])]
                c += max(cl.count(v) for v in range(4))
        return c
    best = None
    for it in range(20000):
        A = S0[:]; B = rest[:]; rnd.shuffle(A); rnd.shuffle(B)
        o = A + [26] + B + [B[-1]]
        c = cost(o)
        if best is None or c < best[0]: best = (c, o)
    order = best[1]
    pos = {f: i for i, f in enumerate(order[:27])}
    slots = sorted(base_slots, key=lambda ab: (max(pos[ab[0]], pos[ab[1]]), min(pos[ab[0]], pos[ab[1]])))
    pairs = finish(slots)
    first = {}
    for s, (a, b) in enumerate(slots):
        for f in (a, b): first.setdefault(pos[f], s // 8)
    return dict(first=first, slot=slot, slots=slots, pairs=pairs, order=order, cost=best[0], fld=fld)
if __name__ == "__main__":
    s = build()
    print(s["order"], s["cost"]); print(sorted(s["first"].items())); print(s["slot"], sorted({s["slot"][pi(f)] - s["slot"][f] for f in range(26)}))
    for x, (m, sh, lim, d) in {"24": (2731, 16, 768, 24), "22": (2979, 16, 576, 22), "26": (2521, 16, 840, 26)}.items():
        print(x, all((v * m) >> sh == v // d for v in range(lim)))
```

```python
import sys, math, struct
from scheme import build as build_scheme, pi
from lint import lint

KN = "standalone__deep_cross_xdeepfm__recsys_kernel"
class Cfg:
    NI = 2
    CATCH = 1
    R = 6
    WPF_D = 3
    TLB = 1
    AP0 = 4
    APF = 6
    GF0 = 6
    ORD_U = "G00 G10 G20"
    ORD_F = "G30 G01 - - - -"
    ORD_M = "G11 G21 G31"
    PSITE = "F1 F3 M0 M1 M3 M5 M7 M9"
    NS1 = 2
    ROT = 1
    FD = 3
    T_BAR = 14
    PRIO = 1
    STAMP = False
    RT = 0
    SL = 0
    CODEPF = True
    PROBE = "none"
    PN = 64
def f32bits(x): return struct.unpack("<I", struct.pack("<f", x))[0]
class A:
    def __init__(s): s.L = []
    def __call__(s, t, *a):
        if a: t = t % a
        for l in t.split("\n"):
            l = l.strip()
            if l: s.L.append(l if l.endswith(":") else "    " + l)
    def text(s): return "\n".join(s.L) + "\n"
def vr(a, n): return "v[%d:%d]" % (a, a + n - 1)

SLOT = 21504
XS = 2112
C_X = 0
C_VT = 26 * XS - 64
VS = 80
C_WC = 23 * XS + 8
C_IDX = 24 * XS
C_ST = 27 * XS
C_W0 = C_ST; C_W1 = C_ST + 35152; C_W2 = C_ST + 70304
C_U = C_W2 + 4; C_L = C_U + 35152
C_F = C_ST
FS = 1488
assert C_L + 1352 <= 163840 and C_ST + 104 * 1024 <= 163840
WS_BOX = 0; WS_ST = 262144
OOB = 0x7ff00000
def srd(a, s, ptr, n):
    a("s_mov_b32 s%d, s%d\ns_mov_b32 s%d, s%d\ns_mov_b32 s%d, %d\ns_mov_b32 s%d, 0x20000", s, ptr, s + 1, ptr + 1, s + 2, n, s + 3)
S_IDX, S_TAB, S_W1, S_WS, S_WC, S_DBG, S_OUT, S_M = 32, 36, 40, 44, 48, 52, 56, 96
def sq(s): return "s[%d:%d]" % (s, s + 3)

def generate(cfg):
    sch = build_scheme()
    order = sch["order"]; fld = sch["fld"]; slot = sch["slot"]; first = sch["first"]; slots = sch["slots"]
    D_IDX = cfg.R * SLOT; D_BW = D_IDX + 13312
    assert D_BW + 3584 <= 163840
    a = A()
    def stamp(k):
        if cfg.STAMP: a("%s s[%d:%d]", "s_memrealtime" if cfg.RT else "s_memtime", 72 + 2 * k, 73 + 2 * k)
    def dump_stamps():
        if not cfg.STAMP: return
        a("s_memrealtime s[64:65]\ns_waitcnt vmcnt(0) lgkmcnt(0)\nv_mov_b32 v239, s64")
        for k in range(12): a("v_mov_b32 v%d, s%d", 224 + k, 72 + 2 * k)
        a("v_mov_b32 v236, s70\nv_mov_b32 v237, s2\nv_mov_b32 v238, s26")
        a("s_lshl_b32 s64, s2, 3\ns_add_u32 s64, s64, s26\ns_lshl_b32 s64, s64, 6\ns_add_u32 s64, s64, %d", WS_ST)
        a("v_mov_b32 v240, s64\ns_mov_b64 exec, 1")
        srd(a, S_WS, 24, 0x100000)
        for k in range(4): a("buffer_store_dwordx4 v[%d:%d], v240, %s, 0 offen offset:%d", 224 + 4 * k, 227 + 4 * k, sq(S_WS), 16 * k)
    WSN = 0x100000 if cfg.STAMP else WS_BOX + 131072
    c1 = -2.0 * math.log2(math.e) * math.sqrt(2.0 / math.pi); c2 = c1 * 0.044715

    a("s_cmp_ge_u32 s2, 256\ns_cbranch_scc1 L_end")
    if cfg.STAMP:
        for k in range(12): a("s_mov_b32 s%d, 0", 72 + 2 * k)
    if cfg.STAMP or cfg.PROBE == "spin": a("s_memrealtime s[70:71]")
    stamp(0)
    a("""s_load_dwordx16 s[4:19], s[0:1], 0
    s_load_dwordx4 s[20:23], s[0:1], 64
    s_load_dwordx2 s[24:25], s[0:1], 80
    v_lshrrev_b32 v1, 6, v0
    v_and_b32 v0, 63, v0
    s_lshr_b32 s28, s2, 3
    v_readfirstlane_b32 s26, v1""")
    if cfg.CODEPF:
        a("""s_getpc_b64 s[64:65]
        L_pfbase:
        s_cmp_lg_u32 s26, 7
        s_cbranch_scc1 L_nopf
        s_lshl_b32 s66, s28, 10
        v_and_b32 v2, 7, v0
        v_lshl_add_u32 v2, v2, 7, s66
        v_min_u32 v2, L_codeend-L_pfbase-4, v2
        global_load_dword v255, v2, s[64:65]
        L_nopf:""")
    a("""s_and_b32 s27, s2, 7
    s_and_b32 s30, s28, 3
    s_bfe_u32 s29, s28, 0x20002
    s_lshl_b32 s64, s27, 2
    s_add_u32 s29, s29, s64
    v_lshlrev_b32 v2, 4, v0
    v_lshlrev_b32 v251, 7, v0
    s_cmp_ge_u32 s28, 16
    s_cbranch_scc1 L_cin
    s_cmp_lt_u32 s26, 4
    s_cbranch_scc1 L_comp""")
    q = []
    def vm(tag): q.append(tag)
    def wait_for(pred):
        last = max(i for i, t in enumerate(q) if pred(t))
        n = len(q) - 1 - last
        assert n < 64
        a("s_waitcnt vmcnt(%d)", n)
    a("""s_sub_u32 s66, s26, 4
    s_lshl_b32 s64, s29, 2
    s_add_u32 s64, s64, s66
    s_mul_i32 s64, s64, 3328
    s_mul_i32 s67, s66, 3328
    s_add_u32 s67, s67, %d
    s_mov_b32 m0, s67
    s_lshl_b32 s65, s66, 4
    s_add_u32 s65, s65, s28
    s_lshl_b32 s65, s65, 13
    s_waitcnt lgkmcnt(0)""", D_IDX)
    srd(a, S_IDX, 4, 425984)
    for i in range(4):
        if i == 3: a("s_mov_b64 exec, 0xffff")
        a("buffer_load_dwordx4 v2, %s, s64 offen offset:%d lds", sq(S_IDX), 1024 * i); vm("idx")
    a("s_mov_b64 exec, -1")
    srd(a, S_W1, 12, 1384448)
    a("s_cmp_ge_u32 s66, %d\ns_cbranch_scc1 L_loader\nbuffer_load_dword v35, v251, %s, s65 offen\ns_branch L_loader", cfg.WPF_D, sq(S_W1))
    vm("wpf")
    if cfg.SL == 3:
        k = max(i for i, l in enumerate(a.L) if "s_cmp_ge_u32 s66" in l); sv = a.L[k:]; a.L = a.L[:k]; stamp(5); a.L += sv

    a("L_cin:")
    NE = 16 * cfg.WPF_D
    psite = cfg.PSITE.split()
    def lst2(k):
        if cfg.SL == 2: stamp(k)
    def stage(lo, cnt, sreg):
        hi = lo + cnt - 1
        f = lambda o: 68 + o if o < 36 else (o - 2 if o < 70 else o - 70)
        if f(hi) - f(lo) == cnt - 1:
            return "s_add_u32 m0, %s, %d\ns_add_u32 s64, %s, %d\nbuffer_load_dwordx4 v2, %s, s64 offen lds" % (sreg, 1024 * f(lo) + C_ST, sreg, 1024 * f(lo), sq(S_WC))
        cut = (36 if hi < 70 else 70) - lo
        return "s_mov_b32 s65, %d\ns_cmp_lt_u32 %s, %d\ns_cselect_b32 s64, s65, %d\ns_add_u32 s64, s64, %s\ns_add_u32 m0, s64, %d\ns_nop 0\nbuffer_load_dwordx4 v2, %s, s64 offen lds" % (1024 * f(lo), sreg, 1024 * cut, 1024 * (f(hi) - cnt + 1), sreg, C_ST, sq(S_WC))
    a("""s_sub_u32 s31, s28, 16
    s_lshl_b32 s3, s26, 10
    v_lshlrev_b32 v6, 2, v0
    s_lshl_b32 s64, s29, 3
    s_lshl_b32 s65, s30, 1
    s_add_u32 s64, s64, s65
    s_add_u32 s64, s64, s26
    s_mul_i32 s66, s64, 1664
    s_mul_i32 s65, s26, %d
    s_add_u32 s67, s65, %d
    s_lshl_b32 s68, s31, 13
    s_and_b32 s101, s3, 0x7ff
    s_lshr_b32 s64, s26, 2
    s_lshl_b32 s64, s64, 11
    s_add_u32 s101, s101, s64
    s_waitcnt lgkmcnt(0)""", XS, C_IDX)
    srd(a, S_WC, 8, 105456)
    a("s_bitcmp1_b32 s26, 1\ns_cbranch_scc0 L_c1")
    a(stage(32, 4, "s101"))
    a("s_branch L_c4\nL_c1:\ns_cmp_ge_u32 s26, 4\ns_cbranch_scc1 L_c2\ns_mov_b32 m0, s67")
    srd(a, S_IDX, 4, 425984)
    a("""buffer_load_dwordx4 v2, %s, s66 offen lds
    buffer_load_dwordx4 v2, %s, s66 offen offset:1024 lds
    s_branch L_c4
    L_c2:
    s_cmp_eq_u32 s26, 5
    s_cbranch_scc1 L_c3
    buffer_load_dword v255, v251, %s, s68 offen
    s_branch L_c4
    L_c3:
    s_mov_b32 m0, %d""", sq(S_IDX), sq(S_IDX), sq(S_WC), C_WC)
    srd(a, S_M, 10, 156)
    a("buffer_load_dword v6, %s, 0 offen lds\nL_c4:", sq(S_M))
    for n in range(4): a(stage(8 * n, 8, "s3"))
    stamp(1)
    a("""s_mul_i32 s64, s26, 272
    v_add_u32 v1, s64, v6
    v_mov_b32 v3, 0
    ds_write_b32 v1, v3 offset:%d
    ds_write_b32 v1, v3 offset:%d
    v_lshrrev_b32 v5, 4, v0
    v_lshlrev_b32 v38, 4, v5
    v_and_b32 v7, 15, v0
    v_lshrrev_b32 v1, 5, v0
    v_lshl_add_u32 v8, v1, 4, v7
    v_min_u32 v8, 25, v8
    v_lshlrev_b32 v9, 1, v8
    v_mov_b32 v21, 0
    v_mov_b32 v247, 0
    v_bfe_u32 v23, v0, 2, 2
    v_bfe_u32 v22, v0, 4, 1
    v_and_b32 v13, 3, v0
    v_lshlrev_b32 v13, 3, v13""", C_VT, C_VT + 16)
    a("""v_lshl_add_u32 v4, v5, 3, v23
    v_add_u32 v15, 4, v4
    v_min_u32 v4, 25, v4
    v_min_u32 v15, 25, v15
    v_mul_u32_u24 v4, 1352, v4
    v_mul_u32_u24 v15, 1352, v15
    s_mul_i32 s67, s26, 96
    s_min_u32 s67, s67, 580
    s_lshl_b32 s64, s67, 1
    s_add_u32 s64, s64, %d
    v_add3_u32 v10, v4, v13, s64
    v_add3_u32 v11, v15, v13, s64
    v_add_u32 v45, s67, v7""", C_W2)
    for m in range(6):
        a("""v_add_u32 v4, %d, v45
        v_mul_u32_u24 v15, 2521, v4
        v_lshrrev_b32 v15, 16, v15
        v_mul_u32_u24 v14, %d, v15
        v_mul_u32_u24 v4, %d, v4
        v_sub_u32 v%d, v4, v14""", 16 * m, 26 * VS - 2, VS, 32 + m)
    srd(a, S_TAB, 6, 6400000); srd(a, S_W1, 12, 1384448); srd(a, S_WS, 24, WSN); srd(a, S_DBG, 22, 256); srd(a, S_OUT, 20, 8192)
    a("""v_lshl_add_u32 v4, v1, 3, v23
    v_lshl_add_u32 v15, v22, 5, v13
    s_mul_i32 s64, s26, 104
    s_add_u32 s64, s64, %d
    v_mul_u32_u24 v40, 1352, v4
    v_add3_u32 v40, v40, v15, s64
    v_add_u32 v41, %d, v40
    v_add_u32 v14, 16, v4
    v_add_u32 v4, 20, v4
    v_min_u32 v14, 25, v14
    v_min_u32 v4, 25, v4
    v_mul_u32_u24 v14, 1352, v14
    v_mul_u32_u24 v4, 1352, v4
    v_add3_u32 v42, v14, v15, s64
    v_add3_u32 v43, v4, v15, s64
    v_and_b32 v4, 31, v0
    v_min_u32 v44, 26, v4
    v_mul_u32_u24 v44, %d, v44
    v_lshl_add_u32 v44, v1, 4, v44
    v_mul_u32_u24 v15, 52, v4
    v_add_u32 v15, %d, v15
    v_mov_b32 v14, %d
    v_cmp_gt_u32 vcc, 26, v4
    v_mov_b32 v24, 104
    v_mov_b32 v25, 2704
    v_cndmask_b32 v15, v14, v15, vcc
    v_cndmask_b32 v14, v24, v25, vcc
    v_subrev_u32 v24, 16, v4
    v_lshl_add_u32 v15, v1, 3, v15
    v_cndmask_b32 v24, v24, v4, vcc
    s_add_u32 s67, s26, 8
    s_min_u32 s67, s67, 12
    v_mad_u32_u24 v46, v14, s26, v15
    v_mad_u32_u24 v48, v14, s67, v15
    v_lshrrev_b32 v14, 1, v14
    v_add3_u32 v47, v46, v14, -4
    v_add3_u32 v49, v48, v14, -4
    s_sub_u32 s67, s67, s26
    s_mul_i32 s67, s67, 104
    v_mul_u32_u24 v24, %d, v24
    v_lshl_add_u32 v24, v1, 4, v24
    v_add_u32 v215, %d, v24""", C_W1, 4 * 1352, VS, C_U, C_L, FS, C_F)
    a("""s_lshr_b32 s68, s26, 2
    s_lshl_b32 s65, s68, 5
    v_lshlrev_b32 v4, 1, v4
    v_xor_b32 v4, s65, v4
    s_lshl_b32 s64, s26, 6
    v_add_u32 v4, s64, v4
    v_mul_u32_u24 v14, %d, v1
    v_add_u32 v212, v4, v14
    v_sub_u32 v4, v4, v14
    v_add_u32 v214, %d, v4
    v_sub_u32 v4, v4, v14
    v_sub_u32 v4, v4, v14
    v_add_u32 v213, %d, v4
    v_lshl_add_u32 v4, v1, 2, v23
    v_lshlrev_b32 v4, 3, v4
    v_xor_b32 v15, s68, v22
    v_lshl_add_u32 v15, v15, 5, v13
    v_add_u32 v15, s64, v15""", XS, XS, 3 * XS)
    for T in range(4):
        by = [slot[fld(h, order[4 * T + rr])] for h in range(2) for rr in range(4)]
        lo = sum(b << (8 * i) for i, b in enumerate(by[:4])); hi = sum(b << (8 * i) for i, b in enumerate(by[4:]))
        a("s_mov_b32 s64, 0x%x\ns_mov_b32 s65, 0x%x\nv_lshrrev_b64 v[28:29], v4, s[64:65]\nv_and_b32 v28, 0xff, v28\nv_mul_u32_u24 v28, %d, v28\nv_add_u32 v%d, v28, v15", lo, hi, XS, 208 + T)
    a("""v_mul_u32_u24 v50, 1352, v8
    v_mul_u32_u24 v15, %d, v22
    v_add_u32 v50, v50, v15
    v_add_u32 v50, %d, v50
    v_mul_u32_u24 v51, 52, v8
    v_add_u32 v51, %d, v51
    v_mul_u32_u24 v52, %d, v8
    v_lshl_add_u32 v52, v22, 5, v52
    v_add_u32 v52, %d, v52""", C_U - C_W0, C_W0, C_L, FS, C_F)
    a("""v_lshrrev_b32 v15, 2, v0
    v_mul_u32_u24 v15, 104, v15
    v_and_b32 v14, 3, v0
    v_lshlrev_b32 v4, 1, v22
    v_xor_b32 v14, v14, v4
    v_lshlrev_b32 v252, 4, v14
    s_lshl_b32 s66, s26, 3""")
    for n in range(4):
        by = [slot[(cfg.GF0 + 8 * n + w) % 26] for w in range(8)]
        lo = sum(b << (8 * i) for i, b in enumerate(by[:4])); hi = sum(b << (8 * i) for i, b in enumerate(by[4:]))
        a("s_mov_b32 s64, 0x%x\ns_mov_b32 s65, 0x%x\ns_lshr_b64 s[64:65], s[64:65], s66\ns_and_b32 s64, s64, 0xff\ns_mul_i32 s%d, s64, %d", lo, hi, 60 + n, XS)
        a("s_add_u32 s64, s26, %d\ns_cmp_ge_u32 s64, 26\ns_cselect_b32 s65, 26, 0\ns_sub_u32 s64, s64, s65\ns_lshl_b32 s64, s64, 2\nv_add_u32 v%d, s64, v15", (cfg.GF0 + 8 * n) % 26, 24 + n)
    for i in range(16): a("v_mov_b64 v[%d:%d], 0", 64 + 2 * i, 65 + 2 * i)
    a("""v_lshl_add_u32 v4, v22, 1, v1
    v_lshl_add_u32 v4, v4, 3, s26
    s_lshl_b32 s64, s30, 5
    v_add_u32 v4, s64, v4
    v_lshlrev_b32 v14, 2, v4
    v_lshl_add_u32 v14, v7, 9, v14
    s_lshl_b32 s64, s29, 12
    s_add_u32 s64, s64, %d
    v_add_u32 v14, s64, v14
    v_mov_b32 v15, %d
    v_cmp_gt_u32 vcc, 8, v7
    s_lshl_b32 s64, s29, 8
    v_lshl_add_u32 v4, v4, 1, s64
    v_cndmask_b32 v244, v15, v14, vcc
    v_cmp_eq_u32 vcc, 0, v7
    s_lshl_b32 s64, s26, 4
    s_add_u32 s64, s64, s31
    v_cndmask_b32 v246, v15, v4, vcc
    s_add_u32 s64, s64, %d
    s_lshl_b32 s69, s64, 13""", WS_BOX, OOB, NE)
    lst2(8)
    for o in (36, 44, 52, 60, 68)[:cfg.NS1]: a(stage(o, 8, "s3"))
    a("s_waitcnt vmcnt(%d) lgkmcnt(0)\ns_barrier", cfg.NS1)
    stamp(2)
    a("ds_read_b128 v[16:19], v38 offset:%d", C_WC + 104)
    for m in range(6):
        a("ds_read_b64_tr_b16 %s, v10 offset:%d", vr(96 + 4 * m, 2), 32 * m)
        a("ds_read_b64_tr_b16 %s, v11 offset:%d", vr(98 + 4 * m, 2), 32 * m)
    a("ds_read_b32 v20, v6 offset:%d\nds_read_u16_d16_hi v21, v9 offset:%d", C_WC + 52, C_WC)
    rest = list((36, 44, 52, 60, 68, 76, 84, 92)[cfg.NS1:])
    n1 = 5 - cfg.NS1
    for o in rest[:2]: a(stage(o, 8, "s3"))
    for m in range(6):
        a("s_waitcnt lgkmcnt(%d)", 2 * (5 - m) + 2)
        a("v_mfma_f32_16x16x32_bf16 %s, v[16:19], %s, 0", vr(120 + 4 * m, 4), vr(96 + 4 * m, 4))
    for n in range(4):
        a("ds_read_b32 v%d, v%d offset:%d\nds_read_b32 v%d, v%d offset:%d", 56 + n, 24 + n, C_IDX, 60 + n, 24 + n, C_IDX + XS)
    for o in rest[2:3]: a(stage(o, 8, "s3"))
    a("s_mov_b64 exec, 0xffff")
    for m in range(6):
        a("v_cvt_pk_bf16_f32 v%d, v%d, v%d", 96 + m, 120 + 4 * m, 120 + 4 * m)
        a("ds_write_b16 v%d, v%d offset:%d", 32 + m, 96 + m, C_VT)
    a("""s_cmp_lg_u32 s26, 3
    s_cbranch_scc1 L_c5
    s_mov_b64 exec, 0x1fff
    s_waitcnt lgkmcnt(6)
    ds_write_b32 v6, v20 offset:%d
    L_c5:
    s_mov_b64 exec, -1""", C_VT + 26 * VS)
    for o in rest[3:]: a(stage(o, 8, "s3"))
    a("s_cmp_ge_u32 s26, 4\ns_cbranch_scc1 L_c9")
    a(stage(100, 4, "s3"))
    a("s_waitcnt vmcnt(4) lgkmcnt(0)\ns_branch L_c10\nL_c9:\ns_waitcnt vmcnt(3) lgkmcnt(0)\nL_c10:\ns_barrier")
    stamp(3)
    def gather(n, sh):
        r = (56 if sh == 0 else 60) + n
        return "s_add_u32 m0, s%d, %d\nv_lshl_add_u32 v%d, v%d, 6, v252\nbuffer_load_dwordx4 v%d, %s, 0 offen lds" % (60 + n, C_X + 1024 * sh, r, r, r, sq(S_TAB))
    wpf = "buffer_load_dword v255, v251, %s, s69 offen" % sq(S_W1)
    a("ds_read_b128 v[96:99], v44 offset:%d\nds_read_b128 v[100:103], v44 offset:%d", C_VT, C_VT + 32)
    def uread(par, base):
        for k in range(4): a("ds_read_b64_tr_b16 %s, v%d offset:%d", vr(base + 2 * k, 2), 40 + k, 48 * par)
    uread(0, 104); uread(1, 112)
    ut = cfg.ORD_U.split(); ft = cfg.ORD_F.split(); mt = cfg.ORD_M.split()
    assert all(t[1] != "3" for t in ut)
    def tok(t): return gather(int(t[1]), int(t[2]))
    for k in range(4): a("v_add_u32 v%d, s67, v%d", 40 + k, 40 + k)
    a("s_mov_b32 s66, 0x7ffffff\ns_mov_b32 s67, 0x7ffffff")
    def umfma(base, acc):
        a("v_mfma_f32_32x32x16_bf16 %s, %s, v[96:99], 0", vr(acc, 16), vr(base, 4))
        a("v_mfma_f32_32x32x16_bf16 %s, %s, v[100:103], %s", vr(acc, 16), vr(base + 4, 4), vr(acc, 16))
    def uwrite(acc, par, areg, tmp):
        for i in range(8 if par else 7): a("v_cvt_pk_bf16_f32 v%d, v%d, v%d", tmp + i, acc + 2 * i, acc + 2 * i + 1)
        w2 = lambda i: a("ds_write2_b32 v%d, v%d, v%d offset0:%d offset1:%d", areg, tmp + i, tmp + i + 1, 2 * i, 2 * i + 1)
        a("s_mov_b64 exec, s[66:67]")
        for i in ((0, 2, 4) if par == 0 else (2, 4)): w2(i)
        a("s_mov_b32 exec_hi, 0")
        if par == 0: a("ds_write_b32 v%d, v%d offset:48", areg, tmp + 6)
        else:
            w2(6); a("ds_write_b32 v%d, v%d offset:4", areg, tmp + 1)
            a("s_mov_b32 exec_lo, 0\ns_mov_b32 exec_hi, s67"); w2(0)
        a("s_mov_b64 exec, -1")
    for t in ut[0:1]: a(tok(t))
    a("s_waitcnt lgkmcnt(4)"); umfma(104, 128)
    uread(0, 176)
    a("s_waitcnt lgkmcnt(4)"); umfma(112, 144)
    uread(1, 184)
    a("s_waitcnt lgkmcnt(4)"); umfma(176, 160)
    lst2(9)
    uwrite(128, 0, 46, 192)
    a("s_waitcnt lgkmcnt(4)"); umfma(184, 128)
    for t in ut[1:2]: a(tok(t))
    uwrite(144, 1, 47, 200)
    for t in ut[2:]: a(tok(t))
    uwrite(160, 0, 48, 192)
    uwrite(128, 1, 49, 200)
    lst2(10)
    a("s_waitcnt vmcnt(%d) lgkmcnt(0)\ns_barrier", len(ut))
    stamp(4)
    for w in range(1, 8): a("s_cmp_eq_u32 s26, %d\ns_cbranch_scc1 L_fold%d", w, w)
    RES = 96
    for w in range(8):
        a("L_fold%d:", w)
        chunks = [w + 8 * k for k in range(5)] + [40 + w]
        parts = []
        for ci, c in enumerate(chunks):
            for qf in range(4):
                rd = []; ops = []
                base = 64 + 4 * ((4 * ci + qf) % 8); nr = 0
                vals = []
                for e in range(2 * qf, 2 * qf + 2):
                    if c < 44:
                        pr = sch["pairs"][c & 1][8 * (c >> 1) + e]
                        if pr is None: vals.append("0"); continue
                        x, y = pr
                        rd.append("ds_read_u16_d16_hi v%d, v50 offset:%d" % (base + nr, 52 * x + 2 * y)); nr += 1
                        if x == y: vals.append("v%d" % (base + nr - 1)); continue
                        rd.append("ds_read_u16_d16_hi v%d, v50 offset:%d" % (base + nr, 52 * y + 2 * x)); nr += 1
                        t = 120 + e
                        ops.append("v_add_f32 v%d, v%d, v%d" % (t, base + nr - 2, base + nr - 1)); vals.append("v%d" % t)
                    else:
                        u = (c - 44) >> 1; h = (c - 44) & 1; p = 8 * u + e
                        if p < 13:
                            rd.append("ds_read_u16_d16_hi v%d, v51 offset:%d" % (base + nr, 2 * fld(h, order[p]))); nr += 1
                            vals.append("v%d" % (base + nr - 1))
                        elif p == 13 and h == 0: vals.append("v21")
                        else: vals.append("0")
                ops.append("v_cvt_pk_bf16_f32 v%d, %s, %s" % (RES + 4 * ci + qf, vals[0], vals[1]))
                parts.append((rd, ops))
        issued = list(ut)
        D = cfg.FD
        for i in range(D):
            for r in parts[i][0]: a(r)
        for i in range(24):
            if i + D < 24:
                for r in parts[i + D][0]: a(r)
            if parts[i][0]: a("s_waitcnt lgkmcnt(%d)", min(15, sum(len(parts[k][0]) for k in range(i + 1, min(24, i + D + 1)))))
            for o in parts[i][1]: a(o)
            if i % 4 == 0:
                t = ft[i // 4]
                if t != "-" and (t[1] != "3" or w < 2): a(tok(t)); issued.append(t)
                if psite[w] == "F%d" % (i // 4): a(wpf); issued.append("P")
        a("s_barrier")
        for ci, c in enumerate(chunks):
            if c < 44: a("ds_write_b128 v52, %s offset:%d", vr(RES + 4 * ci, 4), 64 * (c >> 1) + 16 * (c & 1))
            else: a("s_mov_b32 exec_lo, 0xffff0000\ns_mov_b32 exec_hi, 0xffff0000\nds_write_b128 v52, %s offset:%d\ns_mov_b64 exec, -1", vr(RES + 4 * ci, 4), 1408 + 16 * (c - 44) - 32)
        last0 = max(i for i, t in enumerate(issued) if t[0] == "G" and t[2] == "0")
        assert {t for t in issued + mt if t[0] == "G"} >= {"G%d%d" % (n, sh) for n in range(4 if w < 2 else 3) for sh in range(2)}
        assert all(t[2] == "1" for t in mt)
        a("s_mov_b32 s66, %d", len(issued) - 1 - last0)
        assert len(issued) - 1 - last0 <= 3
        if w < 7: a("s_branch L_folded")
    a("L_folded:")
    stamp(5)
    XP = (16, 24); XF = (44, 70); TMP = 96; Z = (104, 112); FR = 120
    AC = ((144, 160), (176, 192)); RR = 240
    a("""s_lshl_b32 s64, s26, 8
    v_add_u32 v1, s64, v6
    v_mov_b32 v2, 0x3f803f80
    ds_write_b32 v1, v2 offset:%d""", C_X + 26 * XS)
    for T in range(8): a("v_mov_b32 v%d, v%d", 4 + T, 208 + T)
    for t in mt: a("v_lshl_add_u32 v%d, v%d, 6, v252", 232 + int(t[1]), 60 + int(t[1]))
    for i in range(10): a("v_mov_b64 v[%d:%d], 0", 44 + 2 * i, 45 + 2 * i)
    a("""s_lshl_b32 s31, s29, 2
    s_mov_b32 s67, s26
    s_mov_b32 s100, 0
    s_mov_b32 vcc_lo, -1
    s_mov_b32 vcc_hi, 0""")
    for n in range(3): a("s_cmp_eq_u32 s66, %d\ns_cbranch_scc1 L_xw%d", n, n)
    for n in (3, 2, 1, 0): a("L_xw%d:\ns_waitcnt vmcnt(%d) lgkmcnt(0)%s", n, n, "\ns_branch L_xw" if n else "")
    a("L_xw:\ns_barrier")
    stamp(6)
    slot_of = [0, 1] * 11 + [2]
    def frag(g, tau): return FR + 8 * slot_of[g] + 4 * tau
    def rdF(g, tau):
        off = (1408 + 32 * tau) if g == 0 else (64 * (g - 1) + 32 * tau)
        return "ds_read_b128 %s, v11 offset:%d" % (vr(frag(g, tau), 4), off)
    def rdX(sm, T, nxt): return "ds_read_b64_tr_b16 %s, v%d offset:%d" % (vr(XP[sm] + 2 * T, 2), 4 + T, 512 * sm + 1024 * nxt)
    xf = {}
    for i in range(27):
        if order[i] != 26: xf[order[i]] = len(xf)
    def xread(i, sm, nxt):
        f = order[i]; d = slot[pi(f)] - slot[f]
        reg, off = {1: (8, slot[f]), -3: (9, slot[f] - 3), -1: (10, slot[f] - 1)}[d]
        return "ds_read_u16_d16_hi v%d, v%d offset:%d" % (XF[sm] + xf[f], reg, XS * off + 512 * sm + 1024 * nxt)
    def xreads(t, nxt): return [xread(i, sm, nxt) for sm in range(2) for i in sorted(first) if first[i] == t]
    for T in range(2): a(rdX(0, T, 0))
    a(rdF(0, 0))
    for o in xreads(0, 0): a(o)
    for T in range(2, 4): a(rdX(0, T, 0))
    a(rdF(0, 1))
    for T in range(4): a(rdX(1, T, 0))
    for o in xreads(1, 0): a(o)
    a("global_load_short_d16_hi v247, v3, s[18:19]\ns_waitcnt lgkmcnt(0)")
    def zops(t):
        o = []
        for sm in range(2):
            for hf in range(2):
                g = []
                for e in range(4 * hf, 4 * hf + 4):
                    x, y = slots[8 * t + e]
                    g.append("v_mul_f32 v%d, v%d, v%d" % (TMP + e, XF[sm] + xf[x], XF[sm] + xf[y]))
                for e2 in range(2 * hf, 2 * hf + 2):
                    g.append("v_cvt_pk_bf16_f32 v%d, v%d, v%d" % (Z[sm] + 4 * (t % 2) + e2, TMP + 2 * e2, TMP + 2 * e2 + 1))
                o.append(g)
        return o
    def mfc(acc, fr, b, c): return "v_mfma_f32_32x32x16_bf16 %s, %s, %s, %s" % (vr(acc, 16), vr(fr, 4), vr(b, 4), c)
    def epi(sm, dst):
        A0, A1 = AC[sm]; T = TMP + 4 * sm
        o = ["v_mul_f32 v%d, v%d, v%d" % (T + 1, A0, A1), "v_mul_f32 v%d, v%d, v%d" % (T + 2, A0 + 1, A1 + 1),
             "v_mul_f32 v%d, v%d, v%d" % (T, A0 + 12, A1 + 12), "v_fmac_f32 v%d, v%d, v%d" % (T + 1, A0 + 2, A1 + 2), "v_fmac_f32 v%d, v%d, v%d" % (T, A0 + 13, A1 + 13)]
        o += ["v_fmac_f32 v%d, v%d, v%d" % (T + 1 + i % 2, A0 + i, A1 + i) for i in range(3, 12)]
        o += ["v_cndmask_b32 v%d, 0, v%d, vcc" % (T, T), "v_add_f32 v%d, v%d, v%d" % (T + 1, T + 1, T + 2), "v_add_f32 v%d, v%d, v%d" % (dst, T, T + 1)]
        return o
    a("L_cloop:")
    dq = []
    def ds(t, tag): a(t); dq.append(tag)
    def dwait(tag):
        if tag not in dq: return
        n = len(dq) - 1 - max(i for i, t in enumerate(dq) if t == tag)
        a("s_waitcnt lgkmcnt(%d)", min(n, 15))
    def lst(k):
        if cfg.SL == 1: stamp(k)
    xq = [(t, o) for t in range(2, 22) for o in xreads(t, 0)]
    nsite = [0]
    def site(cond, body):
        nsite[0] += 1
        a("%s\ns_cbranch_scc0 L_site%d\n%s\nL_site%d:", cond, nsite[0], body, nsite[0])
    def extras(t, g):
        if g == 0:
            gn = (t + 2) % 23
            ds(rdF(gn, 0), ("F", gn if gn else -1)); ds(rdF(gn, 1), ("F", gn if gn else -1)); return
        if g == 1 and 0 <= t < len(mt):
            n = int(mt[t][1])
            site("s_cmp_lt_u32 s67, %d" % (2 if n == 3 else 8), "s_add_u32 m0, s%d, %d\ns_nop 0\nbuffer_load_dwordx4 v%d, %s, 0 offen lds" % (60 + n, C_X + 1024, 232 + n, sq(S_TAB))); return
        if g == 2 and "M%d" % t in psite:
            site("s_cmp_eq_u32 s67, %d" % psite.index("M%d" % t), wpf); return
        if (t, g) == (cfg.T_BAR, 1): site("s_cmp_lt_u32 s67, 8", "s_waitcnt vmcnt(0)\ns_barrier"); return
        if (t, g) == (cfg.T_BAR, 2): a("buffer_load_dword v248, off, %s, s31 sc1\ns_nop 0", sq(S_DBG)); return
        if g == 1 and 16 <= t < 20:
            assert cfg.T_BAR < 16
            ds(rdX(0, t - 16, 1), "X"); ds(rdX(1, t - 16, 1), "X"); return
        for k in range(2):
            if xq: ds(xq.pop(0)[1], "x")
            else: a("s_nop 0")
    z0 = zops(0)
    a(mfc(AC[0][1], frag(0, 0), XP[0], "0")); extras(-1, 0)
    for o in epi(1, RR + 1): a(o)
    a(mfc(AC[0][1], frag(0, 1), XP[0] + 4, vr(AC[0][1], 16))); extras(-1, 1)
    for o in z0[0]: a(o)
    a(mfc(AC[1][1], frag(0, 0), XP[1], "0")); extras(-1, 2)
    for o in z0[1] + z0[2][:4]: a(o)
    a(mfc(AC[1][1], frag(0, 1), XP[1] + 4, vr(AC[1][1], 16))); extras(-1, 3)
    for o in z0[2][4:] + z0[3]: a(o)
    for t in range(21):
        g = t + 1
        assert not xq or xq[0][0] - 3 >= t
        if t == 3: lst(1)
        if t == 10: lst(2)
        if t == cfg.T_BAR: lst(3)
        if t == cfg.T_BAR + 1: lst(4)
        dwait(("F", g))
        zn = zops(t + 1)
        for k, (tau, sm) in enumerate([(tau, sm) for tau in range(2) for sm in range(2)]):
            a(mfc(AC[sm][tau], frag(g, tau), Z[sm] + 4 * (t % 2), "0" if (t == 0 and tau == 0) else vr(AC[sm][tau], 16)))
            if cfg.PRIO: a("s_setprio 0")
            extras(t, k)
            for i, o in enumerate(zn[k]):
                a(o)
                if i + 1 == cfg.PRIO: a("s_setprio 1")
    lst(5)
    dwait(("F", 22))
    nx = xreads(0, 1) + xreads(1, 1)
    a(mfc(AC[0][0], frag(22, 0), Z[0] + 4, vr(AC[0][0], 16))); extras(21, 0)
    for o in nx[:6]: ds(o, "n")
    a(mfc(AC[0][1], frag(22, 1), Z[0] + 4, vr(AC[0][1], 16)))
    for o in nx[6:12]: ds(o, "n")
    a(mfc(AC[1][0], frag(22, 0), Z[1] + 4, vr(AC[1][0], 16)))
    for o in nx[12:]: ds(o, "n")
    a("""s_waitcnt vmcnt(0)
    v_readfirstlane_b32 s64, v248
    s_cmp_lt_u32 s64, 4
    s_cbranch_scc1 L_notyet
    s_mov_b32 s100, 1
    buffer_load_dword v249, v244, %s, 0 offen sc1
    L_notyet:""", sq(S_WS))
    a(mfc(AC[1][1], frag(22, 1), Z[1] + 4, vr(AC[1][1], 16)))
    a("s_cmp_eq_u32 s67, 99\ns_mov_b32 s67, 99")
    a("v_mov_b32 v%d, v%d", RR, RR + 2)
    for o in epi(0, RR + 2): a(o)
    for T in range(7): a("v_add_u32 v%d, 0x400, v%d", 4 + T, 4 + T)
    a("s_waitcnt lgkmcnt(0)")
    if cfg.STAMP:
        a("s_cbranch_scc1 L_cfin"); stamp(7); a("s_branch L_cloop")
    else: a("s_cbranch_scc0 L_cloop")
    a("L_cfin:")
    if cfg.SL != 2: stamp(8)
    for o in epi(1, RR + 3): a(o)
    a("""v_permlane32_swap_b32 v%d, v%d
    s_cmp_eq_u32 s100, 1
    s_cbranch_scc1 L_cok
    s_mov_b32 s65, 0x20000
    L_cspin:
    buffer_load_dword v248, off, %s, s31 sc1
    s_waitcnt vmcnt(0)
    v_readfirstlane_b32 s64, v248
    s_sub_u32 s65, s65, 1
    s_cbranch_scc1 L_cgo
    s_cmp_lt_u32 s64, 4
    s_cbranch_scc1 L_cspin
    L_cgo:
    buffer_load_dword v249, v244, %s, 0 offen sc1
    L_cok:
    v_permlane32_swap_b32 v%d, v%d
    v_add_f32 v%d, v%d, v%d
    v_add_f32 v%d, v%d, v%d
    s_mov_b32 s65, 0x20000
    s_nop 0
    v_permlane16_swap_b32 v%d, v%d
    v_add_f32 v%d, v%d, v%d""", RR, RR + 1, sq(S_DBG), sq(S_WS), RR + 2, RR + 3, RR, RR, RR + 1, RR + 2, RR + 2, RR + 3, RR, RR + 2, RR, RR, RR + 2)
    if cfg.SL != 2: stamp(9)
    a("""L_pspin:
    s_waitcnt vmcnt(0)
    v_cmp_eq_u32 vcc, -1, v249
    s_cbranch_vccz L_pok
    s_sub_u32 s65, s65, 1
    s_cbranch_scc1 L_pok
    buffer_load_dword v249, v244, %s, 0 offen sc1
    s_branch L_pspin
    L_pok:
    v_add_f32 v%d, v%d, v249""", sq(S_WS), RR, RR)
    for sh in (8, 4, 2, 1):
        a("s_nop 1\nv_add_f32_dpp v%d, v%d, v%d row_ror:%d row_mask:0xf bank_mask:0xf", RR, RR, RR, sh)
    a("""v_add_f32 v%d, v%d, v247
    v_cvt_pk_bf16_f32 v%d, v%d, v%d
    buffer_store_short v%d, v246, %s, 0 offen""", RR, RR, RR, RR, RR, RR, sq(S_OUT))
    stamp(11)
    if cfg.PROBE == "spin":
        a("s_waitcnt lgkmcnt(0)\nL_sp:\ns_memrealtime s[64:65]\ns_waitcnt lgkmcnt(0)\ns_sub_u32 s64, s64, s70\ns_cmp_lt_u32 s64, %d\ns_cbranch_scc1 L_sp", cfg.PN * 100)
    dump_stamps()
    a("s_endpgm")
    cin_text = a.L; cut_cin = next(i for i, l in enumerate(cin_text) if l.startswith("L_fold0:")) - 14
    head = cin_text[:cut_cin]; tail = cin_text[cut_cin:]
    a.L = []

    a("L_loader:")
    def lst3(k):
        if cfg.SL == 3: stamp(k)
    lst3(6)
    srd(a, S_TAB, 6, 6400000)
    if cfg.TLB:
        a("s_cmp_lt_u32 s66, %d\ns_cbranch_scc1 L_notlb\nv_mul_u32_u24 v34, 100000, v0\nbuffer_load_dword v35, v34, %s, 0 offen\nL_notlb:", cfg.WPF_D, sq(S_TAB))
    else:
        a("s_cmp_lt_u32 s66, %d\ns_cbranch_scc1 L_notlb\nbuffer_load_dword v35, off, %s, 0\nL_notlb:", cfg.WPF_D, sq(S_TAB))
    stamp(1)
    a("s_mul_i32 s65, s30, 416")
    for ii in range(4):
        if ii < 3: a("s_mul_i32 s64, s66, 192\ns_add_u32 s64, s64, %d", 64 * ii)
        else: a("s_mov_b32 s64, 768")
        a("""v_add_u32 v2, s64, v0
        v_mul_u32_u24 v3, 2521, v2
        v_lshrrev_b32 v3, 16, v3
        v_mul_u32_u24 v4, 26, v3
        v_sub_u32 v4, v2, v4
        v_lshrrev_b32 v5, 1, v3
        v_xor_b32 v5, v5, v3
        v_bfe_u32 v5, v5, 2, 1
        v_mul_u32_u24 v5, 12, v5
        v_xor_b32 v3, v3, v5
        v_mul_u32_u24 v3, 1664, v3
        v_lshl_add_u32 v3, v4, 4, v3
        v_add_u32 v%d, s65, v3""", 10 + ii if ii < 3 else 9)
    lst3(7)
    srd(a, S_WS, 24, WSN); srd(a, S_DBG, 22, 256)
    a("""s_lshl_b32 s64, s29, 12
    s_lshl_b32 s65, s30, 10
    s_add_u32 s64, s64, s65
    s_lshl_b32 s65, s66, 8
    s_add_u32 s64, s64, s65
    s_add_u32 s64, s64, %d
    v_lshl_add_u32 v31, v0, 2, s64
    v_mov_b32 v30, -1
    v_mov_b32 v32, 1
    s_mul_i32 s62, s66, 3072
    s_add_u32 s62, s62, 8192
    s_lshl_b32 s63, s66, 11
    v_lshrrev_b32 v2, 2, v0
    v_mul_u32_u24 v2, 104, v2
    s_mul_i32 s68, s30, %d
    s_mul_i32 s69, s68, 53248
    s_lshl_b32 s64, s68, 2
    s_add_u32 s64, s64, s67
    v_add_u32 v14, s64, v2
    v_and_b32 v2, 3, v0
    v_bfe_u32 v3, v0, 4, 1
    v_lshlrev_b32 v3, 1, v3
    v_xor_b32 v2, v2, v3
    v_lshlrev_b32 v13, 4, v2""", WS_BOX, cfg.ROT)
    def ldB(s):
        a("s_cmp_lg_u32 s66, %d\ns_cbranch_scc1 L_q%d\ns_mov_b32 m0, %d\ns_nop 0\nbuffer_load_dwordx4 v9, %s, s69 offen lds\nL_q%d:", s % 4, s, (s % cfg.R) * SLOT + 20480, sq(S_W1), s)
        for ii in range(3):
            a("s_add_u32 m0, s62, %d\ns_nop 0", (s % cfg.R) * SLOT + 1024 * ii)
            a("buffer_load_dwordx4 v%d, %s, s69 offen lds", 10 + ii, sq(S_W1)); vm(("st", s))
        a("s_add_u32 s69, s69, 53248")
        if s >= 25 - 3 * cfg.ROT: a("s_cmp_eq_u32 s69, %d\ns_cselect_b32 s69, 0, s69", 26 * 53248)
    ireg = lambda n: 16 + 2 * (n % 4)
    def rdI(n):
        r = 14
        if n >= 26 - 3 * cfg.ROT:
            a("s_cmp_ge_u32 s68, %d\ns_cselect_b32 s64, 104, 0\nv_subrev_u32 v15, s64, v14", 26 - n); r = 15
        a("ds_read_b32 v%d, v%d offset:%d\nds_read_b32 v%d, v%d offset:%d", ireg(n), r, 4 * n, ireg(n) + 1, r, 4 * n + 1664)
    def ldA(s):
        for ii in range(2):
            a("s_add_u32 m0, s63, %d", (s % cfg.R) * SLOT + 1024 * ii)
            a("v_lshl_add_u32 v%d, v%d, 6, v13", ireg(s) + ii, ireg(s) + ii)
            a("buffer_load_dwordx4 v%d, %s, 0 offen lds", ireg(s) + ii, sq(S_TAB)); vm(("st", s))
    if cfg.APF:
        a("v_and_b32 v2, 7, v0\ns_lshl_b32 s64, s30, 3\nv_add_u32 v2, s64, v2\nv_mul_u32_u24 v2, 104, v2\nv_lshrrev_b32 v3, 3, v0\nv_lshl_add_u32 v2, v3, 2, v2\ns_add_u32 s64, s67, %d\nv_add_u32 v36, s64, v2\nv_cmp_gt_u32 vcc, %d, v3\nv_mov_b32 v38, %d", 4 * cfg.AP0, cfg.APF - cfg.AP0, OOB)
    lst3(8)
    wait_for(lambda t: t == "idx")
    stamp(2)
    for s in range(cfg.NI): rdI(s)
    if cfg.APF: a("ds_read_b32 v36, v36")
    def apf():
        if cfg.APF: a("s_waitcnt lgkmcnt(0)\nv_lshlrev_b32 v36, 6, v36\nv_cndmask_b32 v36, v38, v36, vcc\nbuffer_load_dword v37, v36, %s, 0 offen", sq(S_TAB)); vm("apf")
    if not cfg.AP0: apf()
    for s in range(cfg.NI):
        a("s_waitcnt lgkmcnt(%d)", 2 * (cfg.NI - 1 - s) + (1 if cfg.APF else 0))
        ldA(s)
        if cfg.AP0 and s == 0: apf()
        ldB(s)
    st = dict(nxt=cfg.NI, nrd=cfg.NI)
    def read_ahead(upto):
        while st["nrd"] <= min(upto, 25): rdI(st["nrd"]); st["nrd"] += 1
    assert cfg.NI + cfg.CATCH <= 4 + cfg.NI and cfg.NI <= 4
    read_ahead(st["nxt"] + cfg.CATCH - 1)
    stamp(3)
    wait_for(lambda t: t == ("st", 0))
    stamp(11)
    a("s_barrier")
    stamp(4)
    def issue(limit):
        todo = [n for n in range(st["nxt"], min(st["nxt"] + cfg.CATCH, 26)) if n <= limit]
        if not todo: return
        a("s_waitcnt lgkmcnt(0)")
        for n in todo: ldA(n); ldB(n)
        st["nxt"] = todo[-1] + 1
        read_ahead(st["nxt"] + cfg.CATCH - 1)
    issue(cfg.R - 1)
    marks = {2: 5, 5: 6, 9: 7, 14: 8, 19: 9} if cfg.SL != 3 else {}
    for s in range(26):
        if s == 24: a("s_waitcnt vmcnt(0)")
        elif s + 1 <= 25: wait_for(lambda t: t == ("st", s + 1))
        a("s_barrier")
        if s in marks: stamp(marks[s])
        issue(s + cfg.R)
        if s == 8:
            a("buffer_store_dword v30, v31, %s, 0 offen sc1", sq(S_WS)); vm("sent")
        if s == 24:
            assert st["nxt"] == 26
            a("s_cmp_lg_u32 s66, 0\ns_cbranch_scc1 L_noat\ns_lshl_b32 s64, s29, 2\ns_mov_b64 exec, 1\nbuffer_atomic_add v32, off, %s, s64\ns_mov_b64 exec, -1\nL_noat:", sq(S_DBG))
    stamp(10)
    dump_stamps()
    a("s_endpgm")
    loader = a.L; a.L = []

    a("L_comp:")
    ACC = lambda tt, rt: 104 + 16 * tt + 4 * rt
    W2R = 208
    XFr = lambda st_, rt: 16 + 44 * st_ + 4 * rt
    WFr = lambda st_, tt: 32 + 44 * st_ + 4 * tt
    a("""s_and_b32 s66, s26, 1
    s_lshr_b32 s67, s26, 1
    v_and_b32 v1, 15, v0
    v_lshrrev_b32 v2, 4, v0
    v_bfe_u32 v3, v0, 2, 1
    v_lshlrev_b32 v3, 1, v3
    v_xor_b32 v3, v3, v2
    v_lshlrev_b32 v3, 4, v3
    v_lshl_add_u32 v3, v1, 6, v3
    s_lshl_b32 s64, s66, 12
    s_lshl_b32 s65, s67, 11
    s_add_u32 s64, s64, s65
    v_add_u32 v4, s64, v3
    v_xor_b32 v5, 0x800, v4
    v_lshrrev_b32 v3, 5, v0
    v_bfe_u32 v8, v0, 4, 1
    v_lshlrev_b32 v3, 4, v3
    v_lshl_add_u32 v3, v8, 2, v3
    v_bfe_u32 v8, v0, 2, 2
    v_add_u32 v3, v3, v8
    v_mul_u32_u24 v3, 416, v3
    v_and_b32 v8, 3, v0
    v_lshl_add_u32 v3, v8, 3, v3
    s_mul_i32 s64, s67, 224
    s_add_u32 s64, s64, 8192
    v_add_u32 v6, s64, v3
    v_add_u32 v7, %d, v3""", 8192 + 192)
    a("""s_mul_i32 s64, s30, 416
    s_mul_i32 s65, s67, 192
    s_add_u32 s64, s64, s65
    v_lshl_add_u32 v8, v0, 3, s64
    s_mul_i32 s65, s26, 896
    s_add_u32 s65, s65, %d
    v_lshl_add_u32 v9, v0, 4, s65
    v_lshl_add_u32 v11, v2, 4, s65
    s_lshl_b32 s64, s67, 6
    v_add_u32 v10, s64, v11
    s_mul_i32 s64, s67, 384
    s_sub_u32 s64, 384, s64
    v_add_u32 v11, s64, v11
    s_waitcnt lgkmcnt(0)
    s_mov_b64 exec, 0xfffffff
    global_load_dwordx2 v[12:13], v8, s[14:15]
    global_load_dwordx2 v[14:15], v8, s[16:17]
    s_mov_b64 exec, -1""", D_BW)
    stamp(1)
    srd(a, S_WS, 24, WSN)
    a("""s_lshl_b32 s64, s29, 12
    s_lshl_b32 s65, s30, 10
    s_add_u32 s64, s64, s65
    s_lshl_b32 s65, s67, 9
    s_add_u32 s64, s64, s65
    s_lshl_b32 s65, s66, 8
    s_add_u32 s64, s64, s65
    s_add_u32 s64, s64, %d
    s_lshl_b32 s65, s67, 5
    v_xor_b32 v1, s65, v0
    v_lshl_add_u32 v244, v1, 2, s64
    s_waitcnt vmcnt(0)
    s_mov_b64 exec, 0xfffffff
    v_lshlrev_b32 v16, 16, v12
    v_and_b32 v17, 0xffff0000, v12
    v_lshlrev_b32 v18, 16, v13
    v_and_b32 v19, 0xffff0000, v13
    v_lshlrev_b32 v20, 16, v14
    v_and_b32 v21, 0xffff0000, v14
    v_lshlrev_b32 v22, 16, v15
    v_and_b32 v23, 0xffff0000, v15
    ds_write_b128 v9, v[16:19]
    ds_write_b128 v9, v[20:23] offset:448
    s_mov_b64 exec, -1
    s_waitcnt lgkmcnt(0)""", WS_BOX)
    for tt in range(7):
        ar, off = (10, 64 * tt) if tt < 6 else (11, 0)
        for rt in range(4 if tt < 6 else 2): a("ds_read_b128 %s, v%d offset:%d", vr(ACC(tt, rt), 4), ar, off)
        a("ds_read_b128 %s, v%d offset:%d", vr(W2R + 4 * tt, 4), ar, off + 448)
    a("""s_mov_b32 s66, 1
    s_mov_b32 s67, 13
    s_mov_b32 s68, %d
    s_mov_b32 s69, %d
    s_mov_b32 s62, 0x%x
    s_mov_b32 s63, 0x%x
    v_mov_b32 v8, 0x%x
    v_mov_b32 v9, 0x%x
    v_mov_b64 v[236:237], 0
    v_mov_b64 v[238:239], 0
    v_mov_b64 v[240:241], 0
    v_mov_b64 v[242:243], 0
    s_waitcnt lgkmcnt(0)""", -(cfg.R - 1) * SLOT, SLOT, f32bits(c2), f32bits(c2), f32bits(c1), f32bits(c1))
    def reads(st_):
        x = lambda rt: "ds_read_b128 %s, v%d offset:%d" % (vr(XFr(st_, rt), 4), 4 + rt // 2, 1024 * (rt & 1))
        w = lambda tt, u: "ds_read_b64_tr_b16 %s, v%d offset:%d" % (vr(WFr(st_, tt) + 2 * u, 2), 6 if tt < 6 else 7, (32 * tt if tt < 6 else 0) + 3328 * u)
        return [x(0), w(0, 0), w(0, 1), x(1), x(2), x(3)] + [w(tt, u) for tt in range(1, 7) for u in range(2)]
    def mf(st_, tt, rt): return "v_mfma_f32_16x16x32_bf16 %s, %s, %s, %s" % (vr(ACC(tt, rt), 4), vr(WFr(st_, tt), 4), vr(XFr(st_, rt), 4), vr(ACC(tt, rt), 4))
    stamp(6)
    a("s_barrier")
    stamp(2)
    for r in reads(0): a(r)
    for k in range(4): a("v_add_u32 v%d, s69, v%d", 4 + k, 4 + k)
    a("L_dloop:")
    for st_ in range(2):
        a("s_waitcnt lgkmcnt(0)\ns_barrier")
        r = reads(1 - st_)
        fill = r + ["s_add_u32 s66, s66, 1\ns_cmp_eq_u32 s66, %d" % cfg.R, "s_cselect_b32 s64, s68, s69\ns_cselect_b32 s66, 0, s66"] + ["v_add_u32 v%d, s64, v%d" % (4 + k, 4 + k) for k in range(4)]
        if st_ == 1: fill += ["s_sub_u32 s67, s67, 1\ns_cmp_lg_u32 s67, 0"]
        ms = [(tt, rt) for tt in range(7) for rt in range(4 if tt < 6 else 2)]
        for k, (tt, rt) in enumerate(ms):
            a(mf(st_, tt, rt))
            if k < len(fill): a(fill[k])
    a("s_cbranch_scc1 L_dloop")
    stamp(3)
    def gelu(acc, w2, T):
        P = range(4)
        x = lambda i: vr(acc + 2 * i, 2); t = lambda i: vr(T + 2 * i, 2)
        for i in P: a("v_pk_mul_f32 %s, %s, %s", t(i), x(i), x(i))
        for i in P: a("v_pk_fma_f32 %s, %s, s[62:63], v[8:9]", t(i), t(i))
        for i in P: a("v_pk_mul_f32 %s, %s, %s", t(i), t(i), x(i))
        for i in range(8): a("v_exp_f32 v%d, v%d", T + i, T + i)
        for i in P: a("v_pk_mul_f32 %s, %s, %s", x(i), x(i), vr(w2 + 2 * (i & 1), 2))
        for i in P: a("v_pk_add_f32 %s, %s, 1.0 op_sel_hi:[1,0]", t(i), t(i))
        for i in range(8): a("v_rcp_f32 v%d, v%d", T + i, T + i)
    def gelu_fin(acc, T, rt):
        for i in (0, 2, 1, 3): a("v_pk_fma_f32 %s, %s, %s, %s", vr(236 + 2 * (rt + i // 2), 2), vr(acc + 2 * i, 2), vr(T + 2 * i, 2), vr(236 + 2 * (rt + i // 2), 2))
    a("s_waitcnt lgkmcnt(0)")
    pend = None; k = 0
    for tt in range(7):
        for rt in ((0, 2) if tt < 6 else (0,)):
            T = 16 + 8 * (k % 2); k += 1
            gelu(ACC(tt, rt), W2R + 4 * tt, T)
            if pend: gelu_fin(*pend)
            pend = (ACC(tt, rt), T, rt)
    a("s_nop 0"); gelu_fin(*pend)
    a("""v_add_f32 v236, v236, v237
    v_add_f32 v240, v240, v241
    v_add_f32 v238, v238, v239
    v_add_f32 v242, v242, v243
    v_permlane32_swap_b32 v236, v240
    s_nop 0
    v_permlane32_swap_b32 v238, v242
    v_add_f32 v236, v236, v240
    v_add_f32 v238, v238, v242
    s_nop 1
    v_permlane16_swap_b32 v236, v238
    v_add_f32 v236, v236, v238
    buffer_store_dword v236, v244, %s, 0 offen sc1""", sq(S_WS))
    stamp(4)
    dump_stamps()
    a("L_end:\ns_endpgm")
    comp = a.L
    k1 = next(i for i, l in enumerate(loader) if "s_barrier" in l)
    k2 = next(i for i, l in enumerate(comp) if l.startswith("L_dloop:"))
    body = "\n".join(head + ["    s_branch L_cin2"] + loader + comp + ["L_cin2:"] + tail) + "\n"

    hdr = open("standalone__deep_cross_xdeepfm__recsys.s.ref").read().split("; Override launch")[0]
    out = hdr + "; Written by the author's own generator script. Workgroups with (id>>3)<16 run a 128x208 tile of the MLP GEMM,\n; the others fold the CIN weights, evaluate the two quadratic forms per column and combine.\n"
    out += "; @launch grid=(256,1,1) block=(512,1,1) lds=163840\n"
    out += '.amdgcn_target "amdgcn-amd-amdhsa--gfx950"\n.text\n.globl %s\n.p2align 8\n.type %s,@function\n%s:\n' % (KN, KN, KN)
    out += body + "L_codeend:\n"
    out += """.section .rodata,"a"
.p2align 6
.amdhsa_kernel %s
  .amdhsa_next_free_vgpr 256
  .amdhsa_next_free_sgpr 102
  .amdhsa_accum_offset 256
  .amdhsa_group_segment_fixed_size 0
  .amdhsa_kernarg_size 88
  .amdhsa_user_sgpr_count 2
  .amdhsa_user_sgpr_kernarg_segment_ptr 1
  .amdhsa_system_sgpr_workgroup_id_x 1
  .amdhsa_float_denorm_mode_32 3
.end_amdhsa_kernel
""" % KN
    return out, lint(body)

if __name__ == "__main__":
    cfg = Cfg()
    path = sys.argv[1]
    for kv in sys.argv[2:]:
        k, v = kv.split("=")
        old = getattr(cfg, k)
        v = v.replace("_", " ") if k.startswith("ORD") or k == "PSITE" else v
        setattr(cfg, k, v if isinstance(old, str) else (bool(int(v)) if isinstance(old, bool) else int(v)))
    out, nb = generate(cfg)
    open(path, "w").write(out)
    print("written", path, "hazards:", nb)
```

```python
import sys, math, struct
from scheme import build as build_scheme, pi
from lint import lint

KN = "standalone__deep_cross_xdeepfm__recsys_kernel"
class Cfg:
    NI = 2
    CATCH = 1
    R = 6
    WPF_D = 4
    TLB = 1
    AP0 = 0
    APF = 4
    GF0 = 4
    ORD_U = "G00 G01 G10"
    ORD_F = "G20 G30 G11 - - -"
    ORD_M = "G21 G31"
    PSITE = "F1 F3 F5 M1 M3 M5 M7 M9"
    NS1 = 4
    ROT = 0
    PRE2 = 2
    B2 = 0
    FPRIO = 1
    FD = 3
    T_BAR = 14
    PRIO = 1
    STAMP = False
    RT = 0
    SL = 0
    CODEPF = True
    PROBE = "none"
    PN = 64
    PX = -1
def f32bits(x): return struct.unpack("<I", struct.pack("<f", x))[0]
class A:
    def __init__(s): s.L = []
    def __call__(s, t, *a):
        if a: t = t % a
        for l in t.split("\n"):
            l = l.strip()
            if l: s.L.append(l if l.endswith(":") else "    " + l)
    def text(s): return "\n".join(s.L) + "\n"
def vr(a, n): return "v[%d:%d]" % (a, a + n - 1)

SLOT = 21504
XS = 2112
C_X = 0
C_VT = 26 * XS - 64
VS = 80
C_WC = 23 * XS + 8
C_IDX = 24 * XS
C_ST = 27 * XS
C_W0 = C_ST; C_W1 = C_ST + 35152; C_W2 = C_ST + 70304
C_U = C_W2 + 4; C_L = C_U + 35152
T0 = 19
C_FA = C_W1; FSA = (4 * T0 + 5) * 16
C_FB = C_W0; FSB = (4 * (22 - T0) + 1) * 16
assert 26 * FSA <= 35152
assert C_L + 1352 <= 163840 and C_ST + 104 * 1024 <= 163840
WS_BOX = 0; WS_ST = 262144
OOB = 0x7ff00000
def srd(a, s, ptr, n):
    a("s_mov_b32 s%d, s%d\ns_mov_b32 s%d, s%d\ns_mov_b32 s%d, %d\ns_mov_b32 s%d, 0x20000", s, ptr, s + 1, ptr + 1, s + 2, n, s + 3)
S_IDX, S_TAB, S_W1, S_WS, S_WC, S_DBG, S_OUT, S_M = 32, 36, 40, 44, 48, 52, 56, 96
def sq(s): return "s[%d:%d]" % (s, s + 3)

def generate(cfg):
    sch = build_scheme()
    order = sch["order"]; fld = sch["fld"]; slot = sch["slot"]; first = sch["first"]; slots = sch["slots"]
    D_IDX = cfg.R * SLOT; D_BW = D_IDX + 13312
    assert D_BW + 3584 <= 163840
    a = A()
    def stamp(k):
        if cfg.STAMP: a("%s s[%d:%d]", "s_memrealtime" if cfg.RT else "s_memtime", 72 + 2 * k, 73 + 2 * k)
    def dump_stamps():
        if not cfg.STAMP: return
        a("s_memrealtime s[64:65]\ns_waitcnt vmcnt(0) lgkmcnt(0)\nv_mov_b32 v239, s64")
        for k in range(12): a("v_mov_b32 v%d, s%d", 224 + k, 72 + 2 * k)
        a("v_mov_b32 v236, s70\nv_mov_b32 v237, s2\nv_mov_b32 v238, s26")
        a("s_lshl_b32 s64, s2, 3\ns_add_u32 s64, s64, s26\ns_lshl_b32 s64, s64, 6\ns_add_u32 s64, s64, %d", WS_ST)
        a("v_mov_b32 v240, s64\ns_mov_b64 exec, 1")
        srd(a, S_WS, 24, 0x100000)
        for k in range(4): a("buffer_store_dwordx4 v[%d:%d], v240, %s, 0 offen offset:%d", 224 + 4 * k, 227 + 4 * k, sq(S_WS), 16 * k)
    WSN = 0x100000 if cfg.STAMP else WS_BOX + 131072
    c1 = -2.0 * math.log2(math.e) * math.sqrt(2.0 / math.pi); c2 = c1 * 0.044715

    a("s_cmp_ge_u32 s2, 256\ns_cbranch_scc1 L_end")
    if cfg.STAMP:
        for k in range(12): a("s_mov_b32 s%d, 0", 72 + 2 * k)
    if cfg.STAMP or cfg.PROBE == "spin": a("s_memrealtime s[70:71]")
    stamp(0)
    a("""s_load_dwordx16 s[4:19], s[0:1], 0
    s_load_dwordx4 s[20:23], s[0:1], 64
    s_load_dwordx2 s[24:25], s[0:1], 80
    v_lshrrev_b32 v1, 6, v0
    v_and_b32 v0, 63, v0
    s_lshr_b32 s28, s2, 3
    v_readfirstlane_b32 s26, v1""")
    if cfg.CODEPF:
        a("""s_getpc_b64 s[64:65]
        L_pfbase:
        s_cmp_lg_u32 s26, 7
        s_cbranch_scc1 L_nopf
        s_lshl_b32 s66, s28, 10
        v_and_b32 v2, 7, v0
        v_lshl_add_u32 v2, v2, 7, s66
        v_min_u32 v2, L_codeend-L_pfbase-4, v2
        global_load_dword v255, v2, s[64:65]
        L_nopf:""")
    a("""s_and_b32 s27, s2, 7
    s_and_b32 s30, s28, 3
    s_bfe_u32 s29, s28, 0x20002
    s_lshl_b32 s64, s27, 2
    s_add_u32 s29, s29, s64
    v_lshlrev_b32 v2, 4, v0
    v_lshlrev_b32 v251, 7, v0
    s_cmp_ge_u32 s28, 16
    s_cbranch_scc1 L_cin
    s_cmp_lt_u32 s26, 4
    s_cbranch_scc1 L_comp""")
    q = []
    def vm(tag): q.append(tag)
    def wait_for(pred):
        last = max(i for i, t in enumerate(q) if pred(t))
        n = len(q) - 1 - last
        assert n < 64
        a("s_waitcnt vmcnt(%d)", n)
    a("""s_sub_u32 s66, s26, 4
    s_lshl_b32 s64, s29, 2
    s_add_u32 s64, s64, s66
    s_mul_i32 s64, s64, 3328
    s_mul_i32 s67, s66, 3328
    s_add_u32 s67, s67, %d
    s_mov_b32 m0, s67
    s_lshl_b32 s65, s66, 4
    s_add_u32 s65, s65, s28
    s_lshl_b32 s65, s65, 13
    s_waitcnt lgkmcnt(0)""", D_IDX)
    srd(a, S_IDX, 4, 425984)
    for i in range(4):
        if i == 3: a("s_mov_b64 exec, 0xffff")
        a("buffer_load_dwordx4 v2, %s, s64 offen offset:%d lds", sq(S_IDX), 1024 * i); vm("idx")
    a("s_mov_b64 exec, -1")
    srd(a, S_W1, 12, 1384448)
    a("s_cmp_ge_u32 s66, %d\ns_cbranch_scc1 L_loader\nbuffer_load_dword v35, v251, %s, s65 offen\ns_branch L_loader", cfg.WPF_D, sq(S_W1))
    vm("wpf")
    if cfg.SL == 3:
        k = max(i for i, l in enumerate(a.L) if "s_cmp_ge_u32 s66" in l); sv = a.L[k:]; a.L = a.L[:k]; stamp(5); a.L += sv

    a("L_cin:")
    NE = 16 * cfg.WPF_D
    psite = cfg.PSITE.split()
    def lst2(k):
        if cfg.SL == 2: stamp(k)
    def lst4(k):
        if cfg.SL == 4: stamp(k)
    def lst5(k):
        if cfg.SL == 5: stamp(k)
    def stage(lo, cnt, sreg):
        hi = lo + cnt - 1
        f = lambda o: 68 + o if o < 36 else (o - 2 if o < 70 else o - 70)
        if f(hi) - f(lo) == cnt - 1:
            return "s_add_u32 m0, %s, %d\ns_add_u32 s64, %s, %d\nbuffer_load_dwordx4 v2, %s, s64 offen lds" % (sreg, 1024 * f(lo) + C_ST, sreg, 1024 * f(lo), sq(S_WC))
        cut = (36 if hi < 70 else 70) - lo
        return "s_mov_b32 s65, %d\ns_cmp_lt_u32 %s, %d\ns_cselect_b32 s64, s65, %d\ns_add_u32 s64, s64, %s\ns_add_u32 m0, s64, %d\ns_nop 0\nbuffer_load_dwordx4 v2, %s, s64 offen lds" % (1024 * f(lo), sreg, 1024 * cut, 1024 * (f(hi) - cnt + 1), sreg, C_ST, sq(S_WC))
    a("""s_sub_u32 s31, s28, 16
    s_lshl_b32 s3, s26, 10
    v_lshlrev_b32 v6, 2, v0
    s_lshl_b32 s64, s29, 3
    s_lshl_b32 s65, s30, 1
    s_add_u32 s64, s64, s65
    s_add_u32 s64, s64, s26
    s_mul_i32 s66, s64, 1664
    s_mul_i32 s65, s26, %d
    s_add_u32 s67, s65, %d
    s_lshl_b32 s68, s31, 13
    s_and_b32 s101, s3, 0x7ff
    s_lshr_b32 s64, s26, 2
    s_lshl_b32 s64, s64, 11
    s_add_u32 s101, s101, s64
    s_waitcnt lgkmcnt(0)""", XS, C_IDX)
    srd(a, S_WC, 8, 105456)
    a("s_bitcmp1_b32 s26, 1\ns_cbranch_scc0 L_c1")
    a(stage(32, 4, "s101"))
    a("s_branch L_c4\nL_c1:\ns_cmp_ge_u32 s26, 4\ns_cbranch_scc1 L_c2\ns_mov_b32 m0, s67")
    srd(a, S_IDX, 4, 425984)
    a("""buffer_load_dwordx4 v2, %s, s66 offen lds
    buffer_load_dwordx4 v2, %s, s66 offen offset:1024 lds
    s_branch L_c4
    L_c2:
    s_cmp_eq_u32 s26, 5
    s_cbranch_scc1 L_c3
    buffer_load_dword v255, v251, %s, s68 offen
    s_branch L_c4
    L_c3:
    s_mov_b32 m0, %d""", sq(S_IDX), sq(S_IDX), sq(S_WC), C_WC)
    srd(a, S_M, 10, 156)
    a("buffer_load_dword v6, %s, 0 offen lds\nL_c4:", sq(S_M))
    for n in range(4): a(stage(8 * n, 8, "s3"))
    stamp(1)
    a("""s_mul_i32 s64, s26, 272
    v_add_u32 v1, s64, v6
    v_mov_b32 v3, 0
    ds_write_b32 v1, v3 offset:%d
    ds_write_b32 v1, v3 offset:%d
    v_lshrrev_b32 v5, 4, v0
    v_lshlrev_b32 v38, 4, v5
    v_and_b32 v7, 15, v0
    v_lshrrev_b32 v1, 5, v0
    v_lshl_add_u32 v8, v1, 4, v7
    v_min_u32 v8, 25, v8
    v_lshlrev_b32 v9, 1, v8
    v_mov_b32 v21, 0
    v_mov_b32 v247, 0
    v_bfe_u32 v23, v0, 2, 2
    v_bfe_u32 v22, v0, 4, 1
    v_and_b32 v13, 3, v0
    v_lshlrev_b32 v13, 3, v13""", C_VT, C_VT + 16)
    a("""v_lshl_add_u32 v4, v5, 3, v23
    v_add_u32 v15, 4, v4
    v_min_u32 v4, 25, v4
    v_min_u32 v15, 25, v15
    v_mul_u32_u24 v4, 1352, v4
    v_mul_u32_u24 v15, 1352, v15
    s_and_b32 s65, s26, 1
    s_mul_i32 s64, s26, 52
    s_lshl_b32 s67, s65, 2
    s_sub_u32 s64, s64, s67
    s_add_u32 s64, s64, %d
    v_add3_u32 v10, v4, v13, s64
    v_add3_u32 v11, v15, v13, s64
    s_mul_i32 s67, s65, %d
    s_lshl_b32 s64, s26, 1
    s_sub_u32 s64, s64, s67
    s_add_u32 s64, s64, %d
    v_mul_u32_u24 v32, %d, v7
    v_add_u32 v32, s64, v32
    s_cmp_eq_u32 s65, 0
    s_cselect_b32 s68, 0, 3
    s_xor_b32 s68, s68, 0xffff
    s_cmp_eq_u32 s65, 0
    s_cselect_b32 s27, 0x3ff, 0
    s_cselect_b32 s65, 0, 0xfff
    s_or_b32 s27, s27, s65""", C_W2, 2 * VS, C_VT, VS)
    srd(a, S_TAB, 6, 6400000); srd(a, S_W1, 12, 1384448)
    a("""v_lshl_add_u32 v4, v1, 3, v23
    v_lshl_add_u32 v15, v22, 5, v13
    s_mul_i32 s64, s26, 104
    s_add_u32 s64, s64, %d
    v_mul_u32_u24 v40, 1352, v4
    v_add3_u32 v40, v40, v15, s64
    v_add_u32 v41, %d, v40
    v_add_u32 v14, 16, v4
    v_add_u32 v4, 20, v4
    v_min_u32 v14, 25, v14
    v_min_u32 v4, 25, v4
    v_mul_u32_u24 v14, 1352, v14
    v_mul_u32_u24 v4, 1352, v4
    v_add3_u32 v42, v14, v15, s64
    v_add3_u32 v43, v4, v15, s64
    v_and_b32 v4, 31, v0
    v_min_u32 v44, 26, v4
    v_mul_u32_u24 v44, %d, v44
    v_lshl_add_u32 v44, v1, 4, v44
    v_mul_u32_u24 v15, 52, v4
    v_add_u32 v15, %d, v15
    v_mov_b32 v14, %d
    v_cmp_gt_u32 vcc, 26, v4
    v_mov_b32 v24, 104
    v_mov_b32 v25, 2704
    v_cndmask_b32 v15, v14, v15, vcc
    v_cndmask_b32 v14, v24, v25, vcc
    v_subrev_u32 v24, 16, v4
    v_lshl_add_u32 v15, v1, 3, v15
    v_cndmask_b32 v24, v24, v4, vcc
    s_add_u32 s67, s26, 8
    s_min_u32 s67, s67, 12
    v_mad_u32_u24 v46, v14, s26, v15
    v_mad_u32_u24 v48, v14, s67, v15
    v_lshrrev_b32 v14, 1, v14
    v_add3_u32 v47, v46, v14, -4
    v_add3_u32 v49, v48, v14, -4
    s_sub_u32 s67, s67, s26
    s_mul_i32 s67, s67, 104
    v_mul_u32_u24 v25, %d, v24
    v_lshl_add_u32 v25, v1, 4, v25
    v_add_u32 v215, %d, v25
    v_mul_u32_u24 v25, %d, v24
    v_lshl_add_u32 v25, v1, 4, v25
    v_add_u32 v12, %d, v25""", C_W1, 4 * 1352, VS, C_U, C_L, FSA, C_FA, FSB, C_FB)
    a("""s_lshr_b32 s100, s26, 2
    s_lshl_b32 s65, s100, 5
    v_lshlrev_b32 v4, 1, v4
    v_xor_b32 v4, s65, v4
    s_lshl_b32 s64, s26, 6
    v_add_u32 v4, s64, v4
    v_mul_u32_u24 v14, %d, v1
    v_add_u32 v212, v4, v14
    v_sub_u32 v4, v4, v14
    v_add_u32 v214, %d, v4
    v_sub_u32 v4, v4, v14
    v_sub_u32 v4, v4, v14
    v_add_u32 v213, %d, v4
    v_lshl_add_u32 v4, v1, 2, v23
    v_lshlrev_b32 v4, 3, v4
    v_xor_b32 v15, s100, v22
    v_lshl_add_u32 v15, v15, 5, v13
    v_add_u32 v15, s64, v15""", XS, XS, 3 * XS)
    for T in range(4):
        by = [slot[fld(h, order[4 * T + rr])] for h in range(2) for rr in range(4)]
        lo = sum(b << (8 * i) for i, b in enumerate(by[:4])); hi = sum(b << (8 * i) for i, b in enumerate(by[4:]))
        a("s_mov_b32 s64, 0x%x\ns_mov_b32 s65, 0x%x\nv_lshrrev_b64 v[28:29], v4, s[64:65]\nv_and_b32 v28, 0xff, v28\nv_mul_u32_u24 v28, %d, v28\nv_add_u32 v%d, v28, v15", lo, hi, XS, 208 + T)
    a("""v_mul_u32_u24 v50, 1352, v8
    v_mul_u32_u24 v15, %d, v22
    v_add_u32 v50, v50, v15
    v_add_u32 v50, %d, v50
    v_mul_u32_u24 v51, 52, v8
    v_add_u32 v51, %d, v51
    v_mul_u32_u24 v52, %d, v8
    v_lshl_add_u32 v52, v22, 5, v52
    v_add_u32 v52, %d, v52
    v_mul_u32_u24 v39, %d, v8
    v_lshl_add_u32 v39, v22, 5, v39
    v_add_u32 v39, %d, v39""", C_U - C_W0, C_W0, C_L, FSA, C_FA, FSB, C_FB)
    a("""v_lshrrev_b32 v15, 2, v0
    v_mul_u32_u24 v15, 104, v15
    v_and_b32 v14, 3, v0
    v_lshlrev_b32 v4, 1, v22
    v_xor_b32 v14, v14, v4
    v_lshlrev_b32 v252, 4, v14
    s_lshl_b32 s66, s26, 3""")
    for n in range(4):
        by = [slot[(cfg.GF0 + 8 * n + w) % 26] for w in range(8)]
        lo = sum(b << (8 * i) for i, b in enumerate(by[:4])); hi = sum(b << (8 * i) for i, b in enumerate(by[4:]))
        a("s_mov_b32 s64, 0x%x\ns_mov_b32 s65, 0x%x\ns_lshr_b64 s[64:65], s[64:65], s66\ns_and_b32 s64, s64, 0xff\ns_mul_i32 s%d, s64, %d", lo, hi, 60 + n, XS)
        a("s_add_u32 s64, s26, %d\ns_cmp_ge_u32 s64, 26\ns_cselect_b32 s65, 26, 0\ns_sub_u32 s64, s64, s65\ns_lshl_b32 s64, s64, 2\nv_add_u32 v%d, s64, v15", (cfg.GF0 + 8 * n) % 26, 24 + n)
    for r in list(range(64, 96, 2)) + list(range(216, 232, 2)) + [236, 238]: a("v_mov_b64 v[%d:%d], 0", r, r + 1)
    a("s_lshl_b32 s64, s26, 4\ns_add_u32 s64, s64, s31\ns_add_u32 s64, s64, %d\ns_lshl_b32 s69, s64, 13", NE)
    srd(a, S_WS, 24, WSN); srd(a, S_DBG, 22, 256); srd(a, S_OUT, 20, 8192)
    a("""v_lshl_add_u32 v4, v22, 1, v1
    v_lshl_add_u32 v4, v4, 3, s26
    s_lshl_b32 s64, s30, 5
    v_add_u32 v4, s64, v4
    v_lshlrev_b32 v14, 2, v4
    v_lshl_add_u32 v14, v7, 9, v14
    s_lshl_b32 s64, s29, 12
    s_add_u32 s64, s64, %d
    v_add_u32 v14, s64, v14
    v_mov_b32 v15, %d
    v_cmp_gt_u32 vcc, 8, v7
    s_lshl_b32 s64, s29, 8
    v_lshl_add_u32 v4, v4, 1, s64
    v_cndmask_b32 v244, v15, v14, vcc
    v_cmp_eq_u32 vcc, 0, v7
    s_nop 1
    v_cndmask_b32 v246, v15, v4, vcc""", WS_BOX, OOB)
    a("s_lshl_b32 s64, s26, 8\nv_add_u32 v33, s64, v6\nv_mov_b32 v34, 0x3f803f80")
    lst2(8)
    a("s_and_b32 s101, s3, 0xfff\ns_cmp_ge_u32 s26, 4\ns_cbranch_scc1 L_c7")
    for n in range(9): a(stage(36 + 4 * n, 4, "s101"))
    a("s_waitcnt vmcnt(9) lgkmcnt(0)\ns_branch L_c8\nL_c7:")
    for n in range(cfg.NS1): a(stage(72 + 4 * n, 4, "s101"))
    a("s_waitcnt vmcnt(%d) lgkmcnt(0)\nL_c8:\ns_barrier", cfg.NS1)
    stamp(2)
    a("ds_read_b128 v[16:19], v38 offset:%d", C_WC + 104)
    def vread(m):
        a("ds_read_b64_tr_b16 %s, v10 offset:%d", vr(96 + 4 * m, 2), 416 * (m >> 1) + 32 * (m & 1))
        a("ds_read_b64_tr_b16 %s, v11 offset:%d", vr(98 + 4 * m, 2), 416 * (m >> 1) + 32 * (m & 1))
    def vmul(m): a("v_mfma_f32_16x16x32_bf16 %s, v[16:19], %s, 0", vr(128 + 4 * m, 4), vr(96 + 4 * m, 4))
    def vwrite(ms):
        for jh in range(2):
            a("s_mov_b32 exec_lo, %s", "s68" if jh == 0 else "s27")
            for m in ms:
                if m & 1 == jh:
                    a("v_cvt_pk_bf16_f32 v%d, v%d, v%d", 96 + m, 128 + 4 * m, 128 + 4 * m)
                    a("ds_write_b16 v32, v%d offset:%d", 96 + m, 16 * VS * jh + 16 * (m >> 1))
    for m in range(6): vread(m)
    rest = list(range(72 + 4 * cfg.NS1, 104, 4))
    for m in range(6):
        a("s_waitcnt lgkmcnt(%d)", 2 * (5 - m)); vmul(m)
    lst4(8)
    a("s_cmp_ge_u32 s26, 2\ns_cbranch_scc1 L_v1")
    vread(6); vread(7)
    a("L_v1:")
    a("ds_read_b32 v20, v6 offset:%d\nds_read_u16_d16_hi v21, v9 offset:%d\ns_mov_b32 exec_hi, 0", C_WC + 52, C_WC)
    vwrite(range(6))
    a("s_cmp_ge_u32 s26, 2\ns_cbranch_scc1 L_v2\ns_mov_b64 exec, -1\ns_waitcnt lgkmcnt(8)")
    vmul(6); vmul(7)
    a("s_nop 6\ns_mov_b32 exec_hi, 0")
    vwrite((6, 7))
    a("""L_v2:
    s_cmp_lg_u32 s26, 3
    s_cbranch_scc1 L_c5
    s_mov_b32 exec_lo, 0x1fff
    s_waitcnt lgkmcnt(6)
    ds_write_b32 v6, v20 offset:%d
    L_c5:
    s_mov_b64 exec, -1""", C_VT + 26 * VS)
    for n in range(4):
        a("ds_read_b32 v%d, v%d offset:%d\nds_read_b32 v%d, v%d offset:%d", 56 + n, 24 + n, C_IDX, 60 + n, 24 + n, C_IDX + XS)
    lst4(9)
    a("s_cmp_ge_u32 s26, 4\ns_cbranch_scc1 L_c9\ns_waitcnt vmcnt(0)\nL_c9:")
    lst4(10)
    a("s_waitcnt lgkmcnt(0)\ns_barrier")
    stamp(3)
    def gather(n, sh):
        r = (56 if sh == 0 else 60) + n
        return "s_add_u32 m0, s%d, %d\nv_lshl_add_u32 v%d, v%d, 6, v252\nbuffer_load_dwordx4 v%d, %s, 0 offen lds" % (60 + n, C_X + 1024 * sh, r, r, r, sq(S_TAB))
    wpf = "buffer_load_dword v255, v251, %s, s69 offen" % sq(S_W1)
    a("ds_read_b128 v[96:99], v44 offset:%d\nds_read_b128 v[100:103], v44 offset:%d", C_VT, C_VT + 32)
    def uread(par, base):
        for k in range(4): a("ds_read_b64_tr_b16 %s, v%d offset:%d", vr(base + 2 * k, 2), 40 + k, 48 * par)
    uread(0, 104); uread(1, 112)
    ut = cfg.ORD_U.split(); ft = cfg.ORD_F.split(); mt = cfg.ORD_M.split()
    assert all(t[1] != "3" for t in ut)
    def tok(t): return gather(int(t[1]), int(t[2]))
    for k in range(4): a("v_add_u32 v%d, s67, v%d", 40 + k, 40 + k)
    a("s_mov_b32 s66, 0x7ffffff\ns_mov_b32 s67, 0x7ffffff")
    def umfma(base, acc):
        a("v_mfma_f32_32x32x16_bf16 %s, %s, v[96:99], 0", vr(acc, 16), vr(base, 4))
        a("v_mfma_f32_32x32x16_bf16 %s, %s, v[100:103], %s", vr(acc, 16), vr(base + 4, 4), vr(acc, 16))
    def uwrite(acc, par, areg, tmp):
        for i in range(8 if par else 7): a("v_cvt_pk_bf16_f32 v%d, v%d, v%d", tmp + i, acc + 2 * i, acc + 2 * i + 1)
        w2 = lambda i: a("ds_write2_b32 v%d, v%d, v%d offset0:%d offset1:%d", areg, tmp + i, tmp + i + 1, 2 * i, 2 * i + 1)
        a("s_mov_b64 exec, s[66:67]")
        for i in ((0, 2, 4) if par == 0 else (2, 4)): w2(i)
        a("s_mov_b32 exec_hi, 0")
        if par == 0: a("ds_write_b32 v%d, v%d offset:48", areg, tmp + 6)
        else:
            w2(6); a("ds_write_b32 v%d, v%d offset:4", areg, tmp + 1)
            a("s_mov_b32 exec_lo, 0\ns_mov_b32 exec_hi, s67"); w2(0)
        a("s_mov_b64 exec, -1")
    a("s_cmp_ge_u32 s26, 4\ns_cbranch_scc1 L_u0")
    for o in rest: a(stage(o, 4, "s101"))
    a("L_u0:")
    a("s_waitcnt lgkmcnt(4)"); umfma(104, 128)
    uread(0, 176)
    a("s_waitcnt lgkmcnt(4)"); umfma(112, 144)
    uread(1, 184)
    a("s_nop 0")
    lst2(9)
    uwrite(128, 0, 46, 192)
    a("s_bitcmp1_b32 0x2f, s26\ns_cbranch_scc0 L_u1")
    a("s_waitcnt lgkmcnt(8)"); umfma(176, 160)
    a("L_u1:\ns_bitcmp1_b32 0x4f, s26\ns_cbranch_scc0 L_u2")
    a("s_waitcnt lgkmcnt(4)"); umfma(184, 128)
    a("L_u2:")
    for t in ut[0:1]: a(tok(t))
    uwrite(144, 1, 47, 200)
    for t in ut[1:]: a(tok(t))
    a("s_bitcmp1_b32 0x2f, s26\ns_cbranch_scc0 L_u3")
    uwrite(160, 0, 48, 192)
    a("L_u3:\ns_bitcmp1_b32 0x4f, s26\ns_cbranch_scc0 L_u4")
    uwrite(128, 1, 49, 200)
    a("L_u4:")
    lst2(10)
    a("s_waitcnt lgkmcnt(0)"); lst5(8)
    a("s_waitcnt vmcnt(%d)", len(ut)); lst5(9)
    a("s_barrier")
    stamp(4)
    a("ds_write_b32 v33, v34 offset:%d", C_X + 26 * XS)
    for w in range(1, 8): a("s_cmp_eq_u32 s26, %d\ns_cbranch_scc1 L_fold%d", w, w)
    RES = 96
    for w in range(8):
        a("L_fold%d:", w)
        chunks = [w + 8 * k for k in range(5)] + [40 + w]
        chunks.sort(key=lambda c: 2 * T0 <= c < 44)
        late = chunks[5] if 2 * T0 <= chunks[5] < 44 else None
        assert not 2 * T0 <= chunks[4] < 44
        def fwrite(ci):
            c = chunks[ci]
            if c < 44: return ["ds_write_b128 v52, %s offset:%d" % (vr(RES + 4 * ci, 4), 64 * (c >> 1) + 16 * (c & 1))]
            return ["s_mov_b32 exec_lo, 0xffff0000", "s_mov_b32 exec_hi, 0xffff0000", "ds_write_b128 v52, %s offset:%d" % (vr(RES + 4 * ci, 4), 64 * T0 + 16 * (c - 44) - 32), "s_mov_b64 exec, -1"]
        parts = []
        for ci, c in enumerate(chunks):
            for qf in range(4):
                rd = []; ops = []
                base = 64 + 4 * ((4 * ci + qf) % 8); nr = 0
                vals = []
                for e in range(2 * qf, 2 * qf + 2):
                    if c < 44:
                        pr = sch["pairs"][c & 1][8 * (c >> 1) + e]
                        if pr is None: vals.append("0"); continue
                        x, y = pr
                        rd.append("ds_read_u16_d16_hi v%d, v50 offset:%d" % (base + nr, 52 * x + 2 * y)); nr += 1
                        if x == y: vals.append("v%d" % (base + nr - 1)); continue
                        rd.append("ds_read_u16_d16_hi v%d, v50 offset:%d" % (base + nr, 52 * y + 2 * x)); nr += 1
                        t = 120 + e
                        ops.append("v_add_f32 v%d, v%d, v%d" % (t, base + nr - 2, base + nr - 1)); vals.append("v%d" % t)
                    else:
                        u = (c - 44) >> 1; h = (c - 44) & 1; p = 8 * u + e
                        if p < 13:
                            rd.append("ds_read_u16_d16_hi v%d, v51 offset:%d" % (base + nr, 2 * fld(h, order[p]))); nr += 1
                            vals.append("v%d" % (base + nr - 1))
                        elif p == 13 and h == 0: vals.append("v21")
                        else: vals.append("0")
                ops.append("v_cvt_pk_bf16_f32 v%d, %s, %s" % (RES + 4 * ci + qf, vals[0], vals[1]))
                parts.append((rd, ops))
        issued = list(ut)
        D = cfg.FD
        fq = []
        def rd(i):
            for r in parts[i][0]: a(r); fq.append(i)
        for i in range(D): rd(i)
        for i in range(24):
            if cfg.FPRIO and i % 4 == 0 and i // 4 in (0, 2, 3, 4): a("s_setprio %d", {0: 3, 2: 2, 3: 1, 4: 0}[i // 4])
            if i + D < 24: rd(i + D)
            if parts[i][0]: a("s_waitcnt lgkmcnt(%d)", min(15, len(fq) - 1 - max(k for k, x in enumerate(fq) if x == i)))
            for o in parts[i][1]: a(o)
            if i % 4 == 3 and (i < 23 or late is None):
                for o in fwrite(i // 4): a(o)
                fq.append(-1)
            if i % 4 == 0:
                t = ft[i // 4]
                if t != "-" and (t[1] != "3" or w < 2): a(tok(t)); issued.append(t)
                if psite[w] == "F%d" % (i // 4): a(wpf); issued.append("P")
        lst5(10)
        a("s_mov_b32 s101, %d", -1 if late is None else 64 * ((late >> 1) - T0) + 16 * (late & 1))
        last0 = max(i for i, t in enumerate(issued) if t[0] == "G" and t[2] == "0")
        assert {t for t in issued + mt if t[0] == "G"} >= {"G%d%d" % (n, sh) for n in range(4 if w < 2 else 3) for sh in range(2)}
        assert all(t[2] == "1" for t in mt)
        a("s_mov_b32 s66, %d", len(issued) - 1 - last0)
        assert len(issued) - 1 - last0 <= 3
        if w < 7: a("s_branch L_folded")
    a("L_folded:")
    stamp(5)
    XP = (16, 24); XFL = list(range(64, 96)) + list(range(216, 232)) + list(range(236, 240)); TMP = 96; Z = (104, 112); FR = 120
    AC = ((144, 160), (176, 192)); RR = 240
    a("v_add_u32 v39, s101, v39")
    for t in mt: a("v_lshl_add_u32 v%d, v%d, 6, v252", 232 + int(t[1]), 60 + int(t[1]))
    a("""s_lshl_b32 s31, s29, 2
    s_mov_b32 s67, s26
    s_mov_b32 s100, 0
    s_mov_b32 vcc_lo, -1
    s_mov_b32 vcc_hi, 0""")
    for n in range(3): a("s_cmp_eq_u32 s66, %d\ns_cbranch_scc1 L_xw%d", n, n)
    for n in (3, 2, 1, 0): a("L_xw%d:\ns_waitcnt vmcnt(%d) lgkmcnt(0)%s", n, n, "\ns_branch L_xw" if n else "")
    a("L_xw:\ns_barrier")
    a("s_cmp_lt_i32 s101, 0\ns_cbranch_scc1 L_nolate\nds_write_b128 v39, v[116:119]\nL_nolate:")
    stamp(6)
    slot_of = [0, 1] * 11 + [2]
    def frag(g, tau): return FR + 8 * slot_of[g] + 4 * tau
    def rdF(g, tau):
        reg, off = (215, 64 * T0 + 32 * tau) if g == 0 else ((215, 64 * (g - 1) + 32 * tau) if g - 1 < T0 else (12, 64 * (g - 1 - T0) + 32 * tau))
        return "ds_read_b128 %s, v%d offset:%d" % (vr(frag(g, tau), 4), reg, off)
    def rdX(sm, T, nxt): return "ds_read_b64_tr_b16 %s, v%d offset:%d" % (vr(XP[sm] + 2 * T, 2), 208 + T, 512 * sm + 1024 * nxt)
    xf = {}
    for i in range(27):
        if order[i] != 26: xf[order[i]] = len(xf)
    def xread(i, sm, nxt):
        f = order[i]; d = slot[pi(f)] - slot[f]
        reg, off = {1: (212, slot[f]), -3: (213, slot[f] - 3), -1: (214, slot[f] - 1)}[d]
        return "ds_read_u16_d16_hi v%d, v%d offset:%d" % (XFL[26 * sm + xf[f]], reg, XS * off + 512 * sm + 1024 * nxt)
    def xreads(t, nxt): return [xread(i, sm, nxt) for sm in range(2) for i in sorted(first) if first[i] == t]
    for T in range(2): a(rdX(0, T, 0))
    a(rdF(0, 0))
    for o in xreads(0, 0): a(o)
    for T in range(2, 4): a(rdX(0, T, 0))
    a(rdF(0, 1))
    for T in range(4): a(rdX(1, T, 0))
    for o in xreads(1, 0): a(o)
    a("global_load_short_d16_hi v247, v3, s[18:19]\ns_waitcnt lgkmcnt(0)")
    def zops(t):
        o = []
        for sm in range(2):
            for hf in range(2):
                g = []
                for e in range(4 * hf, 4 * hf + 4):
                    x, y = slots[8 * t + e]
                    g.append("v_mul_f32 v%d, v%d, v%d" % (TMP + e, XFL[26 * sm + xf[x]], XFL[26 * sm + xf[y]]))
                for e2 in range(2 * hf, 2 * hf + 2):
                    g.append("v_cvt_pk_bf16_f32 v%d, v%d, v%d" % (Z[sm] + 4 * (t % 2) + e2, TMP + 2 * e2, TMP + 2 * e2 + 1))
                o.append(g)
        return o
    def mfc(acc, fr, b, c): return "v_mfma_f32_32x32x16_bf16 %s, %s, %s, %s" % (vr(acc, 16), vr(fr, 4), vr(b, 4), c)
    def epi(sm, dst):
        A0, A1 = AC[sm]; T = TMP + 4 * sm
        o = ["v_mul_f32 v%d, v%d, v%d" % (T + 1, A0, A1), "v_mul_f32 v%d, v%d, v%d" % (T + 2, A0 + 1, A1 + 1),
             "v_mul_f32 v%d, v%d, v%d" % (T, A0 + 12, A1 + 12), "v_fmac_f32 v%d, v%d, v%d" % (T + 1, A0 + 2, A1 + 2), "v_fmac_f32 v%d, v%d, v%d" % (T, A0 + 13, A1 + 13)]
        o += ["v_fmac_f32 v%d, v%d, v%d" % (T + 1 + i % 2, A0 + i, A1 + i) for i in range(3, 12)]
        o += ["v_cndmask_b32 v%d, 0, v%d, vcc" % (T, T), "v_add_f32 v%d, v%d, v%d" % (T + 1, T + 1, T + 2), "v_add_f32 v%d, v%d, v%d" % (dst, T, T + 1)]
        return o
    a("L_cloop:")
    dq = []
    def ds(t, tag): a(t); dq.append(tag)
    def dwait(tag):
        if tag not in dq: return
        n = len(dq) - 1 - max(i for i, t in enumerate(dq) if t == tag)
        a("s_waitcnt lgkmcnt(%d)", min(n, 15))
    def lst(k):
        if cfg.SL == 1: stamp(k)
    xq = [(t, o) for t in range(2, 22) for o in xreads(t, 0)]
    nsite = [0]
    def site(cond, body):
        nsite[0] += 1
        a("%s\ns_cbranch_scc0 L_site%d\n%s\nL_site%d:", cond, nsite[0], body, nsite[0])
    def extras(t, g):
        if g == 0:
            gn = (t + 2) % 23
            ds(rdF(gn, 0), ("F", gn if gn else -1)); ds(rdF(gn, 1), ("F", gn if gn else -1)); return
        if g == 1 and 0 <= t < len(mt):
            n = int(mt[t][1])
            site("s_cmp_lt_u32 s67, %d" % (2 if n == 3 else 8), "s_add_u32 m0, s%d, %d\ns_nop 0\nbuffer_load_dwordx4 v%d, %s, 0 offen lds" % (60 + n, C_X + 1024, 232 + n, sq(S_TAB))); return
        if g == 2 and "M%d" % t in psite:
            site("s_cmp_eq_u32 s67, %d" % psite.index("M%d" % t), wpf); return
        if (t, g) == (cfg.T_BAR, 1): site("s_cmp_lt_u32 s67, 8", "s_waitcnt vmcnt(0)\ns_barrier"); return
        if (t, g) == (cfg.T_BAR, 2): a("buffer_load_dword v248, off, %s, s31 sc1\ns_nop 0", sq(S_DBG)); return
        if g == 1 and 16 <= t < 20:
            assert cfg.T_BAR < 16
            ds(rdX(0, t - 16, 1), "X"); ds(rdX(1, t - 16, 1), "X"); return
        for k in range(2):
            if xq: ds(xq.pop(0)[1], "x")
            else: a("s_nop 0")
    z0 = zops(0)
    a(mfc(AC[0][1], frag(0, 0), XP[0], "0")); extras(-1, 0)
    for o in epi(1, RR + 1): a(o)
    a(mfc(AC[0][1], frag(0, 1), XP[0] + 4, vr(AC[0][1], 16))); extras(-1, 1)
    for o in z0[0]: a(o)
    a(mfc(AC[1][1], frag(0, 0), XP[1], "0")); extras(-1, 2)
    for o in z0[1] + z0[2][:4]: a(o)
    a(mfc(AC[1][1], frag(0, 1), XP[1] + 4, vr(AC[1][1], 16))); extras(-1, 3)
    for o in z0[2][4:] + z0[3]: a(o)
    for t in range(21):
        g = t + 1
        assert not xq or xq[0][0] - 3 >= t
        if t == 3: lst(1)
        if t == 10: lst(2)
        if t == cfg.T_BAR: lst(3)
        if t == cfg.T_BAR + 1: lst(4)
        dwait(("F", g))
        zn = zops(t + 1)
        for k, (tau, sm) in enumerate([(tau, sm) for tau in range(2) for sm in range(2)]):
            a(mfc(AC[sm][tau], frag(g, tau), Z[sm] + 4 * (t % 2), "0" if (t == 0 and tau == 0) else vr(AC[sm][tau], 16)))
            if cfg.PRIO: a("s_setprio 0")
            extras(t, k)
            for i, o in enumerate(zn[k]):
                a(o)
                if i + 1 == cfg.PRIO: a("s_setprio 1")
    lst(5)
    dwait(("F", 22))
    nx = xreads(0, 1) + xreads(1, 1)
    a(mfc(AC[0][0], frag(22, 0), Z[0] + 4, vr(AC[0][0], 16))); extras(21, 0)
    for o in nx[:6]: ds(o, "n")
    a(mfc(AC[0][1], frag(22, 1), Z[0] + 4, vr(AC[0][1], 16)))
    for o in nx[6:12]: ds(o, "n")
    a(mfc(AC[1][0], frag(22, 0), Z[1] + 4, vr(AC[1][0], 16)))
    for o in nx[12:]: ds(o, "n")
    a("""s_waitcnt vmcnt(0)
    v_readfirstlane_b32 s64, v248
    s_cmp_lt_u32 s64, 4
    s_cbranch_scc1 L_notyet
    s_mov_b32 s100, 1
    buffer_load_dword v249, v244, %s, 0 offen sc1
    L_notyet:""", sq(S_WS))
    a(mfc(AC[1][1], frag(22, 1), Z[1] + 4, vr(AC[1][1], 16)))
    a("s_cmp_eq_u32 s67, 99\ns_mov_b32 s67, 99")
    a("v_mov_b32 v%d, v%d", RR, RR + 2)
    for o in epi(0, RR + 2): a(o)
    for T in range(7): a("v_add_u32 v%d, 0x400, v%d", 208 + T, 208 + T)
    a("s_waitcnt lgkmcnt(0)")
    if cfg.STAMP:
        a("s_cbranch_scc1 L_cfin"); stamp(7); a("s_branch L_cloop")
    else: a("s_cbranch_scc0 L_cloop")
    a("L_cfin:")
    if cfg.SL < 2: stamp(8)
    for o in epi(1, RR + 3): a(o)
    a("""v_permlane32_swap_b32 v%d, v%d
    s_cmp_eq_u32 s100, 1
    s_cbranch_scc1 L_cok
    s_mov_b32 s65, 0x20000
    L_cspin:
    buffer_load_dword v248, off, %s, s31 sc1
    s_waitcnt vmcnt(0)
    v_readfirstlane_b32 s64, v248
    s_sub_u32 s65, s65, 1
    s_cbranch_scc1 L_cgo
    s_cmp_lt_u32 s64, 4
    s_cbranch_scc1 L_cspin
    L_cgo:
    buffer_load_dword v249, v244, %s, 0 offen sc1
    L_cok:
    v_permlane32_swap_b32 v%d, v%d
    v_add_f32 v%d, v%d, v%d
    v_add_f32 v%d, v%d, v%d
    s_mov_b32 s65, 0x20000
    s_nop 0
    v_permlane16_swap_b32 v%d, v%d
    v_add_f32 v%d, v%d, v%d""", RR, RR + 1, sq(S_DBG), sq(S_WS), RR + 2, RR + 3, RR, RR, RR + 1, RR + 2, RR + 2, RR + 3, RR, RR + 2, RR, RR, RR + 2)
    if cfg.SL < 2: stamp(9)
    a("""L_pspin:
    s_waitcnt vmcnt(0)
    v_cmp_eq_u32 vcc, -1, v249
    s_cbranch_vccz L_pok
    s_sub_u32 s65, s65, 1
    s_cbranch_scc1 L_pok
    buffer_load_dword v249, v244, %s, 0 offen sc1
    s_branch L_pspin
    L_pok:
    v_add_f32 v%d, v%d, v249""", sq(S_WS), RR, RR)
    for sh in (8, 4, 2, 1):
        a("s_nop 1\nv_add_f32_dpp v%d, v%d, v%d row_ror:%d row_mask:0xf bank_mask:0xf", RR, RR, RR, sh)
    a("""v_add_f32 v%d, v%d, v247
    v_cvt_pk_bf16_f32 v%d, v%d, v%d
    buffer_store_short v%d, v246, %s, 0 offen""", RR, RR, RR, RR, RR, RR, sq(S_OUT))
    stamp(11)
    if cfg.PROBE == "spin":
        if cfg.PX >= 0: a("s_and_b32 s64, s2, 7\ns_cmp_lg_u32 s64, %d\ns_cbranch_scc1 L_end", cfg.PX)
        a("s_waitcnt lgkmcnt(0)\nL_sp:\ns_memrealtime s[64:65]\ns_waitcnt lgkmcnt(0)\ns_sub_u32 s64, s64, s70\ns_cmp_lt_u32 s64, %d\ns_cbranch_scc1 L_sp", cfg.PN * 100)
    dump_stamps()
    a("s_endpgm")
    cin_text = a.L; cut_cin = next(i for i, l in enumerate(cin_text) if l.startswith("L_fold0:")) - 14
    head = cin_text[:cut_cin]; tail = cin_text[cut_cin:]
    a.L = []

    a("L_loader:")
    def lst3(k):
        if cfg.SL == 3: stamp(k)
    lst3(6)
    srd(a, S_TAB, 6, 6400000)
    if cfg.TLB:
        a("s_cmp_lt_u32 s66, %d\ns_cbranch_scc1 L_notlb\nv_mul_u32_u24 v34, 100000, v0\nbuffer_load_dword v35, v34, %s, 0 offen\nL_notlb:", cfg.WPF_D, sq(S_TAB))
    else:
        a("s_cmp_lt_u32 s66, %d\ns_cbranch_scc1 L_notlb\nbuffer_load_dword v35, off, %s, 0\nL_notlb:", cfg.WPF_D, sq(S_TAB))
    stamp(1)
    a("s_mul_i32 s65, s30, 416")
    for ii in range(4):
        if ii < 3: a("s_mul_i32 s64, s66, 192\ns_add_u32 s64, s64, %d", 64 * ii)
        else: a("s_mov_b32 s64, 768")
        a("""v_add_u32 v2, s64, v0
        v_mul_u32_u24 v3, 2521, v2
        v_lshrrev_b32 v3, 16, v3
        v_mul_u32_u24 v4, 26, v3
        v_sub_u32 v4, v2, v4
        v_lshrrev_b32 v5, 1, v3
        v_xor_b32 v5, v5, v3
        v_bfe_u32 v5, v5, 2, 1
        v_mul_u32_u24 v5, 12, v5
        v_xor_b32 v3, v3, v5
        v_mul_u32_u24 v3, 1664, v3
        v_lshl_add_u32 v3, v4, 4, v3
        v_add_u32 v%d, s65, v3""", 10 + ii if ii < 3 else 9)
    lst3(7)
    srd(a, S_WS, 24, WSN); srd(a, S_DBG, 22, 256)
    a("""s_lshl_b32 s64, s29, 12
    s_lshl_b32 s65, s30, 10
    s_add_u32 s64, s64, s65
    s_lshl_b32 s65, s66, 8
    s_add_u32 s64, s64, s65
    s_add_u32 s64, s64, %d
    v_lshl_add_u32 v31, v0, 2, s64
    v_mov_b32 v30, -1
    v_mov_b32 v32, 1
    s_mul_i32 s62, s66, 3072
    s_add_u32 s62, s62, 8192
    s_lshl_b32 s63, s66, 11
    v_lshrrev_b32 v2, 2, v0
    v_mul_u32_u24 v2, 104, v2
    s_mul_i32 s68, s30, %d
    s_mul_i32 s69, s68, 53248
    s_lshl_b32 s64, s68, 2
    s_add_u32 s64, s64, s67
    v_add_u32 v14, s64, v2
    v_and_b32 v2, 3, v0
    v_bfe_u32 v3, v0, 4, 1
    v_lshlrev_b32 v3, 1, v3
    v_xor_b32 v2, v2, v3
    v_lshlrev_b32 v13, 4, v2""", WS_BOX, cfg.ROT)
    def ldB(s):
        a("s_cmp_lg_u32 s66, %d\ns_cbranch_scc1 L_q%d\ns_mov_b32 m0, %d\ns_nop 0\nbuffer_load_dwordx4 v9, %s, s69 offen lds\nL_q%d:", s % 4, s, (s % cfg.R) * SLOT + 20480, sq(S_W1), s)
        for ii in range(3):
            a("s_add_u32 m0, s62, %d\ns_nop 0", (s % cfg.R) * SLOT + 1024 * ii)
            a("buffer_load_dwordx4 v%d, %s, s69 offen lds", 10 + ii, sq(S_W1)); vm(("st", s))
        a("s_add_u32 s69, s69, 53248")
        if s >= 25 - 3 * cfg.ROT: a("s_cmp_eq_u32 s69, %d\ns_cselect_b32 s69, 0, s69", 26 * 53248)
    ireg = lambda n: 16 + 2 * (n % 4)
    def rdI(n):
        r = 14
        if n >= 26 - 3 * cfg.ROT:
            a("s_cmp_ge_u32 s68, %d\ns_cselect_b32 s64, 104, 0\nv_subrev_u32 v15, s64, v14", 26 - n); r = 15
        a("ds_read_b32 v%d, v%d offset:%d\nds_read_b32 v%d, v%d offset:%d", ireg(n), r, 4 * n, ireg(n) + 1, r, 4 * n + 1664)
    def ldA(s):
        for ii in range(2):
            a("s_add_u32 m0, s63, %d", (s % cfg.R) * SLOT + 1024 * ii)
            a("v_lshl_add_u32 v%d, v%d, 6, v13", ireg(s) + ii, ireg(s) + ii)
            a("buffer_load_dwordx4 v%d, %s, 0 offen lds", ireg(s) + ii, sq(S_TAB)); vm(("st", s))
    if cfg.APF:
        a("v_and_b32 v2, 7, v0\ns_lshl_b32 s64, s30, 3\nv_add_u32 v2, s64, v2\nv_mul_u32_u24 v2, 104, v2\nv_lshrrev_b32 v3, 3, v0\nv_lshl_add_u32 v2, v3, 2, v2\ns_add_u32 s64, s67, %d\nv_add_u32 v36, s64, v2\nv_cmp_gt_u32 vcc, %d, v3\nv_mov_b32 v38, %d", 4 * cfg.AP0, cfg.APF - cfg.AP0, OOB)
    lst3(8)
    wait_for(lambda t: t == "idx")
    stamp(2)
    for s in range(cfg.NI): rdI(s)
    if cfg.APF: a("ds_read_b32 v36, v36")
    def apf():
        if cfg.APF: a("s_waitcnt lgkmcnt(0)\nv_lshlrev_b32 v36, 6, v36\nv_cndmask_b32 v36, v38, v36, vcc\nbuffer_load_dword v37, v36, %s, 0 offen", sq(S_TAB)); vm("apf")
    if not cfg.AP0: apf()
    for s in range(cfg.NI):
        a("s_waitcnt lgkmcnt(%d)", 2 * (cfg.NI - 1 - s) + (1 if cfg.APF else 0))
        ldA(s)
        if cfg.AP0 and s == 0: apf()
        ldB(s)
    st = dict(nxt=cfg.NI, nrd=cfg.NI)
    def read_ahead(upto):
        while st["nrd"] <= min(upto, 25): rdI(st["nrd"]); st["nrd"] += 1
    assert cfg.NI + cfg.CATCH <= 4 + cfg.NI and cfg.NI <= 4
    read_ahead(st["nxt"] + cfg.CATCH - 1)
    stamp(3)
    wait_for(lambda t: t == ("st", 0))
    stamp(11)
    a("s_barrier")
    stamp(4)
    def issue(limit):
        todo = [n for n in range(st["nxt"], min(st["nxt"] + cfg.CATCH, 26)) if n <= limit]
        if not todo: return
        a("s_waitcnt lgkmcnt(0)")
        for n in todo: ldA(n); ldB(n)
        st["nxt"] = todo[-1] + 1
        read_ahead(st["nxt"] + cfg.CATCH - 1)
    marks = {2: 5, 6: 6, 10: 7, 14: 8, 20: 9} if cfg.SL != 3 else {}
    def two(limit):
        for _ in range(2): issue(limit)
    if cfg.B2: two(min(cfg.NI + cfg.PRE2 - 1, cfg.R - 1))
    else: issue(cfg.R - 1)
    for s in range(0, 26, 2 if cfg.B2 else 1):
        need = min(25, s + (2 if cfg.B2 else 1))
        if s == 24: a("s_waitcnt vmcnt(0)")
        elif s < 25: wait_for(lambda t: t == ("st", need))
        a("s_barrier")
        if s in marks: stamp(marks[s])
        if cfg.B2: two(s + cfg.R)
        else: issue(s + cfg.R)
        if s == 8:
            a("buffer_store_dword v30, v31, %s, 0 offen sc1", sq(S_WS)); vm("sent")
        if s == 24:
            assert st["nxt"] == 26
            a("s_cmp_lg_u32 s66, 0\ns_cbranch_scc1 L_noat\ns_lshl_b32 s64, s29, 2\ns_mov_b64 exec, 1\nbuffer_atomic_add v32, off, %s, s64\ns_mov_b64 exec, -1\nL_noat:", sq(S_DBG))
    stamp(10)
    dump_stamps()
    a("s_endpgm")
    loader = a.L; a.L = []

    a("L_comp:")
    ACC = lambda tt, rt: 104 + 16 * tt + 4 * rt
    W2R = 208
    XFr = lambda st_, rt: 16 + 44 * st_ + 4 * rt
    WFr = lambda st_, tt: 32 + 44 * st_ + 4 * tt
    a("""s_and_b32 s66, s26, 1
    s_lshr_b32 s67, s26, 1
    v_and_b32 v1, 15, v0
    v_lshrrev_b32 v2, 4, v0
    v_bfe_u32 v3, v0, 2, 1
    v_lshlrev_b32 v3, 1, v3
    v_xor_b32 v3, v3, v2
    v_lshlrev_b32 v3, 4, v3
    v_lshl_add_u32 v3, v1, 6, v3
    s_lshl_b32 s64, s66, 12
    s_lshl_b32 s65, s67, 11
    s_add_u32 s64, s64, s65
    v_add_u32 v4, s64, v3
    v_xor_b32 v5, 0x800, v4
    v_lshrrev_b32 v3, 5, v0
    v_bfe_u32 v8, v0, 4, 1
    v_lshlrev_b32 v3, 4, v3
    v_lshl_add_u32 v3, v8, 2, v3
    v_bfe_u32 v8, v0, 2, 2
    v_add_u32 v3, v3, v8
    v_mul_u32_u24 v3, 416, v3
    v_and_b32 v8, 3, v0
    v_lshl_add_u32 v3, v8, 3, v3
    s_mul_i32 s64, s67, 224
    s_add_u32 s64, s64, 8192
    v_add_u32 v6, s64, v3
    v_add_u32 v7, %d, v3""", 8192 + 192)
    a("""s_mul_i32 s64, s30, 416
    s_mul_i32 s65, s67, 192
    s_add_u32 s64, s64, s65
    v_lshl_add_u32 v8, v0, 3, s64
    s_mul_i32 s65, s26, 896
    s_add_u32 s65, s65, %d
    v_lshl_add_u32 v9, v0, 4, s65
    v_lshl_add_u32 v11, v2, 4, s65
    s_lshl_b32 s64, s67, 6
    v_add_u32 v10, s64, v11
    s_mul_i32 s64, s67, 384
    s_sub_u32 s64, 384, s64
    v_add_u32 v11, s64, v11
    s_waitcnt lgkmcnt(0)
    s_mov_b64 exec, 0xfffffff
    global_load_dwordx2 v[12:13], v8, s[14:15]
    global_load_dwordx2 v[14:15], v8, s[16:17]
    s_mov_b64 exec, -1""", D_BW)
    stamp(1)
    srd(a, S_WS, 24, WSN)
    a("""s_lshl_b32 s64, s29, 12
    s_lshl_b32 s65, s30, 10
    s_add_u32 s64, s64, s65
    s_lshl_b32 s65, s67, 9
    s_add_u32 s64, s64, s65
    s_lshl_b32 s65, s66, 8
    s_add_u32 s64, s64, s65
    s_add_u32 s64, s64, %d
    s_lshl_b32 s65, s67, 5
    v_xor_b32 v1, s65, v0
    v_lshl_add_u32 v244, v1, 2, s64
    s_waitcnt vmcnt(0)
    s_mov_b64 exec, 0xfffffff
    v_lshlrev_b32 v16, 16, v12
    v_and_b32 v17, 0xffff0000, v12
    v_lshlrev_b32 v18, 16, v13
    v_and_b32 v19, 0xffff0000, v13
    v_lshlrev_b32 v20, 16, v14
    v_and_b32 v21, 0xffff0000, v14
    v_lshlrev_b32 v22, 16, v15
    v_and_b32 v23, 0xffff0000, v15
    ds_write_b128 v9, v[16:19]
    ds_write_b128 v9, v[20:23] offset:448
    s_mov_b64 exec, -1
    s_waitcnt lgkmcnt(0)""", WS_BOX)
    for tt in range(7):
        ar, off = (10, 64 * tt) if tt < 6 else (11, 0)
        for rt in range(4 if tt < 6 else 2): a("ds_read_b128 %s, v%d offset:%d", vr(ACC(tt, rt), 4), ar, off)
        a("ds_read_b128 %s, v%d offset:%d", vr(W2R + 4 * tt, 4), ar, off + 448)
    a("""s_mov_b32 s66, 1
    s_mov_b32 s67, 13
    s_mov_b32 s68, %d
    s_mov_b32 s69, %d
    s_mov_b32 s62, 0x%x
    s_mov_b32 s63, 0x%x
    v_mov_b32 v8, 0x%x
    v_mov_b32 v9, 0x%x
    v_mov_b64 v[236:237], 0
    v_mov_b64 v[238:239], 0
    v_mov_b64 v[240:241], 0
    v_mov_b64 v[242:243], 0
    s_waitcnt lgkmcnt(0)""", -(cfg.R - 1) * SLOT, SLOT, f32bits(c2), f32bits(c2), f32bits(c1), f32bits(c1))
    def reads(st_):
        x = lambda rt: "ds_read_b128 %s, v%d offset:%d" % (vr(XFr(st_, rt), 4), 4 + rt // 2, 1024 * (rt & 1))
        w = lambda tt, u: "ds_read_b64_tr_b16 %s, v%d offset:%d" % (vr(WFr(st_, tt) + 2 * u, 2), 6 if tt < 6 else 7, (32 * tt if tt < 6 else 0) + 3328 * u)
        return [x(0), w(0, 0), w(0, 1), x(1), x(2), x(3)] + [w(tt, u) for tt in range(1, 7) for u in range(2)]
    def mf(st_, tt, rt): return "v_mfma_f32_16x16x32_bf16 %s, %s, %s, %s" % (vr(ACC(tt, rt), 4), vr(WFr(st_, tt), 4), vr(XFr(st_, rt), 4), vr(ACC(tt, rt), 4))
    stamp(6)
    a("s_barrier")
    stamp(2)
    for r in reads(0): a(r)
    for k in range(4): a("v_add_u32 v%d, s69, v%d", 4 + k, 4 + k)
    a("L_dloop:")
    for st_ in range(2):
        a("s_waitcnt lgkmcnt(0)")
        if st_ == 0 or not cfg.B2: a("s_barrier")
        r = reads(1 - st_)
        fill = r + ["s_add_u32 s66, s66, 1\ns_cmp_eq_u32 s66, %d" % cfg.R, "s_cselect_b32 s64, s68, s69\ns_cselect_b32 s66, 0, s66"] + ["v_add_u32 v%d, s64, v%d" % (4 + k, 4 + k) for k in range(4)]
        if st_ == 1: fill += ["s_sub_u32 s67, s67, 1\ns_cmp_lg_u32 s67, 0"]
        ms = [(tt, rt) for tt in range(7) for rt in range(4 if tt < 6 else 2)]
        for k, (tt, rt) in enumerate(ms):
            a(mf(st_, tt, rt))
            if k < len(fill): a(fill[k])
    a("s_cbranch_scc1 L_dloop")
    stamp(3)
    def gelu(acc, w2, T):
        P = range(4)
        x = lambda i: vr(acc + 2 * i, 2); t = lambda i: vr(T + 2 * i, 2)
        for i in P: a("v_pk_mul_f32 %s, %s, %s", t(i), x(i), x(i))
        for i in P: a("v_pk_fma_f32 %s, %s, s[62:63], v[8:9]", t(i), t(i))
        for i in P: a("v_pk_mul_f32 %s, %s, %s", t(i), t(i), x(i))
        for i in range(8): a("v_exp_f32 v%d, v%d", T + i, T + i)
        for i in P: a("v_pk_mul_f32 %s, %s, %s", x(i), x(i), vr(w2 + 2 * (i & 1), 2))
        for i in P: a("v_pk_add_f32 %s, %s, 1.0 op_sel_hi:[1,0]", t(i), t(i))
        for i in range(8): a("v_rcp_f32 v%d, v%d", T + i, T + i)
    def gelu_fin(acc, T, rt):
        for i in (0, 2, 1, 3): a("v_pk_fma_f32 %s, %s, %s, %s", vr(236 + 2 * (rt + i // 2), 2), vr(acc + 2 * i, 2), vr(T + 2 * i, 2), vr(236 + 2 * (rt + i // 2), 2))
    a("s_waitcnt lgkmcnt(0)")
    pend = None; k = 0
    for tt in range(7):
        for rt in ((0, 2) if tt < 6 else (0,)):
            T = 16 + 8 * (k % 2); k += 1
            gelu(ACC(tt, rt), W2R + 4 * tt, T)
            if pend: gelu_fin(*pend)
            pend = (ACC(tt, rt), T, rt)
    a("s_nop 0"); gelu_fin(*pend)
    a("""v_add_f32 v236, v236, v237
    v_add_f32 v240, v240, v241
    v_add_f32 v238, v238, v239
    v_add_f32 v242, v242, v243
    v_permlane32_swap_b32 v236, v240
    s_nop 0
    v_permlane32_swap_b32 v238, v242
    v_add_f32 v236, v236, v240
    v_add_f32 v238, v238, v242
    s_nop 1
    v_permlane16_swap_b32 v236, v238
    v_add_f32 v236, v236, v238
    buffer_store_dword v236, v244, %s, 0 offen sc1""", sq(S_WS))
    stamp(4)
    dump_stamps()
    a("L_end:\ns_endpgm")
    comp = a.L
    k1 = next(i for i, l in enumerate(loader) if "s_barrier" in l)
    k2 = next(i for i, l in enumerate(comp) if l.startswith("L_dloop:"))
    body = "\n".join(head + ["    s_branch L_cin2"] + loader + comp + ["L_cin2:"] + tail) + "\n"

    hdr = open("standalone__deep_cross_xdeepfm__recsys.s.ref").read().split("; Override launch")[0]
    out = hdr + "; Written by the author's own generator script. Workgroups with (id>>3)<16 run a 128x208 tile of the MLP GEMM,\n; the others fold the CIN weights, evaluate the two quadratic forms per column and combine.\n"
    out += "; @launch grid=(256,1,1) block=(512,1,1) lds=163840\n"
    out += '.amdgcn_target "amdgcn-amd-amdhsa--gfx950"\n.text\n.globl %s\n.p2align 8\n.type %s,@function\n%s:\n' % (KN, KN, KN)
    out += body + "L_codeend:\n"
    out += """.section .rodata,"a"
.p2align 6
.amdhsa_kernel %s
  .amdhsa_next_free_vgpr 256
  .amdhsa_next_free_sgpr 102
  .amdhsa_accum_offset 256
  .amdhsa_group_segment_fixed_size 0
  .amdhsa_kernarg_size 88
  .amdhsa_user_sgpr_count 2
  .amdhsa_user_sgpr_kernarg_segment_ptr 1
  .amdhsa_system_sgpr_workgroup_id_x 1
  .amdhsa_float_denorm_mode_32 3
.end_amdhsa_kernel
""" % KN
    return out, lint(body)

if __name__ == "__main__":
    cfg = Cfg()
    path = sys.argv[1]
    for kv in sys.argv[2:]:
        k, v = kv.split("=")
        old = getattr(cfg, k)
        v = v.replace("_", " ") if k.startswith("ORD") or k == "PSITE" else v
        setattr(cfg, k, v if isinstance(old, str) else (bool(int(v)) if isinstance(old, bool) else int(v)))
    out, nb = generate(cfg)
    open(path, "w").write(out)
    print("written", path, "hazards:", nb)
```

```python
import sys, math, struct
from scheme import build as build_scheme, pi
from lint import lint

KN = "standalone__deep_cross_xdeepfm__recsys_kernel"
class Cfg:
    NI = 2
    CATCH = 1
    R = 6
    WPF_D = 4
    TLB = 1
    AP0 = 0
    APF = 4
    GF0 = 4
    ORD_U = "G00 G01 G10"
    ORD_F = "G20 G30 G11 - - -"
    ORD_M = "G21 G31"
    PSITE = "F1 F3 F5 M1 M3 M5 M7 M9"
    NS1 = 4
    ROT = 0
    PRE2 = 2
    B2 = 0
    FPRIO = 1
    FD = 3
    T_BAR = 14
    PRIO = 1
    STAMP = False
    RT = 0
    SL = 0
    CODEPF = True
    PROBE = "none"
    PN = 64
    PX = -1
def f32bits(x): return struct.unpack("<I", struct.pack("<f", x))[0]
class A:
    def __init__(s): s.L = []
    def __call__(s, t, *a):
        if a: t = t % a
        for l in t.split("\n"):
            l = l.strip()
            if l: s.L.append(l if l.endswith(":") else "    " + l)
    def text(s): return "\n".join(s.L) + "\n"
def vr(a, n): return "v[%d:%d]" % (a, a + n - 1)

SLOT = 21504
XS = 2112
C_X = 0
C_VT = 26 * XS - 64
VS = 80
C_WC = 23 * XS + 8
C_IDX = 24 * XS
C_ST = 27 * XS
C_W0 = C_ST; C_W1 = C_ST + 35152; C_W2 = C_ST + 70304
C_U = C_W2 + 4; C_L = C_U + 35152
T0 = 19
C_FA = C_W1; FSA = (4 * T0 + 5) * 16
C_FB = C_W0; FSB = (4 * (22 - T0) + 1) * 16
assert 26 * FSA <= 35152
assert C_L + 1352 <= 163840 and C_ST + 104 * 1024 <= 163840
WS_BOX = 0; WS_ST = 262144
OOB = 0x7ff00000
def srd(a, s, ptr, n):
    a("s_mov_b32 s%d, s%d\ns_mov_b32 s%d, s%d\ns_mov_b32 s%d, %d\ns_mov_b32 s%d, 0x20000", s, ptr, s + 1, ptr + 1, s + 2, n, s + 3)
S_IDX, S_TAB, S_W1, S_WS, S_WC, S_DBG, S_OUT, S_M = 32, 36, 40, 44, 48, 52, 56, 96
def sq(s): return "s[%d:%d]" % (s, s + 3)

def generate(cfg):
    sch = build_scheme()
    order = sch["order"]; fld = sch["fld"]; slot = sch["slot"]; first = sch["first"]; slots = sch["slots"]
    D_IDX = cfg.R * SLOT; D_BW = D_IDX + 13312
    assert D_BW + 3584 <= 163840
    a = A()
    def stamp(k):
        if cfg.STAMP: a("%s s[%d:%d]", "s_memrealtime" if cfg.RT else "s_memtime", 72 + 2 * k, 73 + 2 * k)
    def dump_stamps():
        if not cfg.STAMP: return
        a("s_memrealtime s[64:65]\ns_waitcnt vmcnt(0) lgkmcnt(0)\nv_mov_b32 v239, s64")
        for k in range(12): a("v_mov_b32 v%d, s%d", 224 + k, 72 + 2 * k)
        a("v_mov_b32 v236, s70\nv_mov_b32 v237, s2\nv_mov_b32 v238, s26")
        a("s_lshl_b32 s64, s2, 3\ns_add_u32 s64, s64, s26\ns_lshl_b32 s64, s64, 6\ns_add_u32 s64, s64, %d", WS_ST)
        a("v_mov_b32 v240, s64\ns_mov_b64 exec, 1")
        srd(a, S_WS, 24, 0x100000)
        for k in range(4): a("buffer_store_dwordx4 v[%d:%d], v240, %s, 0 offen offset:%d", 224 + 4 * k, 227 + 4 * k, sq(S_WS), 16 * k)
    WSN = 0x100000 if cfg.STAMP else WS_BOX + 131072
    c1 = -2.0 * math.log2(math.e) * math.sqrt(2.0 / math.pi); c2 = c1 * 0.044715

    a("s_cmp_ge_u32 s2, 256\ns_cbranch_scc1 L_end")
    if cfg.STAMP:
        for k in range(12): a("s_mov_b32 s%d, 0", 72 + 2 * k)
    if cfg.STAMP or cfg.PROBE == "spin": a("s_memrealtime s[70:71]")
    stamp(0)
    a("""s_load_dwordx16 s[4:19], s[0:1], 0
    s_load_dwordx4 s[20:23], s[0:1], 64
    s_load_dwordx2 s[24:25], s[0:1], 80
    v_lshrrev_b32 v1, 6, v0
    v_and_b32 v0, 63, v0
    s_lshr_b32 s28, s2, 3
    v_readfirstlane_b32 s26, v1""")
    if cfg.CODEPF:
        a("""s_getpc_b64 s[64:65]
        L_pfbase:
        s_cmp_lg_u32 s26, 7
        s_cbranch_scc1 L_nopf
        s_lshl_b32 s66, s28, 10
        v_and_b32 v2, 7, v0
        v_lshl_add_u32 v2, v2, 7, s66
        v_min_u32 v2, L_codeend-L_pfbase-4, v2
        global_load_dword v255, v2, s[64:65]
        L_nopf:""")
    a("""s_and_b32 s27, s2, 7
    s_and_b32 s30, s28, 3
    s_bfe_u32 s29, s28, 0x20002
    s_lshl_b32 s64, s27, 2
    s_add_u32 s29, s29, s64
    v_lshlrev_b32 v2, 4, v0
    v_lshlrev_b32 v251, 7, v0
    s_cmp_ge_u32 s28, 16
    s_cbranch_scc1 L_cin
    s_cmp_lt_u32 s26, 4
    s_cbranch_scc1 L_comp""")
    q = []
    def vm(tag): q.append(tag)
    def wait_for(pred):
        last = max(i for i, t in enumerate(q) if pred(t))
        n = len(q) - 1 - last
        assert n < 64
        a("s_waitcnt vmcnt(%d)", n)
    a("""s_sub_u32 s66, s26, 4
    s_lshl_b32 s64, s29, 2
    s_add_u32 s64, s64, s66
    s_mul_i32 s64, s64, 3328
    s_mul_i32 s67, s66, 3328
    s_add_u32 s67, s67, %d
    s_mov_b32 m0, s67
    s_lshl_b32 s65, s66, 4
    s_add_u32 s65, s65, s28
    s_lshl_b32 s65, s65, 13
    s_waitcnt lgkmcnt(0)""", D_IDX)
    srd(a, S_IDX, 4, 425984)
    for i in range(4):
        if i == 3: a("s_mov_b64 exec, 0xffff")
        a("buffer_load_dwordx4 v2, %s, s64 offen offset:%d lds", sq(S_IDX), 1024 * i); vm("idx")
    a("s_mov_b64 exec, -1")
    srd(a, S_W1, 12, 1384448)
    a("s_cmp_ge_u32 s66, %d\ns_cbranch_scc1 L_loader\nbuffer_load_dword v35, v251, %s, s65 offen\ns_branch L_loader", cfg.WPF_D, sq(S_W1))
    vm("wpf")
    if cfg.SL == 3:
        k = max(i for i, l in enumerate(a.L) if "s_cmp_ge_u32 s66" in l); sv = a.L[k:]; a.L = a.L[:k]; stamp(5); a.L += sv

    a("L_cin:")
    NE = 16 * cfg.WPF_D
    psite = cfg.PSITE.split()
    def lst2(k):
        if cfg.SL == 2: stamp(k)
    def lst4(k):
        if cfg.SL == 4: stamp(k)
    def lst5(k):
        if cfg.SL == 5: stamp(k)
    def stage(lo, cnt, sreg):
        hi = lo + cnt - 1
        f = lambda o: 68 + o if o < 36 else (o - 2 if o < 70 else o - 70)
        if f(hi) - f(lo) == cnt - 1:
            return "s_add_u32 m0, %s, %d\ns_add_u32 s64, %s, %d\nbuffer_load_dwordx4 v2, %s, s64 offen lds" % (sreg, 1024 * f(lo) + C_ST, sreg, 1024 * f(lo), sq(S_WC))
        cut = (36 if hi < 70 else 70) - lo
        return "s_mov_b32 s65, %d\ns_cmp_lt_u32 %s, %d\ns_cselect_b32 s64, s65, %d\ns_add_u32 s64, s64, %s\ns_add_u32 m0, s64, %d\ns_nop 0\nbuffer_load_dwordx4 v2, %s, s64 offen lds" % (1024 * f(lo), sreg, 1024 * cut, 1024 * (f(hi) - cnt + 1), sreg, C_ST, sq(S_WC))
    a("""s_sub_u32 s31, s28, 16
    s_lshl_b32 s3, s26, 10
    v_lshlrev_b32 v6, 2, v0
    s_lshl_b32 s64, s29, 3
    s_lshl_b32 s65, s30, 1
    s_add_u32 s64, s64, s65
    s_add_u32 s64, s64, s26
    s_mul_i32 s66, s64, 1664
    s_mul_i32 s65, s26, %d
    s_add_u32 s67, s65, %d
    s_lshl_b32 s68, s31, 13
    s_and_b32 s101, s3, 0x7ff
    s_lshr_b32 s64, s26, 2
    s_lshl_b32 s64, s64, 11
    s_add_u32 s101, s101, s64
    s_waitcnt lgkmcnt(0)""", XS, C_IDX)
    srd(a, S_WC, 8, 105456)
    a("s_bitcmp1_b32 s26, 1\ns_cbranch_scc0 L_c1")
    a(stage(32, 4, "s101"))
    a("s_branch L_c4\nL_c1:\ns_cmp_ge_u32 s26, 4\ns_cbranch_scc1 L_c2\ns_mov_b32 m0, s67")
    srd(a, S_IDX, 4, 425984)
    a("""buffer_load_dwordx4 v2, %s, s66 offen lds
    buffer_load_dwordx4 v2, %s, s66 offen offset:1024 lds
    s_branch L_c4
    L_c2:
    s_cmp_eq_u32 s26, 5
    s_cbranch_scc1 L_c3
    buffer_load_dword v255, v251, %s, s68 offen
    s_branch L_c4
    L_c3:
    s_mov_b32 m0, %d""", sq(S_IDX), sq(S_IDX), sq(S_WC), C_WC)
    srd(a, S_M, 10, 156)
    a("buffer_load_dword v6, %s, 0 offen lds\nL_c4:", sq(S_M))
    for n in range(4): a(stage(8 * n, 8, "s3"))
    stamp(1)
    a("""s_mul_i32 s64, s26, 272
    v_add_u32 v1, s64, v6
    v_mov_b32 v3, 0
    ds_write_b32 v1, v3 offset:%d
    ds_write_b32 v1, v3 offset:%d
    v_lshrrev_b32 v5, 4, v0
    v_lshlrev_b32 v38, 4, v5
    v_and_b32 v7, 15, v0
    v_lshrrev_b32 v1, 5, v0
    v_lshl_add_u32 v8, v1, 4, v7
    v_min_u32 v8, 25, v8
    v_lshlrev_b32 v9, 1, v8
    v_mov_b32 v21, 0
    v_mov_b32 v247, 0
    v_bfe_u32 v23, v0, 2, 2
    v_bfe_u32 v22, v0, 4, 1
    v_and_b32 v13, 3, v0
    v_lshlrev_b32 v13, 3, v13""", C_VT, C_VT + 16)
    a("""v_lshl_add_u32 v4, v5, 3, v23
    v_add_u32 v15, 4, v4
    v_min_u32 v4, 25, v4
    v_min_u32 v15, 25, v15
    v_mul_u32_u24 v4, 1352, v4
    v_mul_u32_u24 v15, 1352, v15
    s_and_b32 s65, s26, 1
    s_mul_i32 s64, s26, 52
    s_lshl_b32 s67, s65, 2
    s_sub_u32 s64, s64, s67
    s_add_u32 s64, s64, %d
    v_add3_u32 v10, v4, v13, s64
    v_add3_u32 v11, v15, v13, s64
    s_mul_i32 s67, s65, %d
    s_lshl_b32 s64, s26, 1
    s_sub_u32 s64, s64, s67
    s_add_u32 s64, s64, %d
    v_mul_u32_u24 v32, %d, v7
    v_add_u32 v32, s64, v32
    s_cmp_eq_u32 s65, 0
    s_cselect_b32 s68, 0, 3
    s_xor_b32 s68, s68, 0xffff
    s_cmp_eq_u32 s65, 0
    s_cselect_b32 s27, 0x3ff, 0
    s_cselect_b32 s65, 0, 0xfff
    s_or_b32 s27, s27, s65""", C_W2, 2 * VS, C_VT, VS)
    srd(a, S_TAB, 6, 6400000); srd(a, S_W1, 12, 1384448)
    a("""v_lshl_add_u32 v4, v1, 3, v23
    v_lshl_add_u32 v15, v22, 5, v13
    s_mul_i32 s64, s26, 104
    s_add_u32 s64, s64, %d
    v_mul_u32_u24 v40, 1352, v4
    v_add3_u32 v40, v40, v15, s64
    v_add_u32 v41, %d, v40
    v_add_u32 v14, 16, v4
    v_add_u32 v4, 20, v4
    v_min_u32 v14, 25, v14
    v_min_u32 v4, 25, v4
    v_mul_u32_u24 v14, 1352, v14
    v_mul_u32_u24 v4, 1352, v4
    v_add3_u32 v42, v14, v15, s64
    v_add3_u32 v43, v4, v15, s64
    v_and_b32 v4, 31, v0
    v_min_u32 v44, 26, v4
    v_mul_u32_u24 v44, %d, v44
    v_lshl_add_u32 v44, v1, 4, v44
    v_mul_u32_u24 v15, 52, v4
    v_add_u32 v15, %d, v15
    v_mov_b32 v14, %d
    v_cmp_gt_u32 vcc, 26, v4
    v_mov_b32 v24, 104
    v_mov_b32 v25, 2704
    v_cndmask_b32 v15, v14, v15, vcc
    v_cndmask_b32 v14, v24, v25, vcc
    v_subrev_u32 v24, 16, v4
    v_lshl_add_u32 v15, v1, 3, v15
    v_cndmask_b32 v24, v24, v4, vcc
    s_add_u32 s67, s26, 8
    s_min_u32 s67, s67, 12
    v_mad_u32_u24 v46, v14, s26, v15
    v_mad_u32_u24 v48, v14, s67, v15
    v_lshrrev_b32 v14, 1, v14
    v_add3_u32 v47, v46, v14, -4
    v_add3_u32 v49, v48, v14, -4
    s_sub_u32 s67, s67, s26
    s_mul_i32 s67, s67, 104
    v_mul_u32_u24 v25, %d, v24
    v_lshl_add_u32 v25, v1, 4, v25
    v_add_u32 v215, %d, v25
    v_mul_u32_u24 v25, %d, v24
    v_lshl_add_u32 v25, v1, 4, v25
    v_add_u32 v12, %d, v25""", C_W1, 4 * 1352, VS, C_U, C_L, FSA, C_FA, FSB, C_FB)
    a("""s_lshr_b32 s100, s26, 2
    s_lshl_b32 s65, s100, 5
    v_lshlrev_b32 v4, 1, v4
    v_xor_b32 v4, s65, v4
    s_lshl_b32 s64, s26, 6
    v_add_u32 v4, s64, v4
    v_mul_u32_u24 v14, %d, v1
    v_add_u32 v212, v4, v14
    v_sub_u32 v4, v4, v14
    v_add_u32 v214, %d, v4
    v_sub_u32 v4, v4, v14
    v_sub_u32 v4, v4, v14
    v_add_u32 v213, %d, v4
    v_lshl_add_u32 v4, v1, 2, v23
    v_lshlrev_b32 v4, 3, v4
    v_xor_b32 v15, s100, v22
    v_lshl_add_u32 v15, v15, 5, v13
    v_add_u32 v15, s64, v15""", XS, XS, 3 * XS)
    for T in range(4):
        by = [slot[fld(h, order[4 * T + rr])] for h in range(2) for rr in range(4)]
        lo = sum(b << (8 * i) for i, b in enumerate(by[:4])); hi = sum(b << (8 * i) for i, b in enumerate(by[4:]))
        a("s_mov_b32 s64, 0x%x\ns_mov_b32 s65, 0x%x\nv_lshrrev_b64 v[28:29], v4, s[64:65]\nv_and_b32 v28, 0xff, v28\nv_mul_u32_u24 v28, %d, v28\nv_add_u32 v%d, v28, v15", lo, hi, XS, 208 + T)
    a("""v_mul_u32_u24 v50, 1352, v8
    v_mul_u32_u24 v15, %d, v22
    v_add_u32 v50, v50, v15
    v_add_u32 v50, %d, v50
    v_mul_u32_u24 v51, 52, v8
    v_add_u32 v51, %d, v51
    v_mul_u32_u24 v52, %d, v8
    v_lshl_add_u32 v52, v22, 5, v52
    v_add_u32 v52, %d, v52
    v_mul_u32_u24 v39, %d, v8
    v_lshl_add_u32 v39, v22, 5, v39
    v_add_u32 v39, %d, v39""", C_U - C_W0, C_W0, C_L, FSA, C_FA, FSB, C_FB)
    a("""v_lshrrev_b32 v15, 2, v0
    v_mul_u32_u24 v15, 104, v15
    v_and_b32 v14, 3, v0
    v_lshlrev_b32 v4, 1, v22
    v_xor_b32 v14, v14, v4
    v_lshlrev_b32 v252, 4, v14
    s_lshl_b32 s66, s26, 3""")
    for n in range(4):
        by = [slot[(cfg.GF0 + 8 * n + w) % 26] for w in range(8)]
        lo = sum(b << (8 * i) for i, b in enumerate(by[:4])); hi = sum(b << (8 * i) for i, b in enumerate(by[4:]))
        a("s_mov_b32 s64, 0x%x\ns_mov_b32 s65, 0x%x\ns_lshr_b64 s[64:65], s[64:65], s66\ns_and_b32 s64, s64, 0xff\ns_mul_i32 s%d, s64, %d", lo, hi, 60 + n, XS)
        a("s_add_u32 s64, s26, %d\ns_cmp_ge_u32 s64, 26\ns_cselect_b32 s65, 26, 0\ns_sub_u32 s64, s64, s65\ns_lshl_b32 s64, s64, 2\nv_add_u32 v%d, s64, v15", (cfg.GF0 + 8 * n) % 26, 24 + n)
    for r in list(range(64, 96, 2)) + list(range(216, 232, 2)) + [236, 238]: a("v_mov_b64 v[%d:%d], 0", r, r + 1)
    a("s_lshl_b32 s64, s26, 4\ns_add_u32 s64, s64, s31\ns_add_u32 s64, s64, %d\ns_lshl_b32 s69, s64, 13", NE)
    srd(a, S_WS, 24, WSN); srd(a, S_DBG, 22, 256); srd(a, S_OUT, 20, 8192)
    a("""v_lshl_add_u32 v4, v22, 1, v1
    v_lshl_add_u32 v4, v4, 3, s26
    s_lshl_b32 s64, s30, 5
    v_add_u32 v4, s64, v4
    v_lshlrev_b32 v14, 2, v4
    v_lshl_add_u32 v14, v7, 9, v14
    s_lshl_b32 s64, s29, 12
    s_add_u32 s64, s64, %d
    v_add_u32 v14, s64, v14
    v_mov_b32 v15, %d
    v_cmp_gt_u32 vcc, 8, v7
    s_lshl_b32 s64, s29, 8
    v_lshl_add_u32 v4, v4, 1, s64
    v_cndmask_b32 v244, v15, v14, vcc
    v_cmp_eq_u32 vcc, 0, v7
    s_nop 1
    v_cndmask_b32 v246, v15, v4, vcc""", WS_BOX, OOB)
    a("s_lshl_b32 s64, s26, 8\nv_add_u32 v33, s64, v6\nv_mov_b32 v34, 0x3f803f80")
    lst2(8)
    a("s_and_b32 s101, s3, 0xfff\ns_cmp_ge_u32 s26, 4\ns_cbranch_scc1 L_c7")
    for n in range(9): a(stage(36 + 4 * n, 4, "s101"))
    a("s_waitcnt vmcnt(9) lgkmcnt(0)\ns_branch L_c8\nL_c7:")
    for n in range(cfg.NS1): a(stage(72 + 4 * n, 4, "s101"))
    a("s_waitcnt vmcnt(%d) lgkmcnt(0)\nL_c8:\ns_barrier", cfg.NS1)
    stamp(2)
    a("ds_read_b128 v[16:19], v38 offset:%d", C_WC + 104)
    def vread(m):
        a("ds_read_b64_tr_b16 %s, v10 offset:%d", vr(96 + 4 * m, 2), 416 * (m >> 1) + 32 * (m & 1))
        a("ds_read_b64_tr_b16 %s, v11 offset:%d", vr(98 + 4 * m, 2), 416 * (m >> 1) + 32 * (m & 1))
    def vmul(m): a("v_mfma_f32_16x16x32_bf16 %s, v[16:19], %s, 0", vr(128 + 4 * m, 4), vr(96 + 4 * m, 4))
    def vwrite(ms):
        for jh in range(2):
            a("s_mov_b32 exec_lo, %s", "s68" if jh == 0 else "s27")
            for m in ms:
                if m & 1 == jh:
                    a("v_cvt_pk_bf16_f32 v%d, v%d, v%d", 96 + m, 128 + 4 * m, 128 + 4 * m)
                    a("ds_write_b16 v32, v%d offset:%d", 96 + m, 16 * VS * jh + 16 * (m >> 1))
    for m in range(6): vread(m)
    rest = list(range(72 + 4 * cfg.NS1, 104, 4))
    for m in range(6):
        a("s_waitcnt lgkmcnt(%d)", 2 * (5 - m)); vmul(m)
    lst4(8)
    a("s_cmp_ge_u32 s26, 2\ns_cbranch_scc1 L_v1")
    vread(6); vread(7)
    a("L_v1:")
    a("ds_read_b32 v20, v6 offset:%d\nds_read_u16_d16_hi v21, v9 offset:%d\ns_mov_b32 exec_hi, 0", C_WC + 52, C_WC)
    vwrite(range(6))
    a("s_cmp_ge_u32 s26, 2\ns_cbranch_scc1 L_v2\ns_mov_b64 exec, -1\ns_waitcnt lgkmcnt(8)")
    vmul(6); vmul(7)
    a("s_nop 6\ns_mov_b32 exec_hi, 0")
    vwrite((6, 7))
    a("""L_v2:
    s_cmp_lg_u32 s26, 3
    s_cbranch_scc1 L_c5
    s_mov_b32 exec_lo, 0x1fff
    s_waitcnt lgkmcnt(6)
    ds_write_b32 v6, v20 offset:%d
    L_c5:
    s_mov_b64 exec, -1""", C_VT + 26 * VS)
    for n in range(4):
        a("ds_read_b32 v%d, v%d offset:%d\nds_read_b32 v%d, v%d offset:%d", 56 + n, 24 + n, C_IDX, 60 + n, 24 + n, C_IDX + XS)
    lst4(9)
    a("s_cmp_ge_u32 s26, 4\ns_cbranch_scc1 L_c9\ns_waitcnt vmcnt(0)\nL_c9:")
    lst4(10)
    a("s_waitcnt lgkmcnt(0)\ns_barrier")
    stamp(3)
    def gather(n, sh):
        r = (56 if sh == 0 else 60) + n
        return "s_add_u32 m0, s%d, %d\nv_lshl_add_u32 v%d, v%d, 6, v252\nbuffer_load_dwordx4 v%d, %s, 0 offen lds" % (60 + n, C_X + 1024 * sh, r, r, r, sq(S_TAB))
    wpf = "buffer_load_dword v255, v251, %s, s69 offen" % sq(S_W1)
    a("ds_read_b128 v[96:99], v44 offset:%d\nds_read_b128 v[100:103], v44 offset:%d", C_VT, C_VT + 32)
    def uread(par, base):
        for k in range(4): a("ds_read_b64_tr_b16 %s, v%d offset:%d", vr(base + 2 * k, 2), 40 + k, 48 * par)
    uread(0, 104); uread(1, 112)
    ut = cfg.ORD_U.split(); ft = cfg.ORD_F.split(); mt = cfg.ORD_M.split()
    assert all(t[1] != "3" for t in ut)
    def tok(t): return gather(int(t[1]), int(t[2]))
    for k in range(4): a("v_add_u32 v%d, s67, v%d", 40 + k, 40 + k)
    a("s_mov_b32 s66, 0x7ffffff\ns_mov_b32 s67, 0x7ffffff")
    def umfma(base, acc):
        a("v_mfma_f32_32x32x16_bf16 %s, %s, v[96:99], 0", vr(acc, 16), vr(base, 4))
        a("v_mfma_f32_32x32x16_bf16 %s, %s, v[100:103], %s", vr(acc, 16), vr(base + 4, 4), vr(acc, 16))
    def uwrite(acc, par, areg, tmp):
        for i in range(8 if par else 7): a("v_cvt_pk_bf16_f32 v%d, v%d, v%d", tmp + i, acc + 2 * i, acc + 2 * i + 1)
        w2 = lambda i: a("ds_write2_b32 v%d, v%d, v%d offset0:%d offset1:%d", areg, tmp + i, tmp + i + 1, 2 * i, 2 * i + 1)
        a("s_mov_b64 exec, s[66:67]")
        for i in ((0, 2, 4) if par == 0 else (2, 4)): w2(i)
        a("s_mov_b32 exec_hi, 0")
        if par == 0: a("ds_write_b32 v%d, v%d offset:48", areg, tmp + 6)
        else:
            w2(6); a("ds_write_b32 v%d, v%d offset:4", areg, tmp + 1)
            a("s_mov_b32 exec_lo, 0\ns_mov_b32 exec_hi, s67"); w2(0)
        a("s_mov_b64 exec, -1")
    a("s_cmp_ge_u32 s26, 4\ns_cbranch_scc1 L_u0")
    for o in rest: a(stage(o, 4, "s101"))
    a("L_u0:")
    a("s_waitcnt lgkmcnt(4)"); umfma(104, 128)
    uread(0, 176)
    a("s_waitcnt lgkmcnt(4)"); umfma(112, 144)
    uread(1, 184)
    a("s_nop 0")
    lst2(9)
    uwrite(128, 0, 46, 192)
    a("s_bitcmp1_b32 0x2f, s26\ns_cbranch_scc0 L_u1")
    a("s_waitcnt lgkmcnt(8)"); umfma(176, 160)
    a("L_u1:\ns_bitcmp1_b32 0x4f, s26\ns_cbranch_scc0 L_u2")
    a("s_waitcnt lgkmcnt(4)"); umfma(184, 128)
    a("L_u2:")
    for t in ut[0:1]: a(tok(t))
    uwrite(144, 1, 47, 200)
    for t in ut[1:]: a(tok(t))
    a("s_bitcmp1_b32 0x2f, s26\ns_cbranch_scc0 L_u3")
    uwrite(160, 0, 48, 192)
    a("L_u3:\ns_bitcmp1_b32 0x4f, s26\ns_cbranch_scc0 L_u4")
    uwrite(128, 1, 49, 200)
    a("L_u4:")
    lst2(10)
    a("s_waitcnt lgkmcnt(0)"); lst5(8)
    a("s_waitcnt vmcnt(%d)", len(ut)); lst5(9)
    a("s_barrier")
    stamp(4)
    a("ds_write_b32 v33, v34 offset:%d", C_X + 26 * XS)
    for w in range(1, 8): a("s_cmp_eq_u32 s26, %d\ns_cbranch_scc1 L_fold%d", w, w)
    RES = 96
    for w in range(8):
        a("L_fold%d:", w)
        chunks = [w + 8 * k for k in range(5)] + [40 + w]
        chunks.sort(key=lambda c: 2 * T0 <= c < 44)
        late = chunks[5] if 2 * T0 <= chunks[5] < 44 else None
        assert not 2 * T0 <= chunks[4] < 44
        def fwrite(ci):
            c = chunks[ci]
            if c < 44: return ["ds_write_b128 v52, %s offset:%d" % (vr(RES + 4 * ci, 4), 64 * (c >> 1) + 16 * (c & 1))]
            return ["s_mov_b32 exec_lo, 0xffff0000", "s_mov_b32 exec_hi, 0xffff0000", "ds_write_b128 v52, %s offset:%d" % (vr(RES + 4 * ci, 4), 64 * T0 + 16 * (c - 44) - 32), "s_mov_b64 exec, -1"]
        parts = []
        for ci, c in enumerate(chunks):
            for qf in range(4):
                rd = []; ops = []
                base = 64 + 4 * ((4 * ci + qf) % 8); nr = 0
                vals = []
                for e in range(2 * qf, 2 * qf + 2):
                    if c < 44:
                        pr = sch["pairs"][c & 1][8 * (c >> 1) + e]
                        if pr is None: vals.append("0"); continue
                        x, y = pr
                        rd.append("ds_read_u16_d16_hi v%d, v50 offset:%d" % (base + nr, 52 * x + 2 * y)); nr += 1
                        if x == y: vals.append("v%d" % (base + nr - 1)); continue
                        rd.append("ds_read_u16_d16_hi v%d, v50 offset:%d" % (base + nr, 52 * y + 2 * x)); nr += 1
                        t = 120 + e
                        ops.append("v_add_f32 v%d, v%d, v%d" % (t, base + nr - 2, base + nr - 1)); vals.append("v%d" % t)
                    else:
                        u = (c - 44) >> 1; h = (c - 44) & 1; p = 8 * u + e
                        if p < 13:
                            rd.append("ds_read_u16_d16_hi v%d, v51 offset:%d" % (base + nr, 2 * fld(h, order[p]))); nr += 1
                            vals.append("v%d" % (base + nr - 1))
                        elif p == 13 and h == 0: vals.append("v21")
                        else: vals.append("0")
                ops.append("v_cvt_pk_bf16_f32 v%d, %s, %s" % (RES + 4 * ci + qf, vals[0], vals[1]))
                parts.append((rd, ops))
        issued = list(ut)
        D = cfg.FD
        fq = []
        def rd(i):
            for r in parts[i][0]: a(r); fq.append(i)
        for i in range(D): rd(i)
        for i in range(24):
            if cfg.FPRIO and i % 4 == 0 and i // 4 in (0, 2, 3, 4): a("s_setprio %d", {0: 3, 2: 2, 3: 1, 4: 0}[i // 4])
            if i + D < 24: rd(i + D)
            if parts[i][0]: a("s_waitcnt lgkmcnt(%d)", min(15, len(fq) - 1 - max(k for k, x in enumerate(fq) if x == i)))
            for o in parts[i][1]: a(o)
            if i % 4 == 3 and (i < 23 or late is None):
                for o in fwrite(i // 4): a(o)
                fq.append(-1)
            if i % 4 == 0:
                t = ft[i // 4]
                if t != "-" and (t[1] != "3" or w < 2): a(tok(t)); issued.append(t)
                if psite[w] == "F%d" % (i // 4): a(wpf); issued.append("P")
        lst5(10)
        a("s_mov_b32 s101, %d", -1 if late is None else 64 * ((late >> 1) - T0) + 16 * (late & 1))
        last0 = max(i for i, t in enumerate(issued) if t[0] == "G" and t[2] == "0")
        assert {t for t in issued + mt if t[0] == "G"} >= {"G%d%d" % (n, sh) for n in range(4 if w < 2 else 3) for sh in range(2)}
        assert all(t[2] == "1" for t in mt)
        a("s_mov_b32 s66, %d", len(issued) - 1 - last0)
        assert len(issued) - 1 - last0 <= 3
        if w < 7: a("s_branch L_folded")
    a("L_folded:")
    stamp(5)
    XP = (16, 24); XFL = list(range(64, 96)) + list(range(216, 232)) + list(range(236, 240)); TMP = 96; Z = (104, 112); FR = 120
    AC = ((144, 160), (176, 192)); RR = 240
    a("v_add_u32 v39, s101, v39")
    for t in mt: a("v_lshl_add_u32 v%d, v%d, 6, v252", 232 + int(t[1]), 60 + int(t[1]))
    a("""s_lshl_b32 s31, s29, 2
    s_mov_b32 s67, s26
    s_mov_b32 s100, 0
    s_mov_b32 vcc_lo, -1
    s_mov_b32 vcc_hi, 0""")
    for n in range(3): a("s_cmp_eq_u32 s66, %d\ns_cbranch_scc1 L_xw%d", n, n)
    for n in (3, 2, 1, 0): a("L_xw%d:\ns_waitcnt vmcnt(%d) lgkmcnt(0)%s", n, n, "\ns_branch L_xw" if n else "")
    a("L_xw:\ns_barrier")
    a("s_cmp_lt_i32 s101, 0\ns_cbranch_scc1 L_nolate\nds_write_b128 v39, v[116:119]\nL_nolate:")
    stamp(6)
    slot_of = [0, 1] * 11 + [2]
    def frag(g, tau): return FR + 8 * slot_of[g] + 4 * tau
    def rdF(g, tau):
        reg, off = (215, 64 * T0 + 32 * tau) if g == 0 else ((215, 64 * (g - 1) + 32 * tau) if g - 1 < T0 else (12, 64 * (g - 1 - T0) + 32 * tau))
        return "ds_read_b128 %s, v%d offset:%d" % (vr(frag(g, tau), 4), reg, off)
    def rdX(sm, T, nxt): return "ds_read_b64_tr_b16 %s, v%d offset:%d" % (vr(XP[sm] + 2 * T, 2), 208 + T, 512 * sm + 1024 * nxt)
    xf = {}
    for i in range(27):
        if order[i] != 26: xf[order[i]] = len(xf)
    def xread(i, sm, nxt):
        f = order[i]; d = slot[pi(f)] - slot[f]
        reg, off = {1: (212, slot[f]), -3: (213, slot[f] - 3), -1: (214, slot[f] - 1)}[d]
        return "ds_read_u16_d16_hi v%d, v%d offset:%d" % (XFL[26 * sm + xf[f]], reg, XS * off + 512 * sm + 1024 * nxt)
    def xreads(t, nxt): return [xread(i, sm, nxt) for sm in range(2) for i in sorted(first) if first[i] == t]
    for T in range(2): a(rdX(0, T, 0))
    a(rdF(0, 0))
    for o in xreads(0, 0): a(o)
    for T in range(2, 4): a(rdX(0, T, 0))
    a(rdF(0, 1))
    for T in range(4): a(rdX(1, T, 0))
    for o in xreads(1, 0): a(o)
    a("global_load_short_d16_hi v247, v3, s[18:19]\ns_waitcnt lgkmcnt(0)")
    def zops(t):
        o = []
        for sm in range(2):
            for hf in range(2):
                g = []
                for e in range(4 * hf, 4 * hf + 4):
                    x, y = slots[8 * t + e]
                    g.append("v_mul_f32 v%d, v%d, v%d" % (TMP + e, XFL[26 * sm + xf[x]], XFL[26 * sm + xf[y]]))
                for e2 in range(2 * hf, 2 * hf + 2):
                    g.append("v_cvt_pk_bf16_f32 v%d, v%d, v%d" % (Z[sm] + 4 * (t % 2) + e2, TMP + 2 * e2, TMP + 2 * e2 + 1))
                o.append(g)
        return o
    def mfc(acc, fr, b, c): return "v_mfma_f32_32x32x16_bf16 %s, %s, %s, %s" % (vr(acc, 16), vr(fr, 4), vr(b, 4), c)
    def epi(sm, dst):
        A0, A1 = AC[sm]; T = TMP + 4 * sm
        o = ["v_mul_f32 v%d, v%d, v%d" % (T + 1, A0, A1), "v_mul_f32 v%d, v%d, v%d" % (T + 2, A0 + 1, A1 + 1),
             "v_mul_f32 v%d, v%d, v%d" % (T, A0 + 12, A1 + 12), "v_fmac_f32 v%d, v%d, v%d" % (T + 1, A0 + 2, A1 + 2), "v_fmac_f32 v%d, v%d, v%d" % (T, A0 + 13, A1 + 13)]
        o += ["v_fmac_f32 v%d, v%d, v%d" % (T + 1 + i % 2, A0 + i, A1 + i) for i in range(3, 12)]
        o += ["v_cndmask_b32 v%d, 0, v%d, vcc" % (T, T), "v_add_f32 v%d, v%d, v%d" % (T + 1, T + 1, T + 2), "v_add_f32 v%d, v%d, v%d" % (dst, T, T + 1)]
        return o
    a("L_cloop:")
    dq = []
    def ds(t, tag): a(t); dq.append(tag)
    def dwait(tag):
        if tag not in dq: return
        n = len(dq) - 1 - max(i for i, t in enumerate(dq) if t == tag)
        a("s_waitcnt lgkmcnt(%d)", min(n, 15))
    def lst(k):
        if cfg.SL == 1: stamp(k)
    xq = [(t, o) for t in range(2, 22) for o in xreads(t, 0)]
    nsite = [0]
    def site(cond, body):
        nsite[0] += 1
        a("%s\ns_cbranch_scc0 L_site%d\n%s\nL_site%d:", cond, nsite[0], body, nsite[0])
    def extras(t, g):
        if g == 0:
            gn = (t + 2) % 23
            ds(rdF(gn, 0), ("F", gn if gn else -1)); ds(rdF(gn, 1), ("F", gn if gn else -1)); return
        if g == 1 and 0 <= t < len(mt):
            n = int(mt[t][1])
            site("s_cmp_lt_u32 s67, %d" % (2 if n == 3 else 8), "s_add_u32 m0, s%d, %d\ns_nop 0\nbuffer_load_dwordx4 v%d, %s, 0 offen lds" % (60 + n, C_X + 1024, 232 + n, sq(S_TAB))); return
        if g == 2 and "M%d" % t in psite:
            site("s_cmp_eq_u32 s67, %d" % psite.index("M%d" % t), wpf); return
        if (t, g) == (cfg.T_BAR, 1): site("s_cmp_lt_u32 s67, 8", "s_waitcnt vmcnt(0)\ns_barrier"); return
        if (t, g) == (cfg.T_BAR, 2): a("buffer_load_dword v248, off, %s, s31 sc1\ns_nop 0", sq(S_DBG)); return
        if g == 1 and 16 <= t < 20:
            assert cfg.T_BAR < 16
            ds(rdX(0, t - 16, 1), "X"); ds(rdX(1, t - 16, 1), "X"); return
        for k in range(2):
            if xq: ds(xq.pop(0)[1], "x")
            else: a("s_nop 0")
    z0 = zops(0)
    a(mfc(AC[0][1], frag(0, 0), XP[0], "0")); extras(-1, 0)
    for o in epi(1, RR + 1): a(o)
    a(mfc(AC[0][1], frag(0, 1), XP[0] + 4, vr(AC[0][1], 16))); extras(-1, 1)
    for o in z0[0]: a(o)
    a(mfc(AC[1][1], frag(0, 0), XP[1], "0")); extras(-1, 2)
    for o in z0[1] + z0[2][:4]: a(o)
    a(mfc(AC[1][1], frag(0, 1), XP[1] + 4, vr(AC[1][1], 16))); extras(-1, 3)
    for o in z0[2][4:] + z0[3]: a(o)
    for t in range(21):
        g = t + 1
        assert not xq or xq[0][0] - 3 >= t
        if t == 3: lst(1)
        if t == 10: lst(2)
        if t == cfg.T_BAR: lst(3)
        if t == cfg.T_BAR + 1: lst(4)
        dwait(("F", g))
        zn = zops(t + 1)
        for k, (tau, sm) in enumerate([(tau, sm) for tau in range(2) for sm in range(2)]):
            a(mfc(AC[sm][tau], frag(g, tau), Z[sm] + 4 * (t % 2), "0" if (t == 0 and tau == 0) else vr(AC[sm][tau], 16)))
            if cfg.PRIO: a("s_setprio 0")
            extras(t, k)
            for i, o in enumerate(zn[k]):
                a(o)
                if i + 1 == cfg.PRIO: a("s_setprio 1")
    lst(5)
    dwait(("F", 22))
    nx = xreads(0, 1) + xreads(1, 1)
    a(mfc(AC[0][0], frag(22, 0), Z[0] + 4, vr(AC[0][0], 16))); extras(21, 0)
    for o in nx[:6]: ds(o, "n")
    a(mfc(AC[0][1], frag(22, 1), Z[0] + 4, vr(AC[0][1], 16)))
    for o in nx[6:12]: ds(o, "n")
    a(mfc(AC[1][0], frag(22, 0), Z[1] + 4, vr(AC[1][0], 16)))
    for o in nx[12:]: ds(o, "n")
    a("""s_waitcnt vmcnt(0)
    v_readfirstlane_b32 s64, v248
    s_cmp_lt_u32 s64, 4
    s_cbranch_scc1 L_notyet
    s_mov_b32 s100, 1
    buffer_load_dword v249, v244, %s, 0 offen sc1
    L_notyet:""", sq(S_WS))
    a(mfc(AC[1][1], frag(22, 1), Z[1] + 4, vr(AC[1][1], 16)))
    a("s_cmp_eq_u32 s67, 99\ns_mov_b32 s67, 99")
    a("v_mov_b32 v%d, v%d", RR, RR + 2)
    for o in epi(0, RR + 2): a(o)
    for T in range(7): a("v_add_u32 v%d, 0x400, v%d", 208 + T, 208 + T)
    a("s_waitcnt lgkmcnt(0)")
    if cfg.STAMP:
        a("s_cbranch_scc1 L_cfin"); stamp(7); a("s_branch L_cloop")
    else: a("s_cbranch_scc0 L_cloop")
    a("L_cfin:")
    if cfg.SL < 2: stamp(8)
    for o in epi(1, RR + 3): a(o)
    a("""v_permlane32_swap_b32 v%d, v%d
    s_cmp_eq_u32 s100, 1
    s_cbranch_scc1 L_cok
    s_mov_b32 s65, 0x20000
    L_cspin:
    buffer_load_dword v248, off, %s, s31 sc1
    s_waitcnt vmcnt(0)
    v_readfirstlane_b32 s64, v248
    s_sub_u32 s65, s65, 1
    s_cbranch_scc1 L_cgo
    s_cmp_lt_u32 s64, 4
    s_cbranch_scc1 L_cspin
    L_cgo:
    buffer_load_dword v249, v244, %s, 0 offen sc1
    L_cok:
    v_permlane32_swap_b32 v%d, v%d
    v_add_f32 v%d, v%d, v%d
    v_add_f32 v%d, v%d, v%d
    s_mov_b32 s65, 0x20000
    s_nop 0
    v_permlane16_swap_b32 v%d, v%d
    v_add_f32 v%d, v%d, v%d""", RR, RR + 1, sq(S_DBG), sq(S_WS), RR + 2, RR + 3, RR, RR, RR + 1, RR + 2, RR + 2, RR + 3, RR, RR + 2, RR, RR, RR + 2)
    if cfg.SL < 2: stamp(9)
    a("""L_pspin:
    s_waitcnt vmcnt(0)
    v_cmp_eq_u32 vcc, -1, v249
    s_cbranch_vccz L_pok
    s_sub_u32 s65, s65, 1
    s_cbranch_scc1 L_pok
    buffer_load_dword v249, v244, %s, 0 offen sc1
    s_branch L_pspin
    L_pok:
    v_add_f32 v%d, v%d, v249""", sq(S_WS), RR, RR)
    for sh in (8, 4, 2, 1):
        a("s_nop 1\nv_add_f32_dpp v%d, v%d, v%d row_ror:%d row_mask:0xf bank_mask:0xf", RR, RR, RR, sh)
    a("""v_add_f32 v%d, v%d, v247
    v_cvt_pk_bf16_f32 v%d, v%d, v%d
    buffer_store_short v%d, v246, %s, 0 offen""", RR, RR, RR, RR, RR, RR, sq(S_OUT))
    stamp(11)
    if cfg.PROBE == "spin" and cfg.PX >= 100:
        a("s_getreg_b32 s66, hwreg(HW_REG_XCC_ID)\ns_sub_u32 s66, s66, s2\ns_and_b32 s66, s66, 7")
        if cfg.PX == 101: a("s_xor_b32 s66, s66, 7")
        a("s_add_u32 s66, s66, 2\ns_mul_i32 s66, s66, 1000")
        a("s_waitcnt lgkmcnt(0)\nL_sp:\ns_memrealtime s[64:65]\ns_waitcnt lgkmcnt(0)\ns_sub_u32 s64, s64, s70\ns_cmp_lt_u32 s64, s66\ns_cbranch_scc1 L_sp")
    elif cfg.PROBE == "spin":
        if cfg.PX >= 0: a("s_and_b32 s64, s2, 7\ns_cmp_lg_u32 s64, %d\ns_cbranch_scc1 L_end", cfg.PX)
        a("s_waitcnt lgkmcnt(0)\nL_sp:\ns_memrealtime s[64:65]\ns_waitcnt lgkmcnt(0)\ns_sub_u32 s64, s64, s70\ns_cmp_lt_u32 s64, %d\ns_cbranch_scc1 L_sp", cfg.PN * 100)
    dump_stamps()
    a("s_endpgm")
    cin_text = a.L; cut_cin = next(i for i, l in enumerate(cin_text) if l.startswith("L_fold0:")) - 14
    head = cin_text[:cut_cin]; tail = cin_text[cut_cin:]
    a.L = []

    a("L_loader:")
    def lst3(k):
        if cfg.SL == 3: stamp(k)
    lst3(6)
    srd(a, S_TAB, 6, 6400000)
    if cfg.TLB:
        a("s_cmp_lt_u32 s66, %d\ns_cbranch_scc1 L_notlb\nv_mul_u32_u24 v34, 100000, v0\nbuffer_load_dword v35, v34, %s, 0 offen\nL_notlb:", cfg.WPF_D, sq(S_TAB))
    else:
        a("s_cmp_lt_u32 s66, %d\ns_cbranch_scc1 L_notlb\nbuffer_load_dword v35, off, %s, 0\nL_notlb:", cfg.WPF_D, sq(S_TAB))
    stamp(1)
    a("s_mul_i32 s65, s30, 416")
    for ii in range(4):
        if ii < 3: a("s_mul_i32 s64, s66, 192\ns_add_u32 s64, s64, %d", 64 * ii)
        else: a("s_mov_b32 s64, 768")
        a("""v_add_u32 v2, s64, v0
        v_mul_u32_u24 v3, 2521, v2
        v_lshrrev_b32 v3, 16, v3
        v_mul_u32_u24 v4, 26, v3
        v_sub_u32 v4, v2, v4
        v_lshrrev_b32 v5, 1, v3
        v_xor_b32 v5, v5, v3
        v_bfe_u32 v5, v5, 2, 1
        v_mul_u32_u24 v5, 12, v5
        v_xor_b32 v3, v3, v5
        v_mul_u32_u24 v3, 1664, v3
        v_lshl_add_u32 v3, v4, 4, v3
        v_add_u32 v%d, s65, v3""", 10 + ii if ii < 3 else 9)
    lst3(7)
    srd(a, S_WS, 24, WSN); srd(a, S_DBG, 22, 256)
    a("""s_lshl_b32 s64, s29, 12
    s_lshl_b32 s65, s30, 10
    s_add_u32 s64, s64, s65
    s_lshl_b32 s65, s66, 8
    s_add_u32 s64, s64, s65
    s_add_u32 s64, s64, %d
    v_lshl_add_u32 v31, v0, 2, s64
    v_mov_b32 v30, -1
    v_mov_b32 v32, 1
    s_mul_i32 s62, s66, 3072
    s_add_u32 s62, s62, 8192
    s_lshl_b32 s63, s66, 11
    v_lshrrev_b32 v2, 2, v0
    v_mul_u32_u24 v2, 104, v2
    s_mul_i32 s68, s30, %d
    s_mul_i32 s69, s68, 53248
    s_lshl_b32 s64, s68, 2
    s_add_u32 s64, s64, s67
    v_add_u32 v14, s64, v2
    v_and_b32 v2, 3, v0
    v_bfe_u32 v3, v0, 4, 1
    v_lshlrev_b32 v3, 1, v3
    v_xor_b32 v2, v2, v3
    v_lshlrev_b32 v13, 4, v2""", WS_BOX, cfg.ROT)
    def ldB(s):
        a("s_cmp_lg_u32 s66, %d\ns_cbranch_scc1 L_q%d\ns_mov_b32 m0, %d\ns_nop 0\nbuffer_load_dwordx4 v9, %s, s69 offen lds\nL_q%d:", s % 4, s, (s % cfg.R) * SLOT + 20480, sq(S_W1), s)
        for ii in range(3):
            a("s_add_u32 m0, s62, %d\ns_nop 0", (s % cfg.R) * SLOT + 1024 * ii)
            a("buffer_load_dwordx4 v%d, %s, s69 offen lds", 10 + ii, sq(S_W1)); vm(("st", s))
        a("s_add_u32 s69, s69, 53248")
        if s >= 25 - 3 * cfg.ROT: a("s_cmp_eq_u32 s69, %d\ns_cselect_b32 s69, 0, s69", 26 * 53248)
    ireg = lambda n: 16 + 2 * (n % 4)
    def rdI(n):
        r = 14
        if n >= 26 - 3 * cfg.ROT:
            a("s_cmp_ge_u32 s68, %d\ns_cselect_b32 s64, 104, 0\nv_subrev_u32 v15, s64, v14", 26 - n); r = 15
        a("ds_read_b32 v%d, v%d offset:%d\nds_read_b32 v%d, v%d offset:%d", ireg(n), r, 4 * n, ireg(n) + 1, r, 4 * n + 1664)
    def ldA(s):
        for ii in range(2):
            a("s_add_u32 m0, s63, %d", (s % cfg.R) * SLOT + 1024 * ii)
            a("v_lshl_add_u32 v%d, v%d, 6, v13", ireg(s) + ii, ireg(s) + ii)
            a("buffer_load_dwordx4 v%d, %s, 0 offen lds", ireg(s) + ii, sq(S_TAB)); vm(("st", s))
    if cfg.APF:
        a("v_and_b32 v2, 7, v0\ns_lshl_b32 s64, s30, 3\nv_add_u32 v2, s64, v2\nv_mul_u32_u24 v2, 104, v2\nv_lshrrev_b32 v3, 3, v0\nv_lshl_add_u32 v2, v3, 2, v2\ns_add_u32 s64, s67, %d\nv_add_u32 v36, s64, v2\nv_cmp_gt_u32 vcc, %d, v3\nv_mov_b32 v38, %d", 4 * cfg.AP0, cfg.APF - cfg.AP0, OOB)
    lst3(8)
    wait_for(lambda t: t == "idx")
    stamp(2)
    for s in range(cfg.NI): rdI(s)
    if cfg.APF: a("ds_read_b32 v36, v36")
    def apf():
        if cfg.APF: a("s_waitcnt lgkmcnt(0)\nv_lshlrev_b32 v36, 6, v36\nv_cndmask_b32 v36, v38, v36, vcc\nbuffer_load_dword v37, v36, %s, 0 offen", sq(S_TAB)); vm("apf")
    if not cfg.AP0: apf()
    for s in range(cfg.NI):
        a("s_waitcnt lgkmcnt(%d)", 2 * (cfg.NI - 1 - s) + (1 if cfg.APF else 0))
        ldA(s)
        if cfg.AP0 and s == 0: apf()
        ldB(s)
    st = dict(nxt=cfg.NI, nrd=cfg.NI)
    def read_ahead(upto):
        while st["nrd"] <= min(upto, 25): rdI(st["nrd"]); st["nrd"] += 1
    assert cfg.NI + cfg.CATCH <= 4 + cfg.NI and cfg.NI <= 4
    read_ahead(st["nxt"] + cfg.CATCH - 1)
    stamp(3)
    wait_for(lambda t: t == ("st", 0))
    stamp(11)
    a("s_barrier")
    stamp(4)
    def issue(limit):
        todo = [n for n in range(st["nxt"], min(st["nxt"] + cfg.CATCH, 26)) if n <= limit]
        if not todo: return
        a("s_waitcnt lgkmcnt(0)")
        for n in todo: ldA(n); ldB(n)
        st["nxt"] = todo[-1] + 1
        read_ahead(st["nxt"] + cfg.CATCH - 1)
    marks = {2: 5, 6: 6, 10: 7, 14: 8, 20: 9} if cfg.SL != 3 else {}
    def two(limit):
        for _ in range(2): issue(limit)
    if cfg.B2: two(min(cfg.NI + cfg.PRE2 - 1, cfg.R - 1))
    else: issue(cfg.R - 1)
    for s in range(0, 26, 2 if cfg.B2 else 1):
        need = min(25, s + (2 if cfg.B2 else 1))
        if s == 24: a("s_waitcnt vmcnt(0)")
        elif s < 25: wait_for(lambda t: t == ("st", need))
        a("s_barrier")
        if s in marks: stamp(marks[s])
        if cfg.B2: two(s + cfg.R)
        else: issue(s + cfg.R)
        if s == 8:
            a("buffer_store_dword v30, v31, %s, 0 offen sc1", sq(S_WS)); vm("sent")
        if s == 24:
            assert st["nxt"] == 26
            a("s_cmp_lg_u32 s66, 0\ns_cbranch_scc1 L_noat\ns_lshl_b32 s64, s29, 2\ns_mov_b64 exec, 1\nbuffer_atomic_add v32, off, %s, s64\ns_mov_b64 exec, -1\nL_noat:", sq(S_DBG))
    stamp(10)
    dump_stamps()
    a("s_endpgm")
    loader = a.L; a.L = []

    a("L_comp:")
    ACC = lambda tt, rt: 104 + 16 * tt + 4 * rt
    W2R = 208
    XFr = lambda st_, rt: 16 + 44 * st_ + 4 * rt
    WFr = lambda st_, tt: 32 + 44 * st_ + 4 * tt
    a("""s_and_b32 s66, s26, 1
    s_lshr_b32 s67, s26, 1
    v_and_b32 v1, 15, v0
    v_lshrrev_b32 v2, 4, v0
    v_bfe_u32 v3, v0, 2, 1
    v_lshlrev_b32 v3, 1, v3
    v_xor_b32 v3, v3, v2
    v_lshlrev_b32 v3, 4, v3
    v_lshl_add_u32 v3, v1, 6, v3
    s_lshl_b32 s64, s66, 12
    s_lshl_b32 s65, s67, 11
    s_add_u32 s64, s64, s65
    v_add_u32 v4, s64, v3
    v_xor_b32 v5, 0x800, v4
    v_lshrrev_b32 v3, 5, v0
    v_bfe_u32 v8, v0, 4, 1
    v_lshlrev_b32 v3, 4, v3
    v_lshl_add_u32 v3, v8, 2, v3
    v_bfe_u32 v8, v0, 2, 2
    v_add_u32 v3, v3, v8
    v_mul_u32_u24 v3, 416, v3
    v_and_b32 v8, 3, v0
    v_lshl_add_u32 v3, v8, 3, v3
    s_mul_i32 s64, s67, 224
    s_add_u32 s64, s64, 8192
    v_add_u32 v6, s64, v3
    v_add_u32 v7, %d, v3""", 8192 + 192)
    a("""s_mul_i32 s64, s30, 416
    s_mul_i32 s65, s67, 192
    s_add_u32 s64, s64, s65
    v_lshl_add_u32 v8, v0, 3, s64
    s_mul_i32 s65, s26, 896
    s_add_u32 s65, s65, %d
    v_lshl_add_u32 v9, v0, 4, s65
    v_lshl_add_u32 v11, v2, 4, s65
    s_lshl_b32 s64, s67, 6
    v_add_u32 v10, s64, v11
    s_mul_i32 s64, s67, 384
    s_sub_u32 s64, 384, s64
    v_add_u32 v11, s64, v11
    s_waitcnt lgkmcnt(0)
    s_mov_b64 exec, 0xfffffff
    global_load_dwordx2 v[12:13], v8, s[14:15]
    global_load_dwordx2 v[14:15], v8, s[16:17]
    s_mov_b64 exec, -1""", D_BW)
    stamp(1)
    srd(a, S_WS, 24, WSN)
    a("""s_lshl_b32 s64, s29, 12
    s_lshl_b32 s65, s30, 10
    s_add_u32 s64, s64, s65
    s_lshl_b32 s65, s67, 9
    s_add_u32 s64, s64, s65
    s_lshl_b32 s65, s66, 8
    s_add_u32 s64, s64, s65
    s_add_u32 s64, s64, %d
    s_lshl_b32 s65, s67, 5
    v_xor_b32 v1, s65, v0
    v_lshl_add_u32 v244, v1, 2, s64
    s_waitcnt vmcnt(0)
    s_mov_b64 exec, 0xfffffff
    v_lshlrev_b32 v16, 16, v12
    v_and_b32 v17, 0xffff0000, v12
    v_lshlrev_b32 v18, 16, v13
    v_and_b32 v19, 0xffff0000, v13
    v_lshlrev_b32 v20, 16, v14
    v_and_b32 v21, 0xffff0000, v14
    v_lshlrev_b32 v22, 16, v15
    v_and_b32 v23, 0xffff0000, v15
    ds_write_b128 v9, v[16:19]
    ds_write_b128 v9, v[20:23] offset:448
    s_mov_b64 exec, -1
    s_waitcnt lgkmcnt(0)""", WS_BOX)
    for tt in range(7):
        ar, off = (10, 64 * tt) if tt < 6 else (11, 0)
        for rt in range(4 if tt < 6 else 2): a("ds_read_b128 %s, v%d offset:%d", vr(ACC(tt, rt), 4), ar, off)
        a("ds_read_b128 %s, v%d offset:%d", vr(W2R + 4 * tt, 4), ar, off + 448)
    a("""s_mov_b32 s66, 1
    s_mov_b32 s67, 13
    s_mov_b32 s68, %d
    s_mov_b32 s69, %d
    s_mov_b32 s62, 0x%x
    s_mov_b32 s63, 0x%x
    v_mov_b32 v8, 0x%x
    v_mov_b32 v9, 0x%x
    v_mov_b64 v[236:237], 0
    v_mov_b64 v[238:239], 0
    v_mov_b64 v[240:241], 0
    v_mov_b64 v[242:243], 0
    s_waitcnt lgkmcnt(0)""", -(cfg.R - 1) * SLOT, SLOT, f32bits(c2), f32bits(c2), f32bits(c1), f32bits(c1))
    def reads(st_):
        x = lambda rt: "ds_read_b128 %s, v%d offset:%d" % (vr(XFr(st_, rt), 4), 4 + rt // 2, 1024 * (rt & 1))
        w = lambda tt, u: "ds_read_b64_tr_b16 %s, v%d offset:%d" % (vr(WFr(st_, tt) + 2 * u, 2), 6 if tt < 6 else 7, (32 * tt if tt < 6 else 0) + 3328 * u)
        return [x(0), w(0, 0), w(0, 1), x(1), x(2), x(3)] + [w(tt, u) for tt in range(1, 7) for u in range(2)]
    def mf(st_, tt, rt): return "v_mfma_f32_16x16x32_bf16 %s, %s, %s, %s" % (vr(ACC(tt, rt), 4), vr(WFr(st_, tt), 4), vr(XFr(st_, rt), 4), vr(ACC(tt, rt), 4))
    stamp(6)
    a("s_barrier")
    stamp(2)
    for r in reads(0): a(r)
    for k in range(4): a("v_add_u32 v%d, s69, v%d", 4 + k, 4 + k)
    a("L_dloop:")
    for st_ in range(2):
        a("s_waitcnt lgkmcnt(0)")
        if st_ == 0 or not cfg.B2: a("s_barrier")
        r = reads(1 - st_)
        fill = r + ["s_add_u32 s66, s66, 1\ns_cmp_eq_u32 s66, %d" % cfg.R, "s_cselect_b32 s64, s68, s69\ns_cselect_b32 s66, 0, s66"] + ["v_add_u32 v%d, s64, v%d" % (4 + k, 4 + k) for k in range(4)]
        if st_ == 1: fill += ["s_sub_u32 s67, s67, 1\ns_cmp_lg_u32 s67, 0"]
        ms = [(tt, rt) for tt in range(7) for rt in range(4 if tt < 6 else 2)]
        for k, (tt, rt) in enumerate(ms):
            a(mf(st_, tt, rt))
            if k < len(fill): a(fill[k])
    a("s_cbranch_scc1 L_dloop")
    stamp(3)
    def gelu(acc, w2, T):
        P = range(4)
        x = lambda i: vr(acc + 2 * i, 2); t = lambda i: vr(T + 2 * i, 2)
        for i in P: a("v_pk_mul_f32 %s, %s, %s", t(i), x(i), x(i))
        for i in P: a("v_pk_fma_f32 %s, %s, s[62:63], v[8:9]", t(i), t(i))
        for i in P: a("v_pk_mul_f32 %s, %s, %s", t(i), t(i), x(i))
        for i in range(8): a("v_exp_f32 v%d, v%d", T + i, T + i)
        for i in P: a("v_pk_mul_f32 %s, %s, %s", x(i), x(i), vr(w2 + 2 * (i & 1), 2))
        for i in P: a("v_pk_add_f32 %s, %s, 1.0 op_sel_hi:[1,0]", t(i), t(i))
        for i in range(8): a("v_rcp_f32 v%d, v%d", T + i, T + i)
    def gelu_fin(acc, T, rt):
        for i in (0, 2, 1, 3): a("v_pk_fma_f32 %s, %s, %s, %s", vr(236 + 2 * (rt + i // 2), 2), vr(acc + 2 * i, 2), vr(T + 2 * i, 2), vr(236 + 2 * (rt + i // 2), 2))
    a("s_waitcnt lgkmcnt(0)")
    pend = None; k = 0
    for tt in range(7):
        for rt in ((0, 2) if tt < 6 else (0,)):
            T = 16 + 8 * (k % 2); k += 1
            gelu(ACC(tt, rt), W2R + 4 * tt, T)
            if pend: gelu_fin(*pend)
            pend = (ACC(tt, rt), T, rt)
    a("s_nop 0"); gelu_fin(*pend)
    a("""v_add_f32 v236, v236, v237
    v_add_f32 v240, v240, v241
    v_add_f32 v238, v238, v239
    v_add_f32 v242, v242, v243
    v_permlane32_swap_b32 v236, v240
    s_nop 0
    v_permlane32_swap_b32 v238, v242
    v_add_f32 v236, v236, v240
    v_add_f32 v238, v238, v242
    s_nop 1
    v_permlane16_swap_b32 v236, v238
    v_add_f32 v236, v236, v238
    buffer_store_dword v236, v244, %s, 0 offen sc1""", sq(S_WS))
    stamp(4)
    dump_stamps()
    a("L_end:\ns_endpgm")
    comp = a.L
    k1 = next(i for i, l in enumerate(loader) if "s_barrier" in l)
    k2 = next(i for i, l in enumerate(comp) if l.startswith("L_dloop:"))
    body = "\n".join(head + ["    s_branch L_cin2"] + loader + comp + ["L_cin2:"] + tail) + "\n"

    hdr = open("standalone__deep_cross_xdeepfm__recsys.s.ref").read().split("; Override launch")[0]
    out = hdr + "; Written by the author's own generator script. Workgroups with (id>>3)<16 run a 128x208 tile of the MLP GEMM,\n; the others fold the CIN weights, evaluate the two quadratic forms per column and combine.\n"
    out += "; @launch grid=(256,1,1) block=(512,1,1) lds=163840\n"
    out += '.amdgcn_target "amdgcn-amd-amdhsa--gfx950"\n.text\n.globl %s\n.p2align 8\n.type %s,@function\n%s:\n' % (KN, KN, KN)
    out += body + "L_codeend:\n"
    out += """.section .rodata,"a"
.p2align 6
.amdhsa_kernel %s
  .amdhsa_next_free_vgpr 256
  .amdhsa_next_free_sgpr 102
  .amdhsa_accum_offset 256
  .amdhsa_group_segment_fixed_size 0
  .amdhsa_kernarg_size 88
  .amdhsa_user_sgpr_count 2
  .amdhsa_user_sgpr_kernarg_segment_ptr 1
  .amdhsa_system_sgpr_workgroup_id_x 1
  .amdhsa_float_denorm_mode_32 3
.end_amdhsa_kernel
""" % KN
    return out, lint(body)

if __name__ == "__main__":
    cfg = Cfg()
    path = sys.argv[1]
    for kv in sys.argv[2:]:
        k, v = kv.split("=")
        old = getattr(cfg, k)
        v = v.replace("_", " ") if k.startswith("ORD") or k == "PSITE" else v
        setattr(cfg, k, v if isinstance(old, str) else (bool(int(v)) if isinstance(old, bool) else int(v)))
    out, nb = generate(cfg)
    open(path, "w").write(out)
    print("written", path, "hazards:", nb)
```

```python
import sys, math, struct
from scheme import build as build_scheme, pi
from lint import lint

KN = "standalone__deep_cross_xdeepfm__recsys_kernel"
class Cfg:
    NI = 2
    CATCH = 1
    R = 6
    WPF_D = 3
    TLB = 0
    AP0 = 0
    APF = 6
    GF0 = 6
    ORD_U = "G00 G01 G10"
    ORD_F = "G20 G30 - - - -"
    ORD_M = "G11 G21 G31"
    PSITE = "F0 F2 F5 M1 M3 M5 M7 M9"
    NS1 = 2
    ROT = 0
    PRE2 = 2
    B2 = 0
    WPF2 = 0
    ALLI = 1
    LPRIO = 0
    PMASK = 15
    PAD = 0
    WLATE = 1
    FPRIO = 1
    CPRIO = 0
    EACC = 0
    DUAL = 0
    FD = 3
    T_BAR = 15
    PRIO = 1
    STAMP = False
    RT = 0
    SL = 0
    CODEPF = True
    PROBE = "none"
    PN = 64
    PX = -1
def f32bits(x): return struct.unpack("<I", struct.pack("<f", x))[0]
class A:
    def __init__(s): s.L = []
    def __call__(s, t, *a):
        if a: t = t % a
        for l in t.split("\n"):
            l = l.strip()
            if l: s.L.append(l if l.endswith(":") else "    " + l)
    def text(s): return "\n".join(s.L) + "\n"
def vr(a, n): return "v[%d:%d]" % (a, a + n - 1)

SLOT = 21504
XW = 3328
PS = 128 + 8 * XW
C_W0 = 2 * PS; C_W1 = C_W0 + 35152
FS = 1488
C_F = C_W1
C_W2 = C_F + 26 * FS - 16
C_U = C_W2 + 4; C_L = C_U + 35152
VS = 80
C_VT = C_W1 + 35152 + 352
C_WC = C_VT + 2176 + 8
C_IDX = [PS + 128 + 1024, PS + 128 + XW + 1024]
assert C_L + 1352 <= 163840 and C_W2 + 35 * 1024 <= 163840 and C_WC + 256 <= C_W2
assert C_VT % 16 == 0 and (C_WC + 104) % 16 == 0 and (C_U - C_W0) % 8 == 4 and C_F % 16 == 0 and C_W2 % 8 == 0
WS_BOX = 0; WS_ST = 262144
OOB = 0x7ff00000
def srd(a, s, ptr, n):
    a("s_mov_b32 s%d, s%d\ns_mov_b32 s%d, s%d\ns_mov_b32 s%d, %d\ns_mov_b32 s%d, 0x20000", s, ptr, s + 1, ptr + 1, s + 2, n, s + 3)
S_IDX, S_TAB, S_W1, S_WS, S_WC, S_DBG, S_OUT, S_M = 32, 36, 40, 44, 48, 52, 56, 96
def sq(s): return "s[%d:%d]" % (s, s + 3)

def generate(cfg):
    sch = build_scheme()
    order = sch["order"]; fld = sch["fld"]; slot = sch["slot"]; first = sch["first"]; slots = sch["slots"]
    act = lambda lab: (slot[lab] + cfg.GF0) % 26
    assert all(t in ("G00", "G10", "G20", "G30", "G01") for t in cfg.ORD_U.split())
    D_IDX = cfg.R * SLOT; D_BW = D_IDX + 13312
    assert D_BW + 3584 <= 163840
    a = A()
    def stamp(k):
        if cfg.STAMP: a("%s s[%d:%d]", "s_memrealtime" if cfg.RT else "s_memtime", 72 + 2 * k, 73 + 2 * k)
    def dump_stamps():
        if not cfg.STAMP: return
        a("s_memrealtime s[64:65]\ns_waitcnt vmcnt(0) lgkmcnt(0)\nv_mov_b32 v239, s64")
        for k in range(12): a("v_mov_b32 v%d, s%d", 224 + k, 72 + 2 * k)
        a("v_mov_b32 v236, s70\nv_mov_b32 v237, s2\nv_mov_b32 v238, s26")
        a("s_lshl_b32 s64, s2, 3\ns_add_u32 s64, s64, s26\ns_lshl_b32 s64, s64, 6\ns_add_u32 s64, s64, %d", WS_ST)
        a("v_mov_b32 v240, s64\ns_mov_b64 exec, 1")
        srd(a, S_WS, 24, 0x100000)
        for k in range(4): a("buffer_store_dwordx4 v[%d:%d], v240, %s, 0 offen offset:%d", 224 + 4 * k, 227 + 4 * k, sq(S_WS), 16 * k)
    WSN = WS_BOX + (262144 if cfg.DUAL else 131072)
    c1 = -2.0 * math.log2(math.e) * math.sqrt(2.0 / math.pi); c2 = c1 * 0.044715

    a("s_cmp_ge_u32 s2, 256\ns_cbranch_scc1 L_end")
    if cfg.STAMP:
        for k in range(12): a("s_mov_b32 s%d, 0", 72 + 2 * k)
    if cfg.STAMP or cfg.PROBE == "spin": a("s_memrealtime s[70:71]")
    stamp(0)
    a("""s_load_dwordx16 s[4:19], s[0:1], 0
    s_load_dwordx4 s[20:23], s[0:1], 64
    s_load_dwordx2 s[24:25], s[0:1], 80
    v_lshrrev_b32 v1, 6, v0
    v_and_b32 v0, 63, v0
    s_lshr_b32 s28, s2, 3
    v_readfirstlane_b32 s26, v1""")
    if cfg.CODEPF:
        a("""s_getpc_b64 s[64:65]
        L_pfbase:
        s_cmp_lg_u32 s26, 7
        s_cbranch_scc1 L_nopf
        s_lshl_b32 s66, s28, 10
        v_and_b32 v2, 7, v0
        v_lshl_add_u32 v2, v2, 7, s66
        v_min_u32 v2, L_codeend-L_pfbase-4, v2
        global_load_dword v255, v2, s[64:65]
        L_nopf:""")
    a("""s_and_b32 s27, s2, 7
    s_and_b32 s30, s28, 3
    s_bfe_u32 s29, s28, 0x20002
    s_lshl_b32 s64, s27, 2
    s_add_u32 s29, s29, s64
    v_lshlrev_b32 v2, 4, v0
    v_lshlrev_b32 v251, 7, v0
    s_cmp_ge_u32 s28, 16
    s_cbranch_scc1 L_cin
    s_cmp_lt_u32 s26, 4
    s_cbranch_scc1 L_comp""")
    q = []
    def vm(tag): q.append(tag)
    def wait_for(pred):
        last = max(i for i, t in enumerate(q) if pred(t))
        n = len(q) - 1 - last
        assert n < 64
        a("s_waitcnt vmcnt(%d)", n)
    a("""s_sub_u32 s66, s26, 4
    s_lshl_b32 s64, s29, 2
    s_add_u32 s64, s64, s66
    s_mul_i32 s64, s64, 3328
    s_mul_i32 s67, s66, 3328
    s_add_u32 s67, s67, %d
    s_mov_b32 m0, s67
    s_lshl_b32 s65, s66, 4
    s_add_u32 s65, s65, s28
    s_lshl_b32 s65, s65, 13
    s_waitcnt lgkmcnt(0)""", D_IDX)
    srd(a, S_IDX, 4, 425984)
    for i in range(4):
        if i == 3: a("s_mov_b64 exec, 0xffff")
        a("buffer_load_dwordx4 v2, %s, s64 offen offset:%d lds", sq(S_IDX), 1024 * i); vm("idx")
    a("s_mov_b64 exec, -1")
    srd(a, S_W1, 12, 1384448)
    if cfg.WLATE: a("s_mov_b32 s60, s65\ns_branch L_loader")
    else: a("s_cmp_ge_u32 s66, %d\ns_cbranch_scc1 L_loader\nbuffer_load_dword v35, v251, %s, s65 offen\ns_branch L_loader", cfg.WPF_D, sq(S_W1))
    vm("wpf")
    if cfg.SL == 3:
        k = max(i for i, l in enumerate(a.L) if "s_cmp_ge_u32 s66" in l); sv = a.L[k:]; a.L = a.L[:k]; stamp(5); a.L += sv

    a("L_cin:")
    NE = 16 * (4 if cfg.WPF2 else cfg.WPF_D)
    psite = cfg.PSITE.split()
    def lst2(k):
        if cfg.SL == 2 or (cfg.SL == 8 and k == 8): stamp(k)
    def lst4(k):
        if cfg.SL == 4: stamp(k)
    def lst5(k):
        if cfg.SL == 5: stamp(k)
    def stage(lo, cnt, sreg):
        hi = lo + cnt - 1
        src = lambda o: 70304 + 1024 * o if o < 36 else (1024 * (o - 2) if o < 71 else 1024 * (o - 71))
        dst = lambda o: C_W2 + 1024 * o if o < 36 else C_W0 + src(o)
        if src(hi) - src(lo) == 1024 * (cnt - 1):
            return "s_add_u32 m0, %s, %d\ns_add_u32 s64, %s, %d\nbuffer_load_dwordx4 v2, %s, s64 offen lds" % (sreg, dst(lo), sreg, src(lo), sq(S_WC))
        assert lo >= 36
        return "s_mov_b32 s65, %d\ns_cmp_lt_u32 %s, %d\ns_cselect_b32 s64, s65, %d\ns_add_u32 s64, s64, %s\ns_add_u32 m0, s64, %d\ns_nop 0\nbuffer_load_dwordx4 v2, %s, s64 offen lds" % (src(lo), sreg, 1024 * (71 - lo), src(hi) - 1024 * (cnt - 1), sreg, C_W0, sq(S_WC))
    a("""s_sub_u32 s31, s28, 16
    s_lshl_b32 s3, s26, 10
    v_lshlrev_b32 v6, 2, v0
    s_lshl_b32 s64, s29, 3
    s_lshl_b32 s65, s30, 1
    s_add_u32 s64, s64, s65
    s_add_u32 s64, s64, s26
    s_mul_i32 s66, s64, 1664
    s_mul_i32 s65, s26, %d
    s_add_u32 s67, s65, %d
    s_lshl_b32 s68, s31, 13
    s_and_b32 s101, s3, 0x7ff
    s_lshr_b32 s64, s26, 2
    s_lshl_b32 s64, s64, 11
    s_add_u32 s101, s101, s64
    s_waitcnt lgkmcnt(0)""", C_IDX[1] - C_IDX[0], C_IDX[0])
    srd(a, S_WC, 8, 105456)
    a("s_cmp_eq_u32 s26, 7\ns_cbranch_scc1 L_c4\ns_bitcmp1_b32 s26, 1\ns_cbranch_scc0 L_c1")
    a(stage(32, 4, "s101"))
    a("s_branch L_c4\nL_c1:\ns_cmp_ge_u32 s26, 4\ns_cbranch_scc1 L_c2\ns_mov_b32 m0, s67")
    srd(a, S_IDX, 4, 425984)
    a("""buffer_load_dwordx4 v2, %s, s66 offen lds
    buffer_load_dwordx4 v2, %s, s66 offen offset:1024 lds
    s_branch L_c4
    L_c2:
    s_cmp_eq_u32 s26, 5
    s_cbranch_scc1 L_c3
    buffer_load_dword v255, v251, %s, s68 offen
    s_branch L_c4
    L_c3:
    s_mov_b32 m0, %d""", sq(S_IDX), sq(S_IDX), sq(S_WC), C_WC)
    srd(a, S_M, 10, 156)
    a("buffer_load_dword v6, %s, 0 offen lds\nL_c4:", sq(S_M))
    for n in range(4): a(stage(8 * n, 8, "s3"))
    stamp(1)
    a("""s_mul_i32 s64, s26, 272
    s_add_u32 s64, s64, %d
    v_add_u32 v1, s64, v6
    v_mov_b32 v3, 0
    ds_write_b32 v1, v3
    ds_write_b32 v1, v3 offset:16
    v_lshrrev_b32 v5, 4, v0
    v_lshlrev_b32 v38, 4, v5
    v_add_u32 v38, %d, v38
    v_and_b32 v7, 15, v0
    v_lshrrev_b32 v1, 5, v0
    v_lshl_add_u32 v8, v1, 4, v7
    v_min_u32 v8, 25, v8
    v_lshlrev_b32 v9, 1, v8
    v_add_u32 v9, %d, v9
    v_add_u32 v36, %d, v6
    v_add_u32 v37, %d, v6
    v_mov_b32 v21, 0
    v_mov_b32 v247, 0
    v_bfe_u32 v23, v0, 2, 2
    v_bfe_u32 v22, v0, 4, 1
    v_and_b32 v13, 3, v0
    v_lshlrev_b32 v13, 3, v13""", C_VT, C_WC + 104, C_WC, C_WC + 52, C_VT + 26 * VS)
    a("""v_lshl_add_u32 v4, v5, 3, v23
    v_add_u32 v15, 4, v4
    v_min_u32 v4, 25, v4
    v_min_u32 v15, 25, v15
    v_mul_u32_u24 v4, 1352, v4
    v_mul_u32_u24 v15, 1352, v15
    s_and_b32 s65, s26, 1
    s_mul_i32 s64, s26, 52
    s_lshl_b32 s67, s65, 2
    s_sub_u32 s64, s64, s67
    s_add_u32 s64, s64, %d
    v_add3_u32 v10, v4, v13, s64
    v_add3_u32 v11, v15, v13, s64
    s_mul_i32 s67, s65, %d
    s_lshl_b32 s64, s26, 1
    s_sub_u32 s64, s64, s67
    s_add_u32 s64, s64, %d
    v_mul_u32_u24 v32, %d, v7
    v_add_u32 v32, s64, v32
    s_cmp_eq_u32 s65, 0
    s_cselect_b32 s68, 0, 3
    s_xor_b32 s68, s68, 0xffff
    s_cmp_eq_u32 s65, 0
    s_cselect_b32 s27, 0x3ff, 0
    s_cselect_b32 s65, 0, 0xfff
    s_or_b32 s27, s27, s65""", C_W2, 2 * VS, C_VT, VS)
    srd(a, S_TAB, 6, 6400000); srd(a, S_W1, 12, 1384448)
    a("""v_lshl_add_u32 v4, v1, 3, v23
    v_lshl_add_u32 v15, v22, 5, v13
    s_mul_i32 s64, s26, 104
    s_add_u32 s64, s64, %d
    v_mul_u32_u24 v40, 1352, v4
    v_add3_u32 v40, v40, v15, s64
    v_add_u32 v41, %d, v40
    v_add_u32 v14, 16, v4
    v_add_u32 v4, 20, v4
    v_min_u32 v14, 25, v14
    v_min_u32 v4, 25, v4
    v_mul_u32_u24 v14, 1352, v14
    v_mul_u32_u24 v4, 1352, v4
    v_add3_u32 v42, v14, v15, s64
    v_add3_u32 v43, v4, v15, s64
    v_and_b32 v4, 31, v0
    v_min_u32 v44, 26, v4
    v_mul_u32_u24 v44, %d, v44
    v_lshl_add_u32 v44, v1, 4, v44
    v_add_u32 v44, %d, v44
    v_mul_u32_u24 v15, 52, v4
    v_add_u32 v15, %d, v15
    v_mov_b32 v14, %d
    v_cmp_gt_u32 vcc, 26, v4
    v_mov_b32 v24, 104
    v_mov_b32 v25, 2704
    v_cndmask_b32 v15, v14, v15, vcc
    v_cndmask_b32 v14, v24, v25, vcc
    v_subrev_u32 v24, 16, v4
    v_lshl_add_u32 v15, v1, 3, v15
    v_cndmask_b32 v24, v24, v4, vcc
    s_add_u32 s67, s26, 8
    s_min_u32 s67, s67, 12
    v_mad_u32_u24 v46, v14, s26, v15
    v_mad_u32_u24 v48, v14, s67, v15
    v_lshrrev_b32 v14, 1, v14
    v_add3_u32 v47, v46, v14, -4
    v_add3_u32 v49, v48, v14, -4
    s_sub_u32 s67, s67, s26
    s_mul_i32 s67, s67, 104
    v_mul_u32_u24 v25, %d, v24
    v_lshl_add_u32 v25, v1, 4, v25
    v_add_u32 v215, %d, v25""", C_W1, 4 * 1352, VS, C_VT, C_U, C_L, FS, C_F)
    a("""s_mul_i32 s100, s26, %d
    s_add_u32 s100, s100, 128
    v_lshl_add_u32 v4, v4, 1, s100
    v_lshl_add_u32 v212, v1, 7, v4
    v_xor_b32 v14, 1, v1
    v_lshl_add_u32 v214, v14, 7, v4
    v_lshl_add_u32 v213, v14, 8, v214
    v_lshl_add_u32 v4, v1, 2, v23
    v_lshlrev_b32 v4, 3, v4
    v_lshl_add_u32 v14, v22, 5, v13
    v_add_u32 v15, s100, v14
    v_cmp_eq_u32 vcc, 1, v23""", XW)
    assert order[13] == 26
    for T in range(4):
        by = [slot[fld(h, order[4 * T + rr])] for h in range(2) for rr in range(4)]
        lo = sum(b << (8 * i) for i, b in enumerate(by[:4])); hi = sum(b << (8 * i) for i, b in enumerate(by[4:]))
        a("s_mov_b32 s64, 0x%x\ns_mov_b32 s65, 0x%x\nv_lshrrev_b64 v[28:29], v4, s[64:65]\nv_and_b32 v28, 0xff, v28\nv_lshl_add_u32 v%d, v28, 7, v15", lo, hi, 208 + T)
    a("v_cndmask_b32 v211, v211, v14, vcc")
    a("""v_mul_u32_u24 v50, 1352, v8
    v_mul_u32_u24 v15, %d, v22
    v_add_u32 v50, v50, v15
    v_add_u32 v50, %d, v50
    v_mul_u32_u24 v51, 52, v8
    v_add_u32 v51, %d, v51
    v_mul_u32_u24 v52, %d, v8
    v_lshl_add_u32 v52, v22, 5, v52
    v_add_u32 v52, %d, v52""", C_U - C_W0, C_W0, C_L, FS, C_F)
    a("""v_and_b32 v15, 1, v23
    v_lshl_add_u32 v15, v15, 3, s26
    v_mul_u32_u24 v15, 104, v15
    v_and_b32 v14, 3, v0
    v_lshlrev_b32 v252, 4, v14
    v_lshrrev_b32 v4, 3, v0""")
    for n in range(4):
        f0 = (cfg.GF0 + 8 * n) % 26
        if f0 + 7 < 26: a("v_lshl_add_u32 v%d, v4, 2, v15\nv_add_u32 v%d, %d, v%d", 24 + n, 24 + n, 4 * f0, 24 + n)
        else: a("v_add_u32 v14, %d, v4\nv_subrev_u32 v28, 26, v14\nv_min_u32 v14, v14, v28\nv_lshl_add_u32 v%d, v14, 2, v15", f0, 24 + n)
    for r in list(range(64, 96, 2)) + list(range(216, 232, 2)) + [236, 238]: a("v_mov_b64 v[%d:%d], 0", r, r + 1)
    a("s_lshl_b32 s64, s26, 4\ns_add_u32 s64, s64, s31\ns_add_u32 s64, s64, %d\ns_lshl_b32 s69, s64, 13", NE)
    srd(a, S_WS, 24, WSN); srd(a, S_DBG, 22, 256); srd(a, S_OUT, 20, 8192)
    a("""v_lshl_add_u32 v4, v22, 1, v1
    v_lshl_add_u32 v4, v4, 3, s26
    s_lshl_b32 s64, s30, 5
    v_add_u32 v4, s64, v4
    v_lshlrev_b32 v14, 2, v4
    v_lshl_add_u32 v14, v7, 9, v14
    s_lshl_b32 s64, s29, 12
    s_add_u32 s64, s64, %d
    v_add_u32 v14, s64, v14
    v_mov_b32 v15, %d
    v_add_u32 v28, %d, v14
    v_cmp_gt_u32 vcc, 8, v7
    s_lshl_b32 s64, s29, 8
    v_lshl_add_u32 v4, v4, 1, s64
    v_cndmask_b32 v244, %s, v14, vcc
    v_cmp_eq_u32 vcc, 0, v7
    s_nop 1
    v_cndmask_b32 v246, v15, v4, vcc""", WS_BOX, OOB, 131072 - 4096, "v28" if cfg.DUAL else "v15")
    a("v_and_b32 v33, 31, v0\nv_lshlrev_b32 v33, 2, v33\nv_mul_u32_u24 v14, %d, v1\nv_add_u32 v33, v33, v14\nv_mov_b32 v34, 0x3f803f80\nds_write_b32 v33, v34", PS)
    lst2(8)
    a("s_and_b32 s101, s3, 0xfff\ns_cmp_ge_u32 s26, 4\ns_cbranch_scc1 L_c7")
    for n in range(9): a(stage(36 + 4 * n, 4, "s101"))
    if cfg.SL == 8: stamp(9)
    a("s_waitcnt vmcnt(9) lgkmcnt(0)")
    if cfg.SL == 8: stamp(10)
    a("s_branch L_c8\nL_c7:")
    for n in range(cfg.NS1): a(stage(72 + 4 * n, 4, "s101"))
    if cfg.SL == 8: stamp(9); a("s_waitcnt vmcnt(%d)", cfg.NS1); stamp(10)
    a("s_waitcnt vmcnt(%d) lgkmcnt(0)\ns_cmp_lg_u32 s26, 7\ns_cbranch_scc1 L_c8\ns_mov_b32 m0, %d\ns_mov_b32 s64, %d\nbuffer_load_dwordx4 v2, %s, s64 offen lds\nL_c8:\ns_barrier", cfg.NS1, C_W0 + 33 * 1024, 33 * 1024, sq(S_WC))
    stamp(2)
    a("ds_read_b128 v[16:19], v38")
    def vread(m):
        a("ds_read_b64_tr_b16 %s, v10 offset:%d", vr(96 + 4 * m, 2), 416 * (m >> 1) + 32 * (m & 1))
        a("ds_read_b64_tr_b16 %s, v11 offset:%d", vr(98 + 4 * m, 2), 416 * (m >> 1) + 32 * (m & 1))
    def vmul(m): a("v_mfma_f32_16x16x32_bf16 %s, v[16:19], %s, 0", vr(128 + 4 * m, 4), vr(96 + 4 * m, 4))
    def vwrite(ms):
        for jh in range(2):
            a("s_mov_b32 exec_lo, %s", "s68" if jh == 0 else "s27")
            for m in ms:
                if m & 1 == jh:
                    a("v_cvt_pk_bf16_f32 v%d, v%d, v%d", 96 + m, 128 + 4 * m, 128 + 4 * m)
                    a("ds_write_b16 v32, v%d offset:%d", 96 + m, 16 * VS * jh + 16 * (m >> 1))
    for m in range(6): vread(m)
    rest = list(range(72 + 4 * cfg.NS1, 104, 4))
    for m in range(6):
        a("s_waitcnt lgkmcnt(%d)", 2 * (5 - m)); vmul(m)
    lst4(8)
    a("s_cmp_ge_u32 s26, 2\ns_cbranch_scc1 L_v1")
    vread(6); vread(7)
    a("L_v1:")
    a("ds_read_b32 v20, v36\nds_read_u16_d16_hi v21, v9\ns_mov_b32 exec_hi, 0")
    vwrite(range(6))
    a("s_cmp_ge_u32 s26, 2\ns_cbranch_scc1 L_v2\ns_mov_b64 exec, -1\ns_waitcnt lgkmcnt(8)")
    vmul(6); vmul(7)
    a("s_nop 6\ns_mov_b32 exec_hi, 0")
    vwrite((6, 7))
    a("""L_v2:
    s_cmp_lg_u32 s26, 3
    s_cbranch_scc1 L_c5
    s_mov_b32 exec_lo, 0x1fff
    s_waitcnt lgkmcnt(6)
    ds_write_b32 v37, v20
    L_c5:
    s_mov_b64 exec, -1""")
    lst4(9)
    a("s_cmp_ge_u32 s26, 4\ns_cbranch_scc1 L_c9\ns_waitcnt vmcnt(0)\nL_c9:")
    lst4(10)
    a("s_waitcnt lgkmcnt(0)\ns_barrier")
    stamp(3)
    def gather(n, sh, r=None):
        calc = "v_lshl_add_u32 v%d, v%d, 6, v252" % (((56 if sh == 0 else 60) + n,) * 2) if r is None else "s_nop 0"
        r = r or (56 if sh == 0 else 60) + n
        ld = "buffer_load_dwordx4 v%d, %s, 0 offen lds" % (r, sq(S_TAB))
        if n == 3: ld = "s_mov_b64 exec, 0xffff\n" + ld + "\ns_mov_b64 exec, -1"
        return "s_add_u32 m0, s100, %d\n%s\n%s" % (PS * sh + 1024 * n, calc, ld)
    wpf = "buffer_load_dword v255, v251, %s, s69 offen" % sq(S_W1)
    if NE + 128 < 169 and not cfg.WPF2: wpf += "\ns_add_u32 s64, s69, %d\nbuffer_load_dword v255, v251, %s, s64 offen" % (128 << 13, sq(S_W1))
    npf = wpf.count('buffer_load')
    a("ds_read_b128 v[96:99], v44\nds_read_b128 v[100:103], v44 offset:32")
    def uread(par, base):
        for k in range(4): a("ds_read_b64_tr_b16 %s, v%d offset:%d", vr(base + 2 * k, 2), 40 + k, 48 * par)
    uread(0, 104); uread(1, 112)
    ut = cfg.ORD_U.split(); ft = cfg.ORD_F.split(); mt = cfg.ORD_M.split()
    def tok(t): return gather(int(t[1]), int(t[2]))
    for k in range(4): a("v_add_u32 v%d, s67, v%d", 40 + k, 40 + k)
    a("s_mov_b32 s66, 0x7ffffff\ns_mov_b32 s67, 0x7ffffff")
    def umfma(base, acc):
        a("v_mfma_f32_32x32x16_bf16 %s, %s, v[96:99], 0", vr(acc, 16), vr(base, 4))
        a("v_mfma_f32_32x32x16_bf16 %s, %s, v[100:103], %s", vr(acc, 16), vr(base + 4, 4), vr(acc, 16))
    def uwrite(acc, par, areg, tmp):
        for i in range(8 if par else 7): a("v_cvt_pk_bf16_f32 v%d, v%d, v%d", tmp + i, acc + 2 * i, acc + 2 * i + 1)
        w2 = lambda i: a("ds_write2_b32 v%d, v%d, v%d offset0:%d offset1:%d", areg, tmp + i, tmp + i + 1, 2 * i, 2 * i + 1)
        a("s_mov_b64 exec, s[66:67]")
        for i in ((0, 2, 4) if par == 0 else (2, 4)): w2(i)
        a("s_mov_b32 exec_hi, 0")
        if par == 0: a("ds_write_b32 v%d, v%d offset:48", areg, tmp + 6)
        else:
            w2(6); a("ds_write_b32 v%d, v%d offset:4", areg, tmp + 1)
            a("s_mov_b32 exec_lo, 0\ns_mov_b32 exec_hi, s67"); w2(0)
        a("s_mov_b64 exec, -1")
    a("s_cmp_ge_u32 s26, 4\ns_cbranch_scc1 L_u0")
    for o in rest: a(stage(o, 4, "s101"))
    a("L_u0:")
    a("s_waitcnt lgkmcnt(4)"); umfma(104, 128)
    a("s_waitcnt lgkmcnt(0)"); umfma(112, 144)
    a("s_bitcmp1_b32 0x2f, s26\ns_cbranch_scc0 L_u5")
    uread(0, 176)
    a("L_u5:\ns_bitcmp1_b32 0x4f, s26\ns_cbranch_scc0 L_u6")
    uread(1, 184)
    a("L_u6:")
    for n in range(4):
        a("ds_read_b32 v%d, v%d offset:%d\nds_read_b32 v%d, v%d offset:%d", 56 + n, 24 + n, C_IDX[0], 60 + n, 24 + n, C_IDX[1])
    lst2(9)
    uwrite(128, 0, 46, 192)
    a("s_bitcmp1_b32 0x2f, s26\ns_cbranch_scc0 L_u1")
    a("s_waitcnt lgkmcnt(12)"); umfma(176, 160)
    a("L_u1:\ns_bitcmp1_b32 0x4f, s26\ns_cbranch_scc0 L_u2")
    a("s_waitcnt lgkmcnt(12)"); umfma(184, 128)
    a("L_u2:\ns_waitcnt lgkmcnt(4)")
    for t in ut[0:1]: a(tok(t))
    uwrite(144, 1, 47, 200)
    for t in ut[1:]: a(tok(t))
    a("s_bitcmp1_b32 0x2f, s26\ns_cbranch_scc0 L_u3")
    uwrite(160, 0, 48, 192)
    a("L_u3:\ns_bitcmp1_b32 0x4f, s26\ns_cbranch_scc0 L_u4")
    uwrite(128, 1, 49, 200)
    a("L_u4:")
    lst2(10)
    a("s_waitcnt lgkmcnt(0)"); lst5(8)
    a("s_waitcnt vmcnt(%d)", len(ut)); lst5(9)
    a("s_barrier")
    stamp(4)
    for w in range(1, 8): a("s_cmp_eq_u32 s26, %d\ns_cbranch_scc1 L_fold%d", w, w)
    RES = 96
    for w in range(8):
        a("L_fold%d:", w)
        chunks = [w + 8 * k for k in range(5)] + [40 + w]
        def fwrite(ci):
            c = chunks[ci]
            if c < 44: return ["ds_write_b128 v52, %s offset:%d" % (vr(RES + 4 * ci, 4), 64 * (c >> 1) + 16 * (c & 1))]
            return ["s_mov_b32 exec_lo, 0xffff0000", "s_mov_b32 exec_hi, 0xffff0000", "ds_write_b128 v52, %s offset:%d" % (vr(RES + 4 * ci, 4), 1408 + 16 * (c - 44) - 32), "s_mov_b64 exec, -1"]
        parts = []
        for ci, c in enumerate(chunks):
            for qf in range(4):
                rd = []; ops = []
                base = 64 + 4 * ((4 * ci + qf) % 8); nr = 0
                vals = []
                for e in range(2 * qf, 2 * qf + 2):
                    if c < 44:
                        pr = sch["pairs"][c & 1][8 * (c >> 1) + e]
                        if pr is None: vals.append("0"); continue
                        x, y = act(pr[0]), act(pr[1])
                        rd.append("ds_read_u16_d16_hi v%d, v50 offset:%d" % (base + nr, 52 * x + 2 * y)); nr += 1
                        if x == y: vals.append("v%d" % (base + nr - 1)); continue
                        rd.append("ds_read_u16_d16_hi v%d, v50 offset:%d" % (base + nr, 52 * y + 2 * x)); nr += 1
                        t = 120 + e
                        ops.append("v_add_f32 v%d, v%d, v%d" % (t, base + nr - 2, base + nr - 1)); vals.append("v%d" % t)
                    else:
                        u = (c - 44) >> 1; h = (c - 44) & 1; p = 8 * u + e
                        if p < 13:
                            rd.append("ds_read_u16_d16_hi v%d, v51 offset:%d" % (base + nr, 2 * act(fld(h, order[p])))); nr += 1
                            vals.append("v%d" % (base + nr - 1))
                        elif p == 13 and h == 0: vals.append("v21")
                        else: vals.append("0")
                ops.append("v_cvt_pk_bf16_f32 v%d, %s, %s" % (RES + 4 * ci + qf, vals[0], vals[1]))
                parts.append((rd, ops))
        issued = list(ut)
        D = cfg.FD
        fq = []
        def rd(i):
            for r in parts[i][0]: a(r); fq.append(i)
        for i in range(D): rd(i)
        for i in range(24):
            if cfg.FPRIO and i % 4 == 0 and i // 4 in (0, 2, 3, 4): a("s_setprio %d", {0: 3, 2: 2, 3: 1, 4: 0}[i // 4])
            if i + D < 24: rd(i + D)
            if parts[i][0]: a("s_waitcnt lgkmcnt(%d)", min(15, len(fq) - 1 - max(k for k, x in enumerate(fq) if x == i)))
            for o in parts[i][1]: a(o)
            if i % 4 == 3:
                for o in fwrite(i // 4): a(o)
                fq.append(-1)
            if i % 4 == 0:
                t = ft[i // 4]
                if t != "-": a(tok(t)); issued.append(t)
                if psite[w] == "F%d" % (i // 4): a(wpf); issued += ["P"] * npf
        lst5(10)
        last0 = max(i for i, t in enumerate(issued) if t[0] == "G" and t[2] == "0")
        assert {t for t in issued + mt if t[0] == "G"} == {"G%d%d" % (n, sh) for n in range(4) for sh in range(2)}
        assert all(t[2] == "1" for t in mt)
        a("s_waitcnt vmcnt(%d)", len(issued) - 1 - last0)
        if w < 7: a("s_branch L_folded")
    a("L_folded:")
    stamp(5)
    XP = (16, 24); XFL = list(range(64, 96)) + list(range(216, 232)) + list(range(236, 240)); TMP = 96; Z = (104, 112); FR = 120
    AC = ((144, 160), (176, 192)); RR = 240
    slot_of = [0, 1] * 11 + [2]
    def frag(g, tau): return FR + 8 * slot_of[g] + 4 * tau
    def rdF(g, tau):
        return "ds_read_b128 %s, v215 offset:%d" % (vr(frag(g, tau), 4), (1408 if g == 0 else 64 * (g - 1)) + 32 * tau)
    def rdX(sm, T, nxt): return "ds_read_b64_tr_b16 %s, v%d offset:%d" % (vr(XP[sm] + 2 * T, 2), 208 + T, 64 * sm + PS * nxt)
    xf = {}
    for i in range(27):
        if order[i] != 26: xf[order[i]] = len(xf)
    def xread(i, sm, nxt):
        f = order[i]; d = slot[pi(f)] - slot[f]
        reg, off = {1: (212, slot[f]), -3: (213, slot[f] - 3), -1: (214, slot[f] - 1)}[d]
        return "ds_read_u16_d16_hi v%d, v%d offset:%d" % (XFL[26 * sm + xf[f]], reg, 128 * off + 64 * sm + PS * nxt)
    def xreads(t, nxt): return [xread(i, sm, nxt) for sm in range(2) for i in sorted(first) if first[i] == t]
    pre = xreads(0, 0) + [rdX(sm, T, 0) for sm in range(2) for T in range(4)] + xreads(1, 0)
    for o in pre[:15]: a(o)
    for t in mt: a("v_lshl_add_u32 v%d, v%d, 6, v252", 232 + int(t[1]), 60 + int(t[1]))
    a("""s_lshl_b32 s31, s29, 2
    s_mov_b32 s67, s26
    s_mov_b32 s101, 0
    s_mov_b32 vcc_lo, -1
    s_mov_b32 vcc_hi, 0
    s_waitcnt lgkmcnt(15)
    s_barrier""")
    stamp(6)
    a(rdF(0, 0)); a(rdF(0, 1))
    for o in pre[15:]: a(o)
    a("global_load_short_d16_hi v247, v3, s[18:19]")
    def zops(t):
        o = []
        for sm in range(2):
            for hf in range(2):
                g = []
                for e in range(4 * hf, 4 * hf + 4):
                    x, y = slots[8 * t + e]
                    g.append("v_mul_f32 v%d, v%d, v%d" % (TMP + e, XFL[26 * sm + xf[x]], XFL[26 * sm + xf[y]]))
                for e2 in range(2 * hf, 2 * hf + 2):
                    g.append("v_cvt_pk_bf16_f32 v%d, v%d, v%d" % (Z[sm] + 4 * (t % 2) + e2, TMP + 2 * e2, TMP + 2 * e2 + 1))
                o.append(g)
        return o
    def mfc(acc, fr, b, c): return "v_mfma_f32_32x32x16_bf16 %s, %s, %s, %s" % (vr(acc, 16), vr(fr, 4), vr(b, 4), c)
    def epi(sm, dst):
        A0, A1 = AC[sm]; T = TMP + 4 * sm
        o = ["v_mul_f32 v%d, v%d, v%d" % (T + 1, A0, A1), "v_mul_f32 v%d, v%d, v%d" % (T + 2, A0 + 1, A1 + 1),
             "v_mul_f32 v%d, v%d, v%d" % (T, A0 + 12, A1 + 12), "v_fmac_f32 v%d, v%d, v%d" % (T + 1, A0 + 2, A1 + 2), "v_fmac_f32 v%d, v%d, v%d" % (T, A0 + 13, A1 + 13)]
        o += ["v_fmac_f32 v%d, v%d, v%d" % (T + 1 + i % 2, A0 + i, A1 + i) for i in range(3, 12)]
        o += ["v_cndmask_b32 v%d, 0, v%d, vcc" % (T, T), "v_add_f32 v%d, v%d, v%d" % (T + 1, T + 1, T + 2), "v_add_f32 v%d, v%d, v%d" % (dst, T, T + 1)]
        return o
    if cfg.EACC:
        a("s_waitcnt lgkmcnt(15)")
        for o in zops(0)[0] + zops(0)[1]: a(o)
    a("s_waitcnt lgkmcnt(0)")
    if cfg.SL == 6: stamp(8)
    a("L_cloop:")
    dq = []
    def ds(t, tag): a(t); dq.append(tag)
    def dwait(tag):
        if tag not in dq: return
        n = len(dq) - 1 - max(i for i, t in enumerate(dq) if t == tag)
        a("s_waitcnt lgkmcnt(%d)", min(n, 15))
    def lst(k):
        if cfg.SL == 1: stamp(k)
        if cfg.SL == 6: a("s_cmp_eq_u32 s67, 99\ns_cbranch_scc1 L_ls%d", k); stamp(k); a("L_ls%d:", k)
    xq = [(t, o) for t in range(2, 22) for o in xreads(t, 0)]
    nsite = [0]
    def site(cond, body):
        nsite[0] += 1
        a("%s\ns_cbranch_scc0 L_site%d\n%s\nL_site%d:", cond, nsite[0], body, nsite[0])
    def extras(t, g):
        if g == 0:
            gn = (t + 2) % 23
            ds(rdF(gn, 0), ("F", gn if gn else -1)); ds(rdF(gn, 1), ("F", gn if gn else -1)); return
        if g == 1 and 0 <= t < len(mt):
            n = int(mt[t][1])
            site("s_cmp_lt_u32 s67, 8", gather(n, 1, 232 + n)); return
        if g == 2 and "M%d" % t in psite:
            site("s_cmp_eq_u32 s67, %d" % psite.index("M%d" % t), wpf); return
        if (t, g) == (cfg.T_BAR, 1): a("s_waitcnt vmcnt(0)\nbuffer_load_dword v248, off, %s, s31 sc1", sq(S_DBG)); return
        if g == 1 and 16 <= t < 20:
            assert cfg.T_BAR < 16
            ds(rdX(0, t - 16, 1), "X"); ds(rdX(1, t - 16, 1), "X"); return
        for k in range(2):
            if xq: ds(xq.pop(0)[1], "x")
            elif cfg.PAD: a("s_nop 0")
    def block(m, t, g, ops, ex=None):
        a(m)
        pr = cfg.PRIO and (cfg.PMASK >> (g & 3)) & 1
        if pr: a("s_setprio 0")
        if ex is None: extras(t, g)
        else:
            for o in ex: ds(o, "n")
        for i, o in enumerate(ops):
            a(o)
            if pr and i + 1 == cfg.PRIO: a("s_setprio 1")
    z0 = zops(0)
    E = (32, 48) if cfg.EACC else (AC[0][1], AC[1][1])
    if cfg.EACC:
        ea = epi(0, RR + 2); eb = epi(1, RR + 3)
        block(mfc(E[0], frag(0, 0), XP[0], "0"), -1, 0, ea[:9])
        block(mfc(E[1], frag(0, 0), XP[1], "0"), -1, 1, ea[9:] + z0[2][:2])
        block(mfc(E[0], frag(0, 1), XP[0] + 4, vr(E[0], 16)), -1, 2, z0[2][2:] + z0[3])
        block(mfc(E[1], frag(0, 1), XP[1] + 4, vr(E[1], 16)), -1, 3, eb[:9])
    else:
        block(mfc(AC[0][1], frag(0, 0), XP[0], "0"), -1, 0, epi(1, RR + 1))
        block(mfc(AC[0][1], frag(0, 1), XP[0] + 4, vr(AC[0][1], 16)), -1, 1, z0[0])
        block(mfc(AC[1][1], frag(0, 0), XP[1], "0"), -1, 2, z0[1] + z0[2][:4])
        block(mfc(AC[1][1], frag(0, 1), XP[1] + 4, vr(AC[1][1], 16)), -1, 3, z0[2][4:] + z0[3])
    for t in range(21):
        g = t + 1
        assert not xq or xq[0][0] - 3 >= t
        if t == 3: lst(1)
        if t == 10: lst(2)
        if t == cfg.T_BAR: lst(3)
        if t == cfg.T_BAR + 1: lst(4)
        dwait(("F", g))
        zn = zops(t + 1)
        seq = [(tau, sm) for tau in range(2) for sm in range(2)]
        if t == 0 and cfg.EACC:
            seq = [(0, 0), (1, 0), (0, 1), (1, 1)]
            zn = [eb[9:], zn[0] + zn[1][:2], zn[1][2:] + zn[2][:4], zn[2][4:] + zn[3]]
        for k, (tau, sm) in enumerate(seq):
            c = vr(AC[sm][tau], 16) if t else ("0" if tau == 0 else vr(E[sm], 16))
            block(mfc(AC[sm][tau], frag(g, tau), Z[sm] + 4 * (t % 2), c), t, k, zn[k])
    lst(5)
    dwait(("F", 22))
    n0 = xreads(0, 1); n1 = xreads(1, 1); h0 = len(n0) // 2
    adds = ["v_add_u32 v%d, %d, v%d" % (208 + T, PS, 208 + T) for T in range(7)]
    poll = """s_waitcnt vmcnt(0)
    v_readfirstlane_b32 s64, v248
    s_cmp_lt_u32 s64, 4
    s_cbranch_scc1 L_notyet
    s_mov_b32 s101, 1
    buffer_load_dword v249, v244, %s, 0 offen sc1
    L_notyet:""" % sq(S_WS)
    if cfg.EACC:
        block(mfc(AC[0][0], frag(22, 0), Z[0] + 4, vr(AC[0][0], 16)), 21, 0, [], n0[:h0])
        block(mfc(AC[0][1], frag(22, 1), Z[0] + 4, vr(AC[0][1], 16)), 21, 1, [], [rdF(0, 0), rdF(0, 1)] + n0[h0:])
        a(poll)
        a("s_waitcnt lgkmcnt(%d)", 2 + len(n0) - h0)
        block(mfc(AC[1][0], frag(22, 0), Z[1] + 4, vr(AC[1][0], 16)), 21, 2, z0[0], n1[:3])
        block(mfc(AC[1][1], frag(22, 1), Z[1] + 4, vr(AC[1][1], 16)), 21, 3, z0[1] + adds, n1[3:])
        a("v_mov_b32 v%d, v%d\nv_mov_b32 v%d, v%d", RR, RR + 2, RR + 1, RR + 3)
        a("s_cmp_eq_u32 s67, 99\ns_mov_b32 s67, 99")
    else:
        nx = n0 + n1
        a(mfc(AC[0][0], frag(22, 0), Z[0] + 4, vr(AC[0][0], 16))); extras(21, 0)
        for o in nx[:6]: ds(o, "n")
        a(mfc(AC[0][1], frag(22, 1), Z[0] + 4, vr(AC[0][1], 16)))
        for o in nx[6:12]: ds(o, "n")
        a(mfc(AC[1][0], frag(22, 0), Z[1] + 4, vr(AC[1][0], 16)))
        for o in nx[12:]: ds(o, "n")
        a(poll)
        a(mfc(AC[1][1], frag(22, 1), Z[1] + 4, vr(AC[1][1], 16)))
        a("s_cmp_eq_u32 s67, 99\ns_mov_b32 s67, 99")
        a("v_mov_b32 v%d, v%d", RR, RR + 2)
        for o in epi(0, RR + 2): a(o)
        for o in adds: a(o)
    a("s_waitcnt lgkmcnt(0)")
    if cfg.STAMP:
        a("s_cbranch_scc1 L_cfin"); stamp(7); a("s_branch L_cloop")
    else: a("s_cbranch_scc0 L_cloop")
    a("L_cfin:\ns_setprio 0")
    if cfg.SL < 2: stamp(8)
    if cfg.EACC:
        for o in epi(0, RR + 2): a(o)
    for o in epi(1, RR + 3): a(o)
    a("""v_permlane32_swap_b32 v%d, v%d
    s_cmp_eq_u32 s101, 1
    s_cbranch_scc1 L_cok
    s_mov_b32 s65, 0x20000
    L_cspin:
    buffer_load_dword v248, off, %s, s31 sc1
    s_waitcnt vmcnt(0)
    v_readfirstlane_b32 s64, v248
    s_sub_u32 s65, s65, 1
    s_cbranch_scc1 L_cgo
    s_cmp_lt_u32 s64, 4
    s_cbranch_scc1 L_cspin
    L_cgo:
    buffer_load_dword v249, v244, %s, 0 offen sc1
    L_cok:
    v_permlane32_swap_b32 v%d, v%d
    v_add_f32 v%d, v%d, v%d
    v_add_f32 v%d, v%d, v%d
    s_mov_b32 s65, 0x20000
    s_nop 0
    v_permlane16_swap_b32 v%d, v%d
    v_add_f32 v%d, v%d, v%d""", RR, RR + 1, sq(S_DBG), sq(S_WS), RR + 2, RR + 3, RR, RR, RR + 1, RR + 2, RR + 2, RR + 3, RR, RR + 2, RR, RR, RR + 2)
    if cfg.SL < 2: stamp(9)
    if cfg.DUAL:
        a("""s_mov_b32 s66, 0xff00ff
        s_mov_b32 s67, 0xff00ff
        L_pspin:
        s_waitcnt vmcnt(0)
        v_mov_b32_dpp v250, v249 row_ror:8 row_mask:0xf bank_mask:0xf
        v_min_u32 v250, v250, v249
        v_cmp_eq_u32 vcc, -1, v250
        s_cbranch_vccz L_pok
        s_sub_u32 s65, s65, 1
        s_cbranch_scc1 L_pok
        buffer_load_dword v249, v244, %s, 0 offen sc1
        s_branch L_pspin
        L_pok:
        v_cndmask_b32 v250, 0, v250, s[66:67]
        v_add_f32 v%d, v%d, v250""", sq(S_WS), RR, RR)
    else:
        a("""L_pspin:
        s_waitcnt vmcnt(0)
        v_cmp_eq_u32 vcc, -1, v249
        s_cbranch_vccz L_pok
        s_sub_u32 s65, s65, 1
        s_cbranch_scc1 L_pok
        buffer_load_dword v249, v244, %s, 0 offen sc1
        s_branch L_pspin
        L_pok:
        v_add_f32 v%d, v%d, v249""", sq(S_WS), RR, RR)
    for sh in (8, 4, 2, 1):
        a("s_nop 1\nv_add_f32_dpp v%d, v%d, v%d row_ror:%d row_mask:0xf bank_mask:0xf", RR, RR, RR, sh)
    a("""v_add_f32 v%d, v%d, v247
    v_cvt_pk_bf16_f32 v%d, v%d, v%d
    buffer_store_short v%d, v246, %s, 0 offen""", RR, RR, RR, RR, RR, RR, sq(S_OUT))
    stamp(11)
    if cfg.PROBE == "spin" and cfg.PX >= 100:
        a("s_getreg_b32 s66, hwreg(HW_REG_XCC_ID)\ns_sub_u32 s66, s66, s2\ns_and_b32 s66, s66, 7")
        if cfg.PX == 101: a("s_xor_b32 s66, s66, 7")
        a("s_add_u32 s66, s66, 2\ns_mul_i32 s66, s66, 1000")
        a("s_waitcnt lgkmcnt(0)\nL_sp:\ns_memrealtime s[64:65]\ns_waitcnt lgkmcnt(0)\ns_sub_u32 s64, s64, s70\ns_cmp_lt_u32 s64, s66\ns_cbranch_scc1 L_sp")
    elif cfg.PROBE == "spin":
        if cfg.PX >= 0: a("s_and_b32 s64, s2, 7\ns_cmp_lg_u32 s64, %d\ns_cbranch_scc1 L_end", cfg.PX)
        a("s_waitcnt lgkmcnt(0)\nL_sp:\ns_memrealtime s[64:65]\ns_waitcnt lgkmcnt(0)\ns_sub_u32 s64, s64, s70\ns_cmp_lt_u32 s64, %d\ns_cbranch_scc1 L_sp", cfg.PN * 100)
    dump_stamps()
    a("s_endpgm")
    cin_text = a.L; cut_cin = next(i for i, l in enumerate(cin_text) if l.startswith("L_fold0:")) - 14
    head = cin_text[:cut_cin]; tail = cin_text[cut_cin:]
    a.L = []

    a("L_loader:")
    def lst3(k):
        if cfg.SL == 3: stamp(k)
    lst3(6)
    srd(a, S_TAB, 6, 6400000)
    if cfg.TLB:
        a("s_cmp_lt_u32 s66, %d\ns_cbranch_scc1 L_notlb\nv_mul_u32_u24 v34, 100000, v0\nbuffer_load_dword v35, v34, %s, 0 offen\nL_notlb:", cfg.WPF_D, sq(S_TAB))
    else:
        a("s_cmp_lt_u32 s66, %d\ns_cbranch_scc1 L_notlb\nbuffer_load_dword v35, off, %s, 0\nL_notlb:", cfg.WPF_D, sq(S_TAB))
    wl = "s_cmp_ge_u32 s66, %d\ns_cbranch_scc1 L_wl\nbuffer_load_dword v35, v251, %s, s60 offen\nL_wl:" % (cfg.WPF_D, sq(S_W1))
    if cfg.WLATE == 1: a(wl)
    stamp(1)
    a("s_mul_i32 s65, s30, 416")
    for ii in range(4):
        if ii < 3: a("s_mul_i32 s64, s66, 192\ns_add_u32 s64, s64, %d", 64 * ii)
        else: a("s_mov_b32 s64, 768")
        a("""v_add_u32 v2, s64, v0
        v_mul_u32_u24 v3, 2521, v2
        v_lshrrev_b32 v3, 16, v3
        v_mul_u32_u24 v4, 26, v3
        v_sub_u32 v4, v2, v4
        v_lshrrev_b32 v5, 1, v3
        v_xor_b32 v5, v5, v3
        v_bfe_u32 v5, v5, 2, 1
        v_mul_u32_u24 v5, 12, v5
        v_xor_b32 v3, v3, v5
        v_mul_u32_u24 v3, 1664, v3
        v_lshl_add_u32 v3, v4, 4, v3
        v_add_u32 v%d, s65, v3""", 10 + ii if ii < 3 else 9)
    lst3(7)
    if cfg.WLATE == 2: a(wl)
    srd(a, S_WS, 24, WSN); srd(a, S_DBG, 22, 256)
    a("""s_lshl_b32 s64, s29, 12
    s_lshl_b32 s65, s30, 10
    s_add_u32 s64, s64, s65
    s_lshl_b32 s65, s66, 8
    s_add_u32 s64, s64, s65
    s_add_u32 s64, s64, %d
    v_lshl_add_u32 v31, v0, 2, s64
    v_mov_b32 v30, -1
    v_mov_b32 v32, 1
    s_mul_i32 s62, s66, 3072
    s_add_u32 s62, s62, 8192
    s_lshl_b32 s63, s66, 11
    v_lshrrev_b32 v2, 2, v0
    v_mul_u32_u24 v2, 104, v2
    s_mul_i32 s68, s30, %d
    s_mul_i32 s69, s68, 53248
    s_lshl_b32 s64, s68, 2
    s_add_u32 s64, s64, s67
    v_add_u32 v14, s64, v2
    v_and_b32 v2, 3, v0
    v_bfe_u32 v3, v0, 4, 1
    v_lshlrev_b32 v3, 1, v3
    v_xor_b32 v2, v2, v3
    v_lshlrev_b32 v13, 4, v2""", WS_BOX, cfg.ROT)
    def ldB(s):
        a("s_cmp_lg_u32 s66, %d\ns_cbranch_scc1 L_q%d\ns_mov_b32 m0, %d\ns_nop 0\nbuffer_load_dwordx4 v9, %s, s69 offen lds\nL_q%d:", s % 4, s, (s % cfg.R) * SLOT + 20480, sq(S_W1), s)
        for ii in range(3):
            a("s_add_u32 m0, s62, %d\ns_nop 0", (s % cfg.R) * SLOT + 1024 * ii)
            a("buffer_load_dwordx4 v%d, %s, s69 offen lds", 10 + ii, sq(S_W1)); vm(("st", s))
        a("s_add_u32 s69, s69, 53248")
        if s >= 25 - 3 * cfg.ROT: a("s_cmp_eq_u32 s69, %d\ns_cselect_b32 s69, 0, s69", 26 * 53248)
    ireg = lambda n: 64 + 2 * n if cfg.ALLI else 16 + 2 * (n % 4)
    def rdI(n):
        r = 14
        if n >= 26 - 3 * cfg.ROT:
            a("s_cmp_ge_u32 s68, %d\ns_cselect_b32 s64, 104, 0\nv_subrev_u32 v15, s64, v14", 26 - n); r = 15
        a("ds_read_b32 v%d, v%d offset:%d\nds_read_b32 v%d, v%d offset:%d", ireg(n), r, 4 * n, ireg(n) + 1, r, 4 * n + 1664)
    def ldA(s):
        for ii in range(2):
            a("s_add_u32 m0, s63, %d", (s % cfg.R) * SLOT + 1024 * ii)
            if cfg.ALLI and s >= cfg.NI: a("s_nop 0")
            else: a("v_lshl_add_u32 v%d, v%d, 6, v13", ireg(s) + ii, ireg(s) + ii)
            a("buffer_load_dwordx4 v%d, %s, 0 offen lds", ireg(s) + ii, sq(S_TAB)); vm(("st", s))
    if cfg.APF:
        a("v_and_b32 v2, 7, v0\ns_lshl_b32 s64, s30, 3\nv_add_u32 v2, s64, v2\nv_mul_u32_u24 v2, 104, v2\nv_lshrrev_b32 v3, 3, v0\nv_lshl_add_u32 v2, v3, 2, v2\ns_add_u32 s64, s67, %d\nv_add_u32 v36, s64, v2\nv_cmp_gt_u32 vcc, %d, v3\nv_mov_b32 v38, %d", 4 * cfg.AP0, cfg.APF - cfg.AP0, OOB)
    lst3(8)
    wait_for(lambda t: t == "idx")
    stamp(2)
    for s in range(cfg.NI): rdI(s)
    if cfg.APF: a("ds_read_b32 v36, v36")
    def apf():
        if cfg.APF: a("s_waitcnt lgkmcnt(0)\nv_lshlrev_b32 v36, 6, v36\nv_cndmask_b32 v36, v38, v36, vcc\nbuffer_load_dword v37, v36, %s, 0 offen", sq(S_TAB)); vm("apf")
    if not cfg.AP0: apf()
    for s in range(cfg.NI):
        a("s_waitcnt lgkmcnt(%d)", 2 * (cfg.NI - 1 - s) + (1 if cfg.APF else 0))
        ldA(s)
        if cfg.AP0 and s == 0: apf()
        ldB(s)
    if cfg.WPF2:
        a("s_cmp_lt_u32 s66, %d\ns_cbranch_scc1 L_w2\ns_lshl_b32 s65, s66, 4\ns_add_u32 s65, s65, s28\ns_lshl_b32 s65, s65, 13\ns_nop 0\nbuffer_load_dword v35, v251, %s, s65 offen\nL_w2:", cfg.WPF_D, sq(S_W1))
    st = dict(nxt=cfg.NI, nrd=cfg.NI)
    def read_ahead(upto):
        while st["nrd"] <= min(upto, 25): rdI(st["nrd"]); st["nrd"] += 1
    assert cfg.NI + cfg.CATCH <= 4 + cfg.NI and cfg.NI <= 4
    if cfg.ALLI:
        read_ahead(25)
        for n in range(cfg.NI, 26):
            if (n - cfg.NI) % 4 == 0: a("s_waitcnt lgkmcnt(%d)", min(15, max(0, 2 * (25 - n - 3))))
            for ii in range(2): a("v_lshl_add_u32 v%d, v%d, 6, v13", ireg(n) + ii, ireg(n) + ii)
    read_ahead(st["nxt"] + cfg.CATCH - 1)
    stamp(3)
    wait_for(lambda t: t == ("st", 0))
    stamp(11)
    a("s_barrier")
    stamp(4)
    def issue(limit):
        todo = [n for n in range(st["nxt"], min(st["nxt"] + cfg.CATCH, 26)) if n <= limit]
        if not todo: return
        if not cfg.ALLI: a("s_waitcnt lgkmcnt(0)")
        for n in todo: ldA(n); ldB(n)
        st["nxt"] = todo[-1] + 1
        read_ahead(st["nxt"] + cfg.CATCH - 1)
    marks = {2: 5, 6: 6, 10: 7, 14: 8, 20: 9} if cfg.SL != 3 else {}
    def two(limit):
        for _ in range(2): issue(limit)
    if cfg.B2: two(min(cfg.NI + cfg.PRE2 - 1, cfg.R - 1))
    else: issue(cfg.R - 1)
    for s in range(0, 26, 2 if cfg.B2 else 1):
        need = min(25, s + (2 if cfg.B2 else 1))
        if s == 24: a("s_waitcnt vmcnt(0)")
        elif s < 25: wait_for(lambda t: t == ("st", need))
        a("s_barrier")
        if s in marks: stamp(marks[s])
        if cfg.B2: two(s + cfg.R)
        else: issue(s + cfg.R)
        if s == 8:
            a("buffer_store_dword v30, v31, %s, 0 offen sc1", sq(S_WS)); vm("sent")
            if cfg.DUAL: a("s_mov_b32 s64, 0x20000\nbuffer_store_dword v30, v31, %s, s64 offen sc1", sq(S_WS)); vm("sent")
        if s == 24:
            assert st["nxt"] == 26
            a("s_cmp_lg_u32 s66, 0\ns_cbranch_scc1 L_noat\ns_lshl_b32 s64, s29, 2\ns_mov_b64 exec, 1\nbuffer_atomic_add v32, off, %s, s64\ns_mov_b64 exec, -1\nL_noat:", sq(S_DBG))
    stamp(10)
    dump_stamps()
    a("s_endpgm")
    loader = a.L; a.L = []

    a("L_comp:")
    ACC = lambda tt, rt: 104 + 16 * tt + 4 * rt
    W2R = 208
    XFr = lambda st_, rt: 16 + 44 * st_ + 4 * rt
    WFr = lambda st_, tt: 32 + 44 * st_ + 4 * tt
    a("""s_and_b32 s66, s26, 1
    s_lshr_b32 s67, s26, 1
    v_and_b32 v1, 15, v0
    v_lshrrev_b32 v2, 4, v0
    v_bfe_u32 v3, v0, 2, 1
    v_lshlrev_b32 v3, 1, v3
    v_xor_b32 v3, v3, v2
    v_lshlrev_b32 v3, 4, v3
    v_lshl_add_u32 v3, v1, 6, v3
    s_lshl_b32 s64, s66, 12
    s_lshl_b32 s65, s67, 11
    s_add_u32 s64, s64, s65
    v_add_u32 v4, s64, v3
    v_xor_b32 v5, 0x800, v4
    v_lshrrev_b32 v3, 5, v0
    v_bfe_u32 v8, v0, 4, 1
    v_lshlrev_b32 v3, 4, v3
    v_lshl_add_u32 v3, v8, 2, v3
    v_bfe_u32 v8, v0, 2, 2
    v_add_u32 v3, v3, v8
    v_mul_u32_u24 v3, 416, v3
    v_and_b32 v8, 3, v0
    v_lshl_add_u32 v3, v8, 3, v3
    s_mul_i32 s64, s67, 224
    s_add_u32 s64, s64, 8192
    v_add_u32 v6, s64, v3
    v_add_u32 v7, %d, v3""", 8192 + 192)
    a("""s_mul_i32 s64, s30, 416
    s_mul_i32 s65, s67, 192
    s_add_u32 s64, s64, s65
    v_lshl_add_u32 v8, v0, 3, s64
    s_mul_i32 s65, s26, 896
    s_add_u32 s65, s65, %d
    v_lshl_add_u32 v9, v0, 4, s65
    v_lshl_add_u32 v11, v2, 4, s65
    s_lshl_b32 s64, s67, 6
    v_add_u32 v10, s64, v11
    s_mul_i32 s64, s67, 384
    s_sub_u32 s64, 384, s64
    v_add_u32 v11, s64, v11
    s_waitcnt lgkmcnt(0)
    s_mov_b64 exec, 0xfffffff
    global_load_dwordx2 v[12:13], v8, s[14:15]
    global_load_dwordx2 v[14:15], v8, s[16:17]
    s_mov_b64 exec, -1""", D_BW)
    stamp(1)
    srd(a, S_WS, 24, WSN)
    a("""s_lshl_b32 s64, s29, 12
    s_lshl_b32 s65, s30, 10
    s_add_u32 s64, s64, s65
    s_lshl_b32 s65, s67, 9
    s_add_u32 s64, s64, s65
    s_lshl_b32 s65, s66, 8
    s_add_u32 s64, s64, s65
    s_add_u32 s64, s64, %d
    s_lshl_b32 s65, s67, 5
    v_xor_b32 v1, s65, v0
    v_lshl_add_u32 v244, v1, 2, s64
    s_waitcnt vmcnt(0)
    s_mov_b64 exec, 0xfffffff
    v_lshlrev_b32 v16, 16, v12
    v_and_b32 v17, 0xffff0000, v12
    v_lshlrev_b32 v18, 16, v13
    v_and_b32 v19, 0xffff0000, v13
    v_lshlrev_b32 v20, 16, v14
    v_and_b32 v21, 0xffff0000, v14
    v_lshlrev_b32 v22, 16, v15
    v_and_b32 v23, 0xffff0000, v15
    ds_write_b128 v9, v[16:19]
    ds_write_b128 v9, v[20:23] offset:448
    s_mov_b64 exec, -1
    s_waitcnt lgkmcnt(0)""", WS_BOX)
    for tt in range(7):
        ar, off = (10, 64 * tt) if tt < 6 else (11, 0)
        for rt in range(4 if tt < 6 else 2): a("ds_read_b128 %s, v%d offset:%d", vr(ACC(tt, rt), 4), ar, off)
        a("ds_read_b128 %s, v%d offset:%d", vr(W2R + 4 * tt, 4), ar, off + 448)
    a("""s_mov_b32 s66, 1
    s_mov_b32 s67, 13
    s_mov_b32 s68, %d
    s_mov_b32 s69, %d
    s_mov_b32 s62, 0x%x
    s_mov_b32 s63, 0x%x
    v_mov_b32 v8, 0x%x
    v_mov_b32 v9, 0x%x
    v_mov_b64 v[236:237], 0
    v_mov_b64 v[238:239], 0
    v_mov_b64 v[240:241], 0
    v_mov_b64 v[242:243], 0
    s_waitcnt lgkmcnt(0)""", -(cfg.R - 1) * SLOT, SLOT, f32bits(c2), f32bits(c2), f32bits(c1), f32bits(c1))
    def reads(st_):
        x = lambda rt: "ds_read_b128 %s, v%d offset:%d" % (vr(XFr(st_, rt), 4), 4 + rt // 2, 1024 * (rt & 1))
        w = lambda tt, u: "ds_read_b64_tr_b16 %s, v%d offset:%d" % (vr(WFr(st_, tt) + 2 * u, 2), 6 if tt < 6 else 7, (32 * tt if tt < 6 else 0) + 3328 * u)
        return [x(0), w(0, 0), w(0, 1), x(1), x(2), x(3)] + [w(tt, u) for tt in range(1, 7) for u in range(2)]
    def mf(st_, tt, rt): return "v_mfma_f32_16x16x32_bf16 %s, %s, %s, %s" % (vr(ACC(tt, rt), 4), vr(WFr(st_, tt), 4), vr(XFr(st_, rt), 4), vr(ACC(tt, rt), 4))
    if cfg.CPRIO: a("s_setprio %d", cfg.CPRIO)
    stamp(6)
    a("s_barrier")
    stamp(2)
    for r in reads(0): a(r)
    for k in range(4): a("v_add_u32 v%d, s69, v%d", 4 + k, 4 + k)
    a("L_dloop:")
    for st_ in range(2):
        a("s_waitcnt lgkmcnt(0)")
        if st_ == 0 or not cfg.B2: a("s_barrier")
        r = reads(1 - st_)
        fill = r + ["s_add_u32 s66, s66, 1\ns_cmp_eq_u32 s66, %d" % cfg.R, "s_cselect_b32 s64, s68, s69\ns_cselect_b32 s66, 0, s66"] + ["v_add_u32 v%d, s64, v%d" % (4 + k, 4 + k) for k in range(4)]
        if st_ == 1: fill += ["s_sub_u32 s67, s67, 1\ns_cmp_lg_u32 s67, 0"]
        ms = [(tt, rt) for tt in range(7) for rt in range(4 if tt < 6 else 2)]
        for k, (tt, rt) in enumerate(ms):
            a(mf(st_, tt, rt))
            if k < len(fill): a(fill[k])
    a("s_cbranch_scc1 L_dloop")
    stamp(3)
    def gelu(acc, w2, T):
        P = range(4)
        x = lambda i: vr(acc + 2 * i, 2); t = lambda i: vr(T + 2 * i, 2)
        for i in P: a("v_pk_mul_f32 %s, %s, %s", t(i), x(i), x(i))
        for i in P: a("v_pk_fma_f32 %s, %s, s[62:63], v[8:9]", t(i), t(i))
        for i in P: a("v_pk_mul_f32 %s, %s, %s", t(i), t(i), x(i))
        for i in range(8): a("v_exp_f32 v%d, v%d", T + i, T + i)
        for i in P: a("v_pk_mul_f32 %s, %s, %s", x(i), x(i), vr(w2 + 2 * (i & 1), 2))
        for i in P: a("v_pk_add_f32 %s, %s, 1.0 op_sel_hi:[1,0]", t(i), t(i))
        for i in range(8): a("v_rcp_f32 v%d, v%d", T + i, T + i)
    def gelu_fin(acc, T, rt):
        for i in (0, 2, 1, 3): a("v_pk_fma_f32 %s, %s, %s, %s", vr(236 + 2 * (rt + i // 2), 2), vr(acc + 2 * i, 2), vr(T + 2 * i, 2), vr(236 + 2 * (rt + i // 2), 2))
    a("s_waitcnt lgkmcnt(0)")
    pend = None; k = 0
    for tt in range(7):
        for rt in ((0, 2) if tt < 6 else (0,)):
            T = 16 + 8 * (k % 2); k += 1
            gelu(ACC(tt, rt), W2R + 4 * tt, T)
            if pend: gelu_fin(*pend)
            pend = (ACC(tt, rt), T, rt)
    a("s_nop 0"); gelu_fin(*pend)
    a("""v_add_f32 v236, v236, v237
    v_add_f32 v240, v240, v241
    v_add_f32 v238, v238, v239
    v_add_f32 v242, v242, v243
    v_permlane32_swap_b32 v236, v240
    s_nop 0
    v_permlane32_swap_b32 v238, v242
    v_add_f32 v236, v236, v240
    v_add_f32 v238, v238, v242
    s_nop 1
    v_permlane16_swap_b32 v236, v238
    v_add_f32 v236, v236, v238""")
    if cfg.DUAL: a("s_mov_b32 s64, 0x20000\nbuffer_store_dword v236, v244, %s, s64 offen", sq(S_WS))
    a("buffer_store_dword v236, v244, %s, 0 offen sc1", sq(S_WS))
    stamp(4)
    dump_stamps()
    a("L_end:\ns_endpgm")
    comp = a.L
    k1 = next(i for i, l in enumerate(loader) if "s_barrier" in l)
    k2 = next(i for i, l in enumerate(comp) if l.startswith("L_dloop:"))
    body = "\n".join(head + ["    s_branch L_cin2"] + loader + comp + ["L_cin2:"] + tail) + "\n"

    hdr = open("standalone__deep_cross_xdeepfm__recsys.s.ref").read().split("; Override launch")[0]
    out = hdr + "; Written by the author's own generator script. Workgroups with (id>>3)<16 run a 128x208 tile of the MLP GEMM,\n; the others fold the CIN weights, evaluate the two quadratic forms per column and combine.\n"
    out += "; @launch grid=(256,1,1) block=(512,1,1) lds=163840\n"
    out += '.amdgcn_target "amdgcn-amd-amdhsa--gfx950"\n.text\n.globl %s\n.p2align 8\n.type %s,@function\n%s:\n' % (KN, KN, KN)
    out += body + "L_codeend:\n"
    out += """.section .rodata,"a"
.p2align 6
.amdhsa_kernel %s
  .amdhsa_next_free_vgpr 256
  .amdhsa_next_free_sgpr 102
  .amdhsa_accum_offset 256
  .amdhsa_group_segment_fixed_size 0
  .amdhsa_kernarg_size 88
  .amdhsa_user_sgpr_count 2
  .amdhsa_user_sgpr_kernarg_segment_ptr 1
  .amdhsa_system_sgpr_workgroup_id_x 1
  .amdhsa_float_denorm_mode_32 3
.end_amdhsa_kernel
""" % KN
    return out, lint(body)

if __name__ == "__main__":
    cfg = Cfg()
    path = sys.argv[1]
    for kv in sys.argv[2:]:
        k, v = kv.split("=")
        old = getattr(cfg, k)
        v = v.replace("_", " ") if k.startswith("ORD") or k == "PSITE" else v
        setattr(cfg, k, v if isinstance(old, str) else (bool(int(v)) if isinstance(old, bool) else int(v)))
    out, nb = generate(cfg)
    open(path, "w").write(out)
    print("written", path, "hazards:", nb)
```

```python
import sys, math, struct
from scheme import build as build_scheme, pi
from lint import lint

KN = "standalone__deep_cross_xdeepfm__recsys_kernel"
class Cfg:
    NI = 2
    CATCH = 1
    R = 6
    WPF_D = 3
    TLB = 0
    AP0 = 0
    APF = 6
    GF0 = 6
    ORD_U = "G00 G01 G10"
    ORD_F = "G20 G30 - - - -"
    ORD_M = "G11 G21 G31"
    PSITE = "F0 F2 F5 M1 M3 M5 M7 M9"
    NS1 = 2
    ROT = 0
    PRE2 = 2
    B2 = 0
    WPF2 = 0
    ALLI = 1
    LPRIO = 0
    PMASK = 15
    PAD = 0
    WLATE = 1
    XSH = 0
    FW = 1
    VERB = 0
    TOUR = 1
    LBRK = 13
    DBRK = 14
    GBRK = 1
    FPRIO = 1
    CPRIO = 0
    EACC = 0
    DUAL = 0
    FD = 4
    T_BAR = 15
    PRIO = 1
    STAMP = False
    RT = 0
    SL = 0
    CODEPF = True
    PROBE = "none"
    PN = 64
    PX = -1
def f32bits(x): return struct.unpack("<I", struct.pack("<f", x))[0]
class A:
    def __init__(s): s.L = []
    def __call__(s, t, *a):
        if a: t = t % a
        for l in t.split("\n"):
            l = l.strip()
            if l: s.L.append(l if l.endswith(":") else "    " + l)
    def text(s): return "\n".join(s.L) + "\n"
def vr(a, n): return "v[%d:%d]" % (a, a + n - 1)

SLOT = 21504
XW = 3328
PS = 128 + 8 * XW
C_W0 = 2 * PS; C_W1 = C_W0 + 35152
FS = 1488
C_F = C_W1
C_W2 = C_F + 26 * FS - 16
C_U = C_W2 + 4; C_L = C_U + 35152
VS = 80
C_VT = C_W1 + 35152 + 352
C_WC = C_VT + 2176 + 8
C_IDX = [PS + 128 + 1024, PS + 128 + XW + 1024]
assert C_L + 1352 <= 163840 and C_W2 + 35 * 1024 <= 163840 and C_WC + 256 <= C_W2
assert C_VT % 16 == 0 and (C_WC + 104) % 16 == 0 and (C_U - C_W0) % 8 == 4 and C_F % 16 == 0 and C_W2 % 8 == 0
WS_BOX = 0; WS_ST = 262144
OOB = 0x7ff00000
def srd(a, s, ptr, n):
    a("s_mov_b32 s%d, s%d\ns_mov_b32 s%d, s%d\ns_mov_b32 s%d, %d\ns_mov_b32 s%d, 0x20000", s, ptr, s + 1, ptr + 1, s + 2, n, s + 3)
S_IDX, S_TAB, S_W1, S_WS, S_WC, S_DBG, S_OUT, S_M = 32, 36, 40, 44, 48, 52, 56, 96
def sq(s): return "s[%d:%d]" % (s, s + 3)

def generate(cfg):
    sch = build_scheme()
    order = sch["order"]; fld = sch["fld"]; slot = sch["slot"]; first = sch["first"]; slots = sch["slots"]
    act = lambda lab: (slot[lab] + cfg.GF0) % 26
    assert all(t in ("G00", "G10", "G20", "G30", "G01") for t in cfg.ORD_U.split())
    D_IDX = cfg.R * SLOT; D_BW = D_IDX + 13312
    assert D_BW + 3584 <= 163840
    a = A()
    def stamp(k):
        if cfg.STAMP: a("%s s[%d:%d]", "s_memrealtime" if cfg.RT else "s_memtime", 72 + 2 * k, 73 + 2 * k)
    def page(name, nxt, align=True, fall=True):
        if not cfg.TOUR: a("L_%s:", name); return
        if fall: a("s_branch L_%s", name)
        if align: a.L.append(".p2align 12")
        a("P_%s:\ns_branch %s\nL_%s:", name, nxt, name)
    def dump_stamps():
        if not cfg.STAMP: return
        a("s_memrealtime s[64:65]\ns_waitcnt vmcnt(0) lgkmcnt(0)\nv_mov_b32 v239, s64")
        for k in range(12): a("v_mov_b32 v%d, s%d", 224 + k, 72 + 2 * k)
        a("v_mov_b32 v236, s70\nv_mov_b32 v237, s2\nv_mov_b32 v238, s26")
        a("s_lshl_b32 s64, s2, 3\ns_add_u32 s64, s64, s26\ns_lshl_b32 s64, s64, 6\ns_add_u32 s64, s64, %d", WS_ST)
        a("v_mov_b32 v240, s64\ns_mov_b64 exec, 1")
        srd(a, S_WS, 24, 0x100000)
        for k in range(4): a("buffer_store_dwordx4 v[%d:%d], v240, %s, 0 offen offset:%d", 224 + 4 * k, 227 + 4 * k, sq(S_WS), 16 * k)
    WSN = WS_BOX + (262144 if cfg.DUAL else 131072)
    c1 = -2.0 * math.log2(math.e) * math.sqrt(2.0 / math.pi); c2 = c1 * 0.044715

    a("s_cmp_ge_u32 s2, 256\ns_cbranch_scc1 L_end")
    if cfg.STAMP:
        for k in range(12): a("s_mov_b32 s%d, 0", 72 + 2 * k)
    if cfg.STAMP or cfg.PROBE == "spin": a("s_memrealtime s[70:71]")
    stamp(0)
    a("""s_load_dwordx16 s[4:19], s[0:1], 0
    s_load_dwordx4 s[20:23], s[0:1], 64
    s_load_dwordx2 s[24:25], s[0:1], 80
    v_lshrrev_b32 v1, 6, v0
    v_and_b32 v0, 63, v0
    s_lshr_b32 s28, s2, 3
    v_readfirstlane_b32 s26, v1""")
    if cfg.CODEPF:
        a("""s_getpc_b64 s[64:65]
        L_pfbase:
        s_cmp_lg_u32 s26, 7
        s_cbranch_scc1 L_nopf
        s_mul_i32 s66, s28, 1280
        v_min_u32 v2, 9, v0
        v_lshl_add_u32 v2, v2, 7, s66
        v_min_u32 v2, L_codeend-L_pfbase-4, v2
        global_load_dword v255, v2, s[64:65]
        L_nopf:""")
    a("""s_and_b32 s27, s2, 7
    s_and_b32 s30, s28, 3
    s_bfe_u32 s29, s28, 0x20002
    s_lshl_b32 s64, s27, 2
    s_add_u32 s29, s29, s64
    v_lshlrev_b32 v2, 4, v0
    v_lshlrev_b32 v251, 7, v0
    s_cmp_ge_u32 s28, 16
    s_cbranch_scc1 L_cin
    s_cmp_lt_u32 s26, 4
    s_cbranch_scc1 %s""", "P_loader" if cfg.TOUR else "L_comp")
    q = []
    def vm(tag): q.append(tag)
    def wait_for(pred):
        last = max(i for i, t in enumerate(q) if pred(t))
        n = len(q) - 1 - last
        assert n < 64
        a("s_waitcnt vmcnt(%d)", n)
    a("""s_sub_u32 s66, s26, 4
    s_lshl_b32 s64, s29, 2
    s_add_u32 s64, s64, s66
    s_mul_i32 s64, s64, 3328
    s_mul_i32 s67, s66, 3328
    s_add_u32 s67, s67, %d
    s_mov_b32 m0, s67
    s_lshl_b32 s65, s66, 4
    s_add_u32 s65, s65, s28
    s_lshl_b32 s65, s65, 13
    s_waitcnt lgkmcnt(0)""", D_IDX)
    srd(a, S_IDX, 4, 425984)
    for i in range(4):
        if i == 3: a("s_mov_b64 exec, 0xffff")
        a("buffer_load_dwordx4 v2, %s, s64 offen offset:%d lds", sq(S_IDX), 1024 * i); vm("idx")
    a("s_mov_b64 exec, -1")
    srd(a, S_W1, 12, 1384448)
    if cfg.WLATE: a("s_mov_b32 s60, s65\ns_branch L_loader")
    else: a("s_cmp_ge_u32 s66, %d\ns_cbranch_scc1 L_loader\nbuffer_load_dword v35, v251, %s, s65 offen\ns_branch L_loader", cfg.WPF_D, sq(S_W1))
    vm("wpf")
    if cfg.SL == 3:
        k = max(i for i, l in enumerate(a.L) if "s_cmp_ge_u32 s66" in l); sv = a.L[k:]; a.L = a.L[:k]; stamp(5); a.L += sv

    a("L_cin:")
    if cfg.XSH: a("s_add_u32 s29, s29, %d\ns_and_b32 s29, s29, 31", 4 * cfg.XSH)
    NE = 16 * (4 if cfg.WPF2 else cfg.WPF_D)
    psite = cfg.PSITE.split()
    def lst2(k):
        if cfg.SL == 2 or (cfg.SL == 8 and k == 8): stamp(k)
    def lst4(k):
        if cfg.SL == 4: stamp(k)
    def lst5(k):
        if cfg.SL == 5: stamp(k)
    def stage(lo, cnt, sreg):
        hi = lo + cnt - 1
        src = lambda o: 70304 + 1024 * o if o < 36 else (1024 * (o - 2) if o < 71 else 1024 * (o - 71))
        dst = lambda o: C_W2 + 1024 * o if o < 36 else C_W0 + src(o)
        if src(hi) - src(lo) == 1024 * (cnt - 1):
            return "s_add_u32 m0, %s, %d\ns_add_u32 s64, %s, %d\nbuffer_load_dwordx4 v2, %s, s64 offen lds" % (sreg, dst(lo), sreg, src(lo), sq(S_WC))
        assert lo >= 36
        return "s_mov_b32 s65, %d\ns_cmp_lt_u32 %s, %d\ns_cselect_b32 s64, s65, %d\ns_add_u32 s64, s64, %s\ns_add_u32 m0, s64, %d\ns_nop 0\nbuffer_load_dwordx4 v2, %s, s64 offen lds" % (src(lo), sreg, 1024 * (71 - lo), src(hi) - 1024 * (cnt - 1), sreg, C_W0, sq(S_WC))
    a("""s_sub_u32 s31, s28, 16
    s_lshl_b32 s3, s26, 10
    v_lshlrev_b32 v6, 2, v0
    s_lshl_b32 s64, s29, 3
    s_lshl_b32 s65, s30, 1
    s_add_u32 s64, s64, s65
    s_add_u32 s64, s64, s26
    s_mul_i32 s66, s64, 1664
    s_mul_i32 s65, s26, %d
    s_add_u32 s67, s65, %d
    s_lshl_b32 s68, s31, 13
    s_and_b32 s101, s3, 0x7ff
    s_lshr_b32 s64, s26, 2
    s_lshl_b32 s64, s64, 11
    s_add_u32 s101, s101, s64
    s_waitcnt lgkmcnt(0)""", C_IDX[1] - C_IDX[0], C_IDX[0])
    srd(a, S_WC, 8, 105456)
    a("s_cmp_eq_u32 s26, 7\ns_cbranch_scc1 L_c4\ns_bitcmp1_b32 s26, 1\ns_cbranch_scc0 L_c1")
    a(stage(32, 4, "s101"))
    a("s_branch L_c4\nL_c1:\ns_cmp_ge_u32 s26, 4\ns_cbranch_scc1 L_c2\ns_mov_b32 m0, s67")
    srd(a, S_IDX, 4, 425984)
    a("""buffer_load_dwordx4 v2, %s, s66 offen lds
    buffer_load_dwordx4 v2, %s, s66 offen offset:1024 lds
    s_branch L_c4
    L_c2:
    s_cmp_eq_u32 s26, 5
    s_cbranch_scc1 L_c3
    buffer_load_dword v255, v251, %s, s68 offen
    s_branch L_c4
    L_c3:
    s_mov_b32 m0, %d""", sq(S_IDX), sq(S_IDX), sq(S_WC), C_WC)
    srd(a, S_M, 10, 156)
    a("buffer_load_dword v6, %s, 0 offen lds\nL_c4:", sq(S_M))
    for n in range(4): a(stage(8 * n, 8, "s3"))
    stamp(1)
    a("""s_mul_i32 s64, s26, 272
    s_add_u32 s64, s64, %d
    v_add_u32 v1, s64, v6
    v_mov_b32 v3, 0
    ds_write_b32 v1, v3
    ds_write_b32 v1, v3 offset:16
    v_lshrrev_b32 v5, 4, v0
    v_lshlrev_b32 v38, 4, v5
    v_add_u32 v38, %d, v38
    v_and_b32 v7, 15, v0
    v_lshrrev_b32 v1, 5, v0
    v_lshl_add_u32 v8, v1, 4, v7
    v_min_u32 v8, 25, v8
    v_lshlrev_b32 v9, 1, v8
    v_add_u32 v9, %d, v9
    v_add_u32 v36, %d, v6
    v_add_u32 v37, %d, v6
    v_mov_b32 v21, 0
    v_mov_b32 v247, 0
    v_bfe_u32 v23, v0, 2, 2
    v_bfe_u32 v22, v0, 4, 1
    v_and_b32 v13, 3, v0
    v_lshlrev_b32 v13, 3, v13""", C_VT, C_WC + 104, C_WC, C_WC + 52, C_VT + 26 * VS)
    a("""v_lshl_add_u32 v4, v5, 3, v23
    v_add_u32 v15, 4, v4
    v_min_u32 v4, 25, v4
    v_min_u32 v15, 25, v15
    v_mul_u32_u24 v4, 1352, v4
    v_mul_u32_u24 v15, 1352, v15
    s_and_b32 s65, s26, 1
    s_mul_i32 s64, s26, 52
    s_lshl_b32 s67, s65, 2
    s_sub_u32 s64, s64, s67
    s_add_u32 s64, s64, %d
    v_add3_u32 v10, v4, v13, s64
    v_add3_u32 v11, v15, v13, s64
    s_mul_i32 s67, s65, %d
    s_lshl_b32 s64, s26, 1
    s_sub_u32 s64, s64, s67
    s_add_u32 s64, s64, %d
    v_mul_u32_u24 v32, %d, v7
    v_add_u32 v32, s64, v32
    s_cmp_eq_u32 s65, 0
    s_cselect_b32 s68, 0, 3
    s_xor_b32 s68, s68, 0xffff
    s_cmp_eq_u32 s65, 0
    s_cselect_b32 s27, 0x3ff, 0
    s_cselect_b32 s65, 0, 0xfff
    s_or_b32 s27, s27, s65""", C_W2, 2 * VS, C_VT, VS)
    srd(a, S_TAB, 6, 6400000); srd(a, S_W1, 12, 1384448)
    a("""v_lshl_add_u32 v4, v1, 3, v23
    v_lshl_add_u32 v15, v22, 5, v13
    s_mul_i32 s64, s26, 104
    s_add_u32 s64, s64, %d
    v_mul_u32_u24 v40, 1352, v4
    v_add3_u32 v40, v40, v15, s64
    v_add_u32 v41, %d, v40
    v_add_u32 v14, 16, v4
    v_add_u32 v4, 20, v4
    v_min_u32 v14, 25, v14
    v_min_u32 v4, 25, v4
    v_mul_u32_u24 v14, 1352, v14
    v_mul_u32_u24 v4, 1352, v4
    v_add3_u32 v42, v14, v15, s64
    v_add3_u32 v43, v4, v15, s64
    v_and_b32 v4, 31, v0
    v_min_u32 v44, 26, v4
    v_mul_u32_u24 v44, %d, v44
    v_lshl_add_u32 v44, v1, 4, v44
    v_add_u32 v44, %d, v44
    v_mul_u32_u24 v15, 52, v4
    v_add_u32 v15, %d, v15
    v_mov_b32 v14, %d
    v_cmp_gt_u32 vcc, 26, v4
    v_mov_b32 v24, 104
    v_mov_b32 v25, 2704
    v_cndmask_b32 v15, v14, v15, vcc
    v_cndmask_b32 v14, v24, v25, vcc
    v_subrev_u32 v24, 16, v4
    v_lshl_add_u32 v15, v1, 3, v15
    v_cndmask_b32 v24, v24, v4, vcc
    s_add_u32 s67, s26, 8
    s_min_u32 s67, s67, 12
    v_mad_u32_u24 v46, v14, s26, v15
    v_mad_u32_u24 v48, v14, s67, v15
    v_lshrrev_b32 v14, 1, v14
    v_add3_u32 v47, v46, v14, -4
    v_add3_u32 v49, v48, v14, -4
    s_sub_u32 s67, s67, s26
    s_mul_i32 s67, s67, 104
    v_mul_u32_u24 v25, %d, v24
    v_lshl_add_u32 v25, v1, 4, v25
    v_add_u32 v215, %d, v25""", C_W1, 4 * 1352, VS, C_VT, C_U, C_L, FS, C_F)
    a("""s_mul_i32 s100, s26, %d
    s_add_u32 s100, s100, 128
    v_lshl_add_u32 v4, v4, 1, s100
    v_lshl_add_u32 v212, v1, 7, v4
    v_xor_b32 v14, 1, v1
    v_lshl_add_u32 v214, v14, 7, v4
    v_lshl_add_u32 v213, v14, 8, v214
    v_lshl_add_u32 v4, v1, 2, v23
    v_lshlrev_b32 v4, 3, v4
    v_lshl_add_u32 v14, v22, 5, v13
    v_add_u32 v15, s100, v14
    v_cmp_eq_u32 vcc, 1, v23""", XW)
    assert order[13] == 26
    for T in range(4):
        by = [slot[fld(h, order[4 * T + rr])] for h in range(2) for rr in range(4)]
        lo = sum(b << (8 * i) for i, b in enumerate(by[:4])); hi = sum(b << (8 * i) for i, b in enumerate(by[4:]))
        a("s_mov_b32 s64, 0x%x\ns_mov_b32 s65, 0x%x\nv_lshrrev_b64 v[28:29], v4, s[64:65]\nv_and_b32 v28, 0xff, v28\nv_lshl_add_u32 v%d, v28, 7, v15", lo, hi, 208 + T)
    a("v_cndmask_b32 v211, v211, v14, vcc")
    a("""v_mul_u32_u24 v50, 1352, v8
    v_mul_u32_u24 v15, %d, v22
    v_add_u32 v50, v50, v15
    v_add_u32 v50, %d, v50
    v_mul_u32_u24 v51, 52, v8
    v_add_u32 v51, %d, v51
    v_mul_u32_u24 v52, %d, v8
    v_lshl_add_u32 v52, v22, 5, v52
    v_add_u32 v52, %d, v52""", C_U - C_W0, C_W0, C_L, FS, C_F)
    a("""v_and_b32 v15, 1, v23
    v_lshl_add_u32 v15, v15, 3, s26
    v_mul_u32_u24 v15, 104, v15
    v_and_b32 v14, 3, v0
    v_lshlrev_b32 v252, 4, v14
    v_lshrrev_b32 v4, 3, v0""")
    for n in range(4):
        f0 = (cfg.GF0 + 8 * n) % 26
        if f0 + 7 < 26: a("v_lshl_add_u32 v%d, v4, 2, v15\nv_add_u32 v%d, %d, v%d", 24 + n, 24 + n, 4 * f0, 24 + n)
        else: a("v_add_u32 v14, %d, v4\nv_subrev_u32 v28, 26, v14\nv_min_u32 v14, v14, v28\nv_lshl_add_u32 v%d, v14, 2, v15", f0, 24 + n)
    for r in list(range(64, 96, 2)) + list(range(216, 232, 2)) + [236, 238]: a("v_mov_b64 v[%d:%d], 0", r, r + 1)
    a("s_lshl_b32 s64, s26, 4\ns_add_u32 s64, s64, s31\ns_add_u32 s64, s64, %d\ns_lshl_b32 s69, s64, 13", NE)
    srd(a, S_WS, 24, WSN); srd(a, S_DBG, 22, 256); srd(a, S_OUT, 20, 8192)
    a("""v_lshl_add_u32 v4, v22, 1, v1
    v_lshl_add_u32 v4, v4, 3, s26
    s_lshl_b32 s64, s30, 5
    v_add_u32 v4, s64, v4
    v_lshlrev_b32 v14, 2, v4
    v_lshl_add_u32 v14, v7, 9, v14
    s_lshl_b32 s64, s29, 12
    s_add_u32 s64, s64, %d
    v_add_u32 v14, s64, v14
    v_mov_b32 v15, %d
    v_add_u32 v28, %d, v14
    v_cmp_gt_u32 vcc, 8, v7
    s_lshl_b32 s64, s29, 8
    v_lshl_add_u32 v4, v4, 1, s64
    v_cndmask_b32 v244, %s, v14, vcc
    v_cmp_eq_u32 vcc, 0, v7
    s_nop 1
    v_cndmask_b32 v246, v15, v4, vcc""", WS_BOX, OOB, 131072 - 4096, "v28" if cfg.DUAL else "v15")
    a("v_and_b32 v33, 31, v0\nv_lshlrev_b32 v33, 2, v33\nv_mul_u32_u24 v14, %d, v1\nv_add_u32 v33, v33, v14\nv_mov_b32 v34, 0x3f803f80\nds_write_b32 v33, v34", PS)
    lst2(8)
    if cfg.TOUR:
        for w in range(7): a("s_cmp_eq_u32 s26, %d\ns_cbranch_scc1 P_fold%d", w, w)
        a("s_branch P_fold7\nL_toured:")
    a("s_and_b32 s101, s3, 0xfff\ns_cmp_ge_u32 s26, 4\ns_cbranch_scc1 L_c7")
    for n in range(9): a(stage(36 + 4 * n, 4, "s101"))
    if cfg.SL == 8: stamp(9)
    a("s_waitcnt vmcnt(9) lgkmcnt(0)")
    if cfg.SL == 8: stamp(10)
    a("s_branch L_c8\nL_c7:")
    for n in range(cfg.NS1): a(stage(72 + 4 * n, 4, "s101"))
    if cfg.SL == 8: stamp(9); a("s_waitcnt vmcnt(%d)", cfg.NS1); stamp(10)
    a("s_waitcnt vmcnt(%d) lgkmcnt(0)\ns_cmp_lg_u32 s26, 7\ns_cbranch_scc1 L_c8\ns_mov_b32 m0, %d\ns_mov_b32 s64, %d\nbuffer_load_dwordx4 v2, %s, s64 offen lds\nL_c8:\ns_barrier", cfg.NS1, C_W0 + 33 * 1024, 33 * 1024, sq(S_WC))
    stamp(2)
    a("ds_read_b128 v[16:19], v38")
    def vread(m):
        a("ds_read_b64_tr_b16 %s, v10 offset:%d", vr(96 + 4 * m, 2), 416 * (m >> 1) + 32 * (m & 1))
        a("ds_read_b64_tr_b16 %s, v11 offset:%d", vr(98 + 4 * m, 2), 416 * (m >> 1) + 32 * (m & 1))
    def vmul(m): a("v_mfma_f32_16x16x32_bf16 %s, v[16:19], %s, 0", vr(128 + 4 * m, 4), vr(96 + 4 * m, 4))
    def vwrite(ms):
        for jh in range(2):
            a("s_mov_b32 exec_lo, %s", "s68" if jh == 0 else "s27")
            for m in ms:
                if m & 1 == jh:
                    a("v_cvt_pk_bf16_f32 v%d, v%d, v%d", 96 + m, 128 + 4 * m, 128 + 4 * m)
                    a("ds_write_b16 v32, v%d offset:%d", 96 + m, 16 * VS * jh + 16 * (m >> 1))
    for m in range(6): vread(m)
    rest = list(range(72 + 4 * cfg.NS1, 104, 4))
    for m in range(6):
        a("s_waitcnt lgkmcnt(%d)", 2 * (5 - m)); vmul(m)
    lst4(8)
    a("s_cmp_ge_u32 s26, 2\ns_cbranch_scc1 L_v1")
    vread(6); vread(7)
    a("L_v1:")
    a("ds_read_b32 v20, v36\nds_read_u16_d16_hi v21, v9\ns_mov_b32 exec_hi, 0")
    vwrite(range(6))
    a("s_cmp_ge_u32 s26, 2\ns_cbranch_scc1 L_v2\ns_mov_b64 exec, -1\ns_waitcnt lgkmcnt(8)")
    vmul(6); vmul(7)
    a("s_nop 6\ns_mov_b32 exec_hi, 0")
    vwrite((6, 7))
    a("""L_v2:
    s_cmp_lg_u32 s26, 3
    s_cbranch_scc1 L_c5
    s_mov_b32 exec_lo, 0x1fff
    s_waitcnt lgkmcnt(6)
    ds_write_b32 v37, v20
    L_c5:
    s_mov_b64 exec, -1""")
    lst4(9)
    a("s_cmp_ge_u32 s26, 4\ns_cbranch_scc1 L_c9\ns_waitcnt vmcnt(0)\nL_c9:")
    lst4(10)
    a("s_waitcnt lgkmcnt(0)\ns_barrier")
    stamp(3)
    page("ustage", "L_toured")
    def gather(n, sh, r=None):
        calc = "v_lshl_add_u32 v%d, v%d, 6, v252" % (((56 if sh == 0 else 60) + n,) * 2) if r is None else "s_nop 0"
        r = r or (56 if sh == 0 else 60) + n
        ld = "buffer_load_dwordx4 v%d, %s, 0 offen lds" % (r, sq(S_TAB))
        if n == 3: ld = "s_mov_b64 exec, 0xffff\n" + ld + "\ns_mov_b64 exec, -1"
        return "s_add_u32 m0, s100, %d\n%s\n%s" % (PS * sh + 1024 * n, calc, ld)
    wpf = "buffer_load_dword v255, v251, %s, s69 offen" % sq(S_W1)
    if NE + 128 < 169 and not cfg.WPF2: wpf += "\ns_add_u32 s64, s69, %d\nbuffer_load_dword v255, v251, %s, s64 offen" % (128 << 13, sq(S_W1))
    npf = wpf.count('buffer_load')
    a("ds_read_b128 v[96:99], v44\nds_read_b128 v[100:103], v44 offset:32")
    def uread(par, base):
        for k in range(4): a("ds_read_b64_tr_b16 %s, v%d offset:%d", vr(base + 2 * k, 2), 40 + k, 48 * par)
    uread(0, 104); uread(1, 112)
    ut = cfg.ORD_U.split(); ft = cfg.ORD_F.split(); mt = cfg.ORD_M.split()
    def tok(t): return gather(int(t[1]), int(t[2]))
    for k in range(4): a("v_add_u32 v%d, s67, v%d", 40 + k, 40 + k)
    a("s_mov_b32 s66, 0x7ffffff\ns_mov_b32 s67, 0x7ffffff")
    def umfma(base, acc):
        a("v_mfma_f32_32x32x16_bf16 %s, %s, v[96:99], 0", vr(acc, 16), vr(base, 4))
        a("v_mfma_f32_32x32x16_bf16 %s, %s, v[100:103], %s", vr(acc, 16), vr(base + 4, 4), vr(acc, 16))
    def uwrite(acc, par, areg, tmp):
        for i in range(8 if par else 7): a("v_cvt_pk_bf16_f32 v%d, v%d, v%d", tmp + i, acc + 2 * i, acc + 2 * i + 1)
        w2 = lambda i: a("ds_write2_b32 v%d, v%d, v%d offset0:%d offset1:%d", areg, tmp + i, tmp + i + 1, 2 * i, 2 * i + 1)
        a("s_mov_b64 exec, s[66:67]")
        for i in ((0, 2, 4) if par == 0 else (2, 4)): w2(i)
        a("s_mov_b32 exec_hi, 0")
        if par == 0: a("ds_write_b32 v%d, v%d offset:48", areg, tmp + 6)
        else:
            w2(6); a("ds_write_b32 v%d, v%d offset:4", areg, tmp + 1)
            a("s_mov_b32 exec_lo, 0\ns_mov_b32 exec_hi, s67"); w2(0)
        a("s_mov_b64 exec, -1")
    a("s_cmp_ge_u32 s26, 4\ns_cbranch_scc1 L_u0")
    for o in rest: a(stage(o, 4, "s101"))
    a("L_u0:")
    a("s_waitcnt lgkmcnt(4)"); umfma(104, 128)
    a("s_waitcnt lgkmcnt(0)"); umfma(112, 144)
    a("s_bitcmp1_b32 0x2f, s26\ns_cbranch_scc0 L_u5")
    uread(0, 176)
    a("L_u5:\ns_bitcmp1_b32 0x4f, s26\ns_cbranch_scc0 L_u6")
    uread(1, 184)
    a("L_u6:")
    for n in range(4):
        a("ds_read_b32 v%d, v%d offset:%d\nds_read_b32 v%d, v%d offset:%d", 56 + n, 24 + n, C_IDX[0], 60 + n, 24 + n, C_IDX[1])
    lst2(9)
    uwrite(128, 0, 46, 192)
    a("s_bitcmp1_b32 0x2f, s26\ns_cbranch_scc0 L_u1")
    a("s_waitcnt lgkmcnt(12)"); umfma(176, 160)
    a("L_u1:\ns_bitcmp1_b32 0x4f, s26\ns_cbranch_scc0 L_u2")
    a("s_waitcnt lgkmcnt(12)"); umfma(184, 128)
    a("L_u2:\ns_waitcnt lgkmcnt(4)")
    for t in ut[0:1]: a(tok(t))
    uwrite(144, 1, 47, 200)
    for t in ut[1:]: a(tok(t))
    a("s_bitcmp1_b32 0x2f, s26\ns_cbranch_scc0 L_u3")
    uwrite(160, 0, 48, 192)
    a("L_u3:\ns_bitcmp1_b32 0x4f, s26\ns_cbranch_scc0 L_u4")
    uwrite(128, 1, 49, 200)
    a("L_u4:")
    lst2(10)
    a("s_waitcnt lgkmcnt(0)"); lst5(8)
    a("s_waitcnt vmcnt(%d)", len(ut)); lst5(9)
    a("s_barrier")
    stamp(4)
    forder = [7, 6, 0, 1, 2, 3, 4, 5]
    for w in range(7): a("s_cmp_eq_u32 s26, %d\ns_cbranch_scc1 L_fold%d", w, w)
    if cfg.TOUR: a("s_branch L_fold7")
    RES = 96
    for w in forder:
        page("fold%d" % w, ["P_ustage", "P_folded", "P_cl2", "L_toured"][w % 4], align=w in (0, 3), fall=False)
        chunks = [w + 8 * k for k in range(5)] + [40 + w]
        def fwrite(ci):
            c = chunks[ci]
            if c < 44: return ["ds_write_b128 v52, %s offset:%d" % (vr(RES + 4 * ci, 4), 64 * (c >> 1) + 16 * (c & 1))]
            return ["s_mov_b32 exec_lo, 0xffff0000", "s_mov_b32 exec_hi, 0xffff0000", "ds_write_b128 v52, %s offset:%d" % (vr(RES + 4 * ci, 4), 1408 + 16 * (c - 44) - 32), "s_mov_b64 exec, -1"]
        parts = []
        for ci, c in enumerate(chunks):
            for qf in range(4):
                rd = []; ops = []
                base = 64 + 4 * ((4 * ci + qf) % 8); nr = 0
                vals = []
                for e in range(2 * qf, 2 * qf + 2):
                    if c < 44:
                        pr = sch["pairs"][c & 1][8 * (c >> 1) + e]
                        if pr is None: vals.append("0"); continue
                        x, y = act(pr[0]), act(pr[1])
                        rd.append("ds_read_u16_d16_hi v%d, v50 offset:%d" % (base + nr, 52 * x + 2 * y)); nr += 1
                        if x == y: vals.append("v%d" % (base + nr - 1)); continue
                        rd.append("ds_read_u16_d16_hi v%d, v50 offset:%d" % (base + nr, 52 * y + 2 * x)); nr += 1
                        t = 120 + e
                        ops.append("v_add_f32 v%d, v%d, v%d" % (t, base + nr - 2, base + nr - 1)); vals.append("v%d" % t)
                    else:
                        u = (c - 44) >> 1; h = (c - 44) & 1; p = 8 * u + e
                        if p < 13:
                            rd.append("ds_read_u16_d16_hi v%d, v51 offset:%d" % (base + nr, 2 * act(fld(h, order[p])))); nr += 1
                            vals.append("v%d" % (base + nr - 1))
                        elif p == 13 and h == 0: vals.append("v21")
                        else: vals.append("0")
                ops.append("v_cvt_pk_bf16_f32 v%d, %s, %s" % (RES + 4 * ci + qf, vals[0], vals[1]))
                parts.append((rd, ops))
        issued = list(ut)
        D = cfg.FD
        fq = []
        def rd(i):
            for r in parts[i][0]: a(r); fq.append(i)
        for i in range(D): rd(i)
        for i in range(24):
            if cfg.FPRIO and i % 4 == 0 and i // 4 in (0, 2, 3, 4): a("s_setprio %d", {0: 3, 2: 2, 3: 1, 4: 0}[i // 4])
            if i + D < 24: rd(i + D)
            if parts[i][0]: a("s_waitcnt lgkmcnt(%d)", min(15, len(fq) - 1 - max(k for k, x in enumerate(fq) if x == i)))
            for o in parts[i][1]: a(o)
            if i % 4 == 3 and cfg.FW == 0:
                for o in fwrite(i // 4): a(o)
                fq.append(-1)
            if cfg.FW == 2 and i in (11, 23):
                for ci in range(i // 4 - 2, i // 4 + 1):
                    for o in fwrite(ci): a(o)
                    fq.append(-1)
            if i % 4 == 0:
                t = ft[i // 4]
                if t != "-": a(tok(t)); issued.append(t)
                if psite[w] == "F%d" % (i // 4): a(wpf); issued += ["P"] * npf
        lst5(10)
        if cfg.FW == 1:
            for ci in range(6):
                for o in fwrite(ci): a(o)
        last0 = max(i for i, t in enumerate(issued) if t[0] == "G" and t[2] == "0")
        assert {t for t in issued + mt if t[0] == "G"} == {"G%d%d" % (n, sh) for n in range(4) for sh in range(2)}
        assert all(t[2] == "1" for t in mt)
        a("s_waitcnt vmcnt(%d)", len(issued) - 1 - last0)
        a("s_branch L_folded")
    page("folded", "L_toured", fall=False)
    stamp(5)
    XP = (16, 24); XFL = list(range(64, 96)) + list(range(216, 232)) + list(range(236, 240)); TMP = 96; Z = (104, 112); FR = 120
    AC = ((144, 160), (176, 192)); RR = 240
    slot_of = [0, 1] * 11 + [2]
    def frag(g, tau): return FR + 8 * slot_of[g] + 4 * tau
    def rdF(g, tau):
        return "ds_read_b128 %s, v215 offset:%d" % (vr(frag(g, tau), 4), (1408 if g == 0 else 64 * (g - 1)) + 32 * tau)
    def rdX(sm, T, nxt): return "ds_read_b64_tr_b16 %s, v%d offset:%d" % (vr(XP[sm] + 2 * T, 2), 208 + T, 64 * sm + PS * nxt)
    xf = {}
    for i in range(27):
        if order[i] != 26: xf[order[i]] = len(xf)
    def xread(i, sm, nxt):
        f = order[i]; d = slot[pi(f)] - slot[f]
        reg, off = {1: (212, slot[f]), -3: (213, slot[f] - 3), -1: (214, slot[f] - 1)}[d]
        return "ds_read_u16_d16_hi v%d, v%d offset:%d" % (XFL[26 * sm + xf[f]], reg, 128 * off + 64 * sm + PS * nxt)
    def xreads(t, nxt): return [xread(i, sm, nxt) for sm in range(2) for i in sorted(first) if first[i] == t]
    pre = xreads(0, 0) + [rdX(sm, T, 0) for sm in range(2) for T in range(4)] + xreads(1, 0)
    for o in pre[:15]: a(o)
    for t in mt: a("v_lshl_add_u32 v%d, v%d, 6, v252", 232 + int(t[1]), 60 + int(t[1]))
    a("""s_lshl_b32 s31, s29, 2
    s_mov_b32 s67, s26
    s_mov_b32 s101, 0
    s_mov_b32 vcc_lo, -1
    s_mov_b32 vcc_hi, 0
    s_waitcnt lgkmcnt(15)
    s_barrier""")
    stamp(6)
    a(rdF(0, 0)); a(rdF(0, 1))
    for o in pre[15:]: a(o)
    a("global_load_short_d16_hi v247, v3, s[18:19]")
    def zops(t):
        o = []
        for sm in range(2):
            for hf in range(2):
                g = []
                for e in range(4 * hf, 4 * hf + 4):
                    x, y = slots[8 * t + e]
                    g.append("v_mul_f32 v%d, v%d, v%d" % (TMP + e, XFL[26 * sm + xf[x]], XFL[26 * sm + xf[y]]))
                for e2 in range(2 * hf, 2 * hf + 2):
                    g.append("v_cvt_pk_bf16_f32 v%d, v%d, v%d" % (Z[sm] + 4 * (t % 2) + e2, TMP + 2 * e2, TMP + 2 * e2 + 1))
                o.append(g)
        return o
    def mfc(acc, fr, b, c): return "v_mfma_f32_32x32x16_bf16 %s, %s, %s, %s" % (vr(acc, 16), vr(fr, 4), vr(b, 4), c)
    def epi(sm, dst):
        A0, A1 = AC[sm]; T = TMP + 4 * sm
        o = ["v_mul_f32 v%d, v%d, v%d" % (T + 1, A0, A1), "v_mul_f32 v%d, v%d, v%d" % (T + 2, A0 + 1, A1 + 1),
             "v_mul_f32 v%d, v%d, v%d" % (T, A0 + 12, A1 + 12), "v_fmac_f32 v%d, v%d, v%d" % (T + 1, A0 + 2, A1 + 2), "v_fmac_f32 v%d, v%d, v%d" % (T, A0 + 13, A1 + 13)]
        o += ["v_fmac_f32 v%d, v%d, v%d" % (T + 1 + i % 2, A0 + i, A1 + i) for i in range(3, 12)]
        o += ["v_cndmask_b32 v%d, 0, v%d, vcc" % (T, T), "v_add_f32 v%d, v%d, v%d" % (T + 1, T + 1, T + 2), "v_add_f32 v%d, v%d, v%d" % (dst, T, T + 1)]
        return o
    if cfg.EACC:
        a("s_waitcnt lgkmcnt(15)")
        for o in zops(0)[0] + zops(0)[1]: a(o)
    a("s_waitcnt lgkmcnt(0)")
    if cfg.SL == 6: stamp(8)
    a("L_cloop:")
    dq = []
    def ds(t, tag): a(t); dq.append(tag)
    def dwait(tag):
        if tag not in dq: return
        n = len(dq) - 1 - max(i for i, t in enumerate(dq) if t == tag)
        a("s_waitcnt lgkmcnt(%d)", min(n, 15))
    def lst(k):
        if cfg.SL == 1: stamp(k)
        if cfg.SL == 6: a("s_cmp_eq_u32 s67, 99\ns_cbranch_scc1 L_ls%d", k); stamp(k); a("L_ls%d:", k)
    xq = [(t, o) for t in range(2, 22) for o in xreads(t, 0)]
    nsite = [0]
    def site(cond, body):
        nsite[0] += 1
        a("%s\ns_cbranch_scc0 L_site%d\n%s\nL_site%d:", cond, nsite[0], body, nsite[0])
    def extras(t, g):
        if g == 0:
            gn = (t + 2) % 23
            ds(rdF(gn, 0), ("F", gn if gn else -1)); ds(rdF(gn, 1), ("F", gn if gn else -1)); return
        if g == 1 and 0 <= t < len(mt):
            n = int(mt[t][1])
            site("s_cmp_lt_u32 s67, 8", gather(n, 1, 232 + n)); return
        if g == 2 and "M%d" % t in psite:
            site("s_cmp_eq_u32 s67, %d" % psite.index("M%d" % t), wpf); return
        if (t, g) == (cfg.T_BAR, 1): a("s_waitcnt vmcnt(0)\nbuffer_load_dword v248, off, %s, s31 sc1", sq(S_DBG)); return
        if g == 1 and 16 <= t < 20:
            assert cfg.T_BAR < 16
            ds(rdX(0, t - 16, 1), "X"); ds(rdX(1, t - 16, 1), "X"); return
        for k in range(2):
            if xq: ds(xq.pop(0)[1], "x")
            elif cfg.PAD: a("s_nop 0")
    def block(m, t, g, ops, ex=None):
        a(m)
        pr = cfg.PRIO and (cfg.PMASK >> (g & 3)) & 1
        if pr: a("s_setprio 0")
        if ex is None: extras(t, g)
        else:
            for o in ex: ds(o, "n")
        for i, o in enumerate(ops):
            a(o)
            if pr and i + 1 == cfg.PRIO: a("s_setprio 1")
    z0 = zops(0)
    E = (32, 48) if cfg.EACC else (AC[0][1], AC[1][1])
    if cfg.EACC:
        ea = epi(0, RR + 2); eb = epi(1, RR + 3)
        block(mfc(E[0], frag(0, 0), XP[0], "0"), -1, 0, ea[:9])
        block(mfc(E[1], frag(0, 0), XP[1], "0"), -1, 1, ea[9:] + z0[2][:2])
        block(mfc(E[0], frag(0, 1), XP[0] + 4, vr(E[0], 16)), -1, 2, z0[2][2:] + z0[3])
        block(mfc(E[1], frag(0, 1), XP[1] + 4, vr(E[1], 16)), -1, 3, eb[:9])
    else:
        block(mfc(AC[0][1], frag(0, 0), XP[0], "0"), -1, 0, epi(1, RR + 1))
        block(mfc(AC[0][1], frag(0, 1), XP[0] + 4, vr(AC[0][1], 16)), -1, 1, z0[0])
        block(mfc(AC[1][1], frag(0, 0), XP[1], "0"), -1, 2, z0[1] + z0[2][:4])
        block(mfc(AC[1][1], frag(0, 1), XP[1] + 4, vr(AC[1][1], 16)), -1, 3, z0[2][4:] + z0[3])
    for t in range(21):
        g = t + 1
        assert not xq or xq[0][0] - 3 >= t
        if t == cfg.LBRK: page("cl2", "L_toured")
        if t == 3: lst(1)
        if t == 10: lst(2)
        if t == cfg.T_BAR: lst(3)
        if t == cfg.T_BAR + 1: lst(4)
        dwait(("F", g))
        zn = zops(t + 1)
        seq = [(tau, sm) for tau in range(2) for sm in range(2)]
        if t == 0 and cfg.EACC:
            seq = [(0, 0), (1, 0), (0, 1), (1, 1)]
            zn = [eb[9:], zn[0] + zn[1][:2], zn[1][2:] + zn[2][:4], zn[2][4:] + zn[3]]
        for k, (tau, sm) in enumerate(seq):
            c = vr(AC[sm][tau], 16) if t else ("0" if tau == 0 else vr(E[sm], 16))
            block(mfc(AC[sm][tau], frag(g, tau), Z[sm] + 4 * (t % 2), c), t, k, zn[k])
    lst(5)
    dwait(("F", 22))
    n0 = xreads(0, 1); n1 = xreads(1, 1); h0 = len(n0) // 2
    adds = ["v_add_u32 v%d, %d, v%d" % (208 + T, PS, 208 + T) for T in range(7)]
    poll = """s_waitcnt vmcnt(0)
    v_readfirstlane_b32 s64, v248
    s_cmp_lt_u32 s64, 4
    s_cbranch_scc1 L_notyet
    s_mov_b32 s101, 1
    buffer_load_dword v249, v244, %s, 0 offen sc1
    L_notyet:""" % sq(S_WS)
    if cfg.EACC:
        block(mfc(AC[0][0], frag(22, 0), Z[0] + 4, vr(AC[0][0], 16)), 21, 0, [], n0[:h0])
        block(mfc(AC[0][1], frag(22, 1), Z[0] + 4, vr(AC[0][1], 16)), 21, 1, [], [rdF(0, 0), rdF(0, 1)] + n0[h0:])
        a(poll)
        a("s_waitcnt lgkmcnt(%d)", 2 + len(n0) - h0)
        block(mfc(AC[1][0], frag(22, 0), Z[1] + 4, vr(AC[1][0], 16)), 21, 2, z0[0], n1[:3])
        block(mfc(AC[1][1], frag(22, 1), Z[1] + 4, vr(AC[1][1], 16)), 21, 3, z0[1] + adds, n1[3:])
        a("v_mov_b32 v%d, v%d\nv_mov_b32 v%d, v%d", RR, RR + 2, RR + 1, RR + 3)
        a("s_cmp_eq_u32 s67, 99\ns_mov_b32 s67, 99")
    else:
        nx = n0 + n1
        a(mfc(AC[0][0], frag(22, 0), Z[0] + 4, vr(AC[0][0], 16))); extras(21, 0)
        for o in nx[:6]: ds(o, "n")
        a(mfc(AC[0][1], frag(22, 1), Z[0] + 4, vr(AC[0][1], 16)))
        for o in nx[6:12]: ds(o, "n")
        a(mfc(AC[1][0], frag(22, 0), Z[1] + 4, vr(AC[1][0], 16)))
        for o in nx[12:]: ds(o, "n")
        a(poll)
        a(mfc(AC[1][1], frag(22, 1), Z[1] + 4, vr(AC[1][1], 16)))
        a("s_cmp_eq_u32 s67, 99\ns_mov_b32 s67, 99")
        a("v_mov_b32 v%d, v%d", RR, RR + 2)
        for o in epi(0, RR + 2): a(o)
        for o in adds: a(o)
    a("s_waitcnt lgkmcnt(0)")
    if cfg.STAMP:
        a("s_cbranch_scc1 L_cfin"); stamp(7); a("s_branch L_cloop")
    else: a("s_cbranch_scc0 L_cloop")
    a("L_cfin:\ns_setprio 0")
    if cfg.SL < 2: stamp(8)
    if cfg.EACC:
        for o in epi(0, RR + 2): a(o)
    for o in epi(1, RR + 3): a(o)
    a("""v_permlane32_swap_b32 v%d, v%d
    s_cmp_eq_u32 s101, 1
    s_cbranch_scc1 L_cok
    s_mov_b32 s65, 0x20000
    L_cspin:
    buffer_load_dword v248, off, %s, s31 sc1
    s_waitcnt vmcnt(0)
    v_readfirstlane_b32 s64, v248
    s_sub_u32 s65, s65, 1
    s_cbranch_scc1 L_cgo
    s_cmp_lt_u32 s64, 4
    s_cbranch_scc1 L_cspin
    L_cgo:
    buffer_load_dword v249, v244, %s, 0 offen sc1
    L_cok:
    v_permlane32_swap_b32 v%d, v%d
    v_add_f32 v%d, v%d, v%d
    v_add_f32 v%d, v%d, v%d
    s_mov_b32 s65, 0x20000
    s_nop 0
    v_permlane16_swap_b32 v%d, v%d
    v_add_f32 v%d, v%d, v%d""", RR, RR + 1, sq(S_DBG), sq(S_WS), RR + 2, RR + 3, RR, RR, RR + 1, RR + 2, RR + 2, RR + 3, RR, RR + 2, RR, RR, RR + 2)
    if cfg.SL < 2: stamp(9)
    if cfg.DUAL:
        a("""s_mov_b32 s66, 0xff00ff
        s_mov_b32 s67, 0xff00ff
        L_pspin:
        s_waitcnt vmcnt(0)
        v_mov_b32_dpp v250, v249 row_ror:8 row_mask:0xf bank_mask:0xf
        v_min_u32 v250, v250, v249
        v_cmp_eq_u32 vcc, -1, v250
        s_cbranch_vccz L_pok
        s_sub_u32 s65, s65, 1
        s_cbranch_scc1 L_pok
        buffer_load_dword v249, v244, %s, 0 offen sc1
        s_branch L_pspin
        L_pok:
        v_cndmask_b32 v250, 0, v250, s[66:67]
        v_add_f32 v%d, v%d, v250""", sq(S_WS), RR, RR)
    else:
        a("""L_pspin:
        s_waitcnt vmcnt(0)
        v_cmp_eq_u32 vcc, -1, v249
        s_cbranch_vccz L_pok
        s_sub_u32 s65, s65, 1
        s_cbranch_scc1 L_pok
        buffer_load_dword v249, v244, %s, 0 offen sc1
        s_branch L_pspin
        L_pok:
        v_add_f32 v%d, v%d, v249""", sq(S_WS), RR, RR)
    for sh in (8, 4, 2, 1):
        a("s_nop 1\nv_add_f32_dpp v%d, v%d, v%d row_ror:%d row_mask:0xf bank_mask:0xf", RR, RR, RR, sh)
    a("""v_add_f32 v%d, v%d, v247
    v_cvt_pk_bf16_f32 v%d, v%d, v%d
    buffer_store_short v%d, v246, %s, 0 offen""", RR, RR, RR, RR, RR, RR, sq(S_OUT))
    stamp(11)
    if cfg.PROBE == "spin" and cfg.PX >= 100:
        a("s_getreg_b32 s66, hwreg(HW_REG_XCC_ID)\ns_sub_u32 s66, s66, s2\ns_and_b32 s66, s66, 7")
        if cfg.PX == 101: a("s_xor_b32 s66, s66, 7")
        a("s_add_u32 s66, s66, 2\ns_mul_i32 s66, s66, 1000")
        a("s_waitcnt lgkmcnt(0)\nL_sp:\ns_memrealtime s[64:65]\ns_waitcnt lgkmcnt(0)\ns_sub_u32 s64, s64, s70\ns_cmp_lt_u32 s64, s66\ns_cbranch_scc1 L_sp")
    elif cfg.PROBE == "spin":
        if cfg.PX >= 0: a("s_and_b32 s64, s2, 7\ns_cmp_lg_u32 s64, %d\ns_cbranch_scc1 L_end", cfg.PX)
        a("s_waitcnt lgkmcnt(0)\nL_sp:\ns_memrealtime s[64:65]\ns_waitcnt lgkmcnt(0)\ns_sub_u32 s64, s64, s70\ns_cmp_lt_u32 s64, %d\ns_cbranch_scc1 L_sp", cfg.PN * 100)
    dump_stamps()
    a("s_endpgm")
    cin = a.L
    a.L = []

    page("loader", "L_comp", fall=False)
    def lst3(k):
        if cfg.SL == 3: stamp(k)
    lst3(6)
    srd(a, S_TAB, 6, 6400000)
    if cfg.TLB:
        a("s_cmp_lt_u32 s66, %d\ns_cbranch_scc1 L_notlb\nv_mul_u32_u24 v34, 100000, v0\nbuffer_load_dword v35, v34, %s, 0 offen\nL_notlb:", cfg.WPF_D, sq(S_TAB))
    else:
        a("s_cmp_lt_u32 s66, %d\ns_cbranch_scc1 L_notlb\nbuffer_load_dword v35, off, %s, 0\nL_notlb:", cfg.WPF_D, sq(S_TAB))
    wl = "s_cmp_ge_u32 s66, %d\ns_cbranch_scc1 L_wl\nbuffer_load_dword v35, v251, %s, s60 offen\nL_wl:" % (cfg.WPF_D, sq(S_W1))
    if cfg.WLATE == 1: a(wl)
    stamp(1)
    a("s_mul_i32 s65, s30, 416")
    for ii in range(4):
        if ii < 3: a("s_mul_i32 s64, s66, 192\ns_add_u32 s64, s64, %d", 64 * ii)
        else: a("s_mov_b32 s64, 768")
        a("""v_add_u32 v2, s64, v0
        v_mul_u32_u24 v3, 2521, v2
        v_lshrrev_b32 v3, 16, v3
        v_mul_u32_u24 v4, 26, v3
        v_sub_u32 v4, v2, v4
        v_lshrrev_b32 v5, 1, v3
        v_xor_b32 v5, v5, v3
        v_bfe_u32 v5, v5, 2, 1
        v_mul_u32_u24 v5, 12, v5
        v_xor_b32 v3, v3, v5
        v_mul_u32_u24 v3, 1664, v3
        v_lshl_add_u32 v3, v4, 4, v3
        v_add_u32 v%d, s65, v3""", 10 + ii if ii < 3 else 9)
    lst3(7)
    if cfg.WLATE == 2: a(wl)
    srd(a, S_WS, 24, WSN); srd(a, S_DBG, 22, 256)
    a("""s_lshl_b32 s64, s29, 12
    s_lshl_b32 s65, s30, 10
    s_add_u32 s64, s64, s65
    s_lshl_b32 s65, s66, 8
    s_add_u32 s64, s64, s65
    s_add_u32 s64, s64, %d
    v_lshl_add_u32 v31, v0, 2, s64
    v_mov_b32 v30, -1
    v_mov_b32 v32, 1
    s_mul_i32 s62, s66, 3072
    s_add_u32 s62, s62, 8192
    s_lshl_b32 s63, s66, 11
    v_lshrrev_b32 v2, 2, v0
    v_mul_u32_u24 v2, 104, v2
    s_mul_i32 s68, s30, %d
    s_mul_i32 s69, s68, 53248
    s_lshl_b32 s64, s68, 2
    s_add_u32 s64, s64, s67
    v_add_u32 v14, s64, v2
    v_and_b32 v2, 3, v0
    v_bfe_u32 v3, v0, 4, 1
    v_lshlrev_b32 v3, 1, v3
    v_xor_b32 v2, v2, v3
    v_lshlrev_b32 v13, 4, v2""", WS_BOX, cfg.ROT)
    def ldB(s):
        a("s_cmp_lg_u32 s66, %d\ns_cbranch_scc1 L_q%d\ns_mov_b32 m0, %d\ns_nop 0\nbuffer_load_dwordx4 v9, %s, s69 offen lds\nL_q%d:", s % 4, s, (s % cfg.R) * SLOT + 20480, sq(S_W1), s)
        for ii in range(3):
            a("s_add_u32 m0, s62, %d\ns_nop 0", (s % cfg.R) * SLOT + 1024 * ii)
            a("buffer_load_dwordx4 v%d, %s, s69 offen lds", 10 + ii, sq(S_W1)); vm(("st", s))
        a("s_add_u32 s69, s69, 53248")
        if s >= 25 - 3 * cfg.ROT: a("s_cmp_eq_u32 s69, %d\ns_cselect_b32 s69, 0, s69", 26 * 53248)
    ireg = lambda n: 64 + 2 * n if cfg.ALLI else 16 + 2 * (n % 4)
    def rdI(n):
        r = 14
        if n >= 26 - 3 * cfg.ROT:
            a("s_cmp_ge_u32 s68, %d\ns_cselect_b32 s64, 104, 0\nv_subrev_u32 v15, s64, v14", 26 - n); r = 15
        a("ds_read_b32 v%d, v%d offset:%d\nds_read_b32 v%d, v%d offset:%d", ireg(n), r, 4 * n, ireg(n) + 1, r, 4 * n + 1664)
    def ldA(s):
        for ii in range(2):
            a("s_add_u32 m0, s63, %d", (s % cfg.R) * SLOT + 1024 * ii)
            if cfg.ALLI and s >= cfg.NI: a("s_nop 0")
            else: a("v_lshl_add_u32 v%d, v%d, 6, v13", ireg(s) + ii, ireg(s) + ii)
            a("buffer_load_dwordx4 v%d, %s, 0 offen lds", ireg(s) + ii, sq(S_TAB)); vm(("st", s))
    if cfg.APF:
        a("v_and_b32 v2, 7, v0\ns_lshl_b32 s64, s30, 3\nv_add_u32 v2, s64, v2\nv_mul_u32_u24 v2, 104, v2\nv_lshrrev_b32 v3, 3, v0\nv_lshl_add_u32 v2, v3, 2, v2\ns_add_u32 s64, s67, %d\nv_add_u32 v36, s64, v2\nv_cmp_gt_u32 vcc, %d, v3\nv_mov_b32 v38, %d", 4 * cfg.AP0, cfg.APF - cfg.AP0, OOB)
    lst3(8)
    wait_for(lambda t: t == "idx")
    stamp(2)
    for s in range(cfg.NI): rdI(s)
    if cfg.APF: a("ds_read_b32 v36, v36")
    def apf():
        if cfg.APF: a("s_waitcnt lgkmcnt(0)\nv_lshlrev_b32 v36, 6, v36\nv_cndmask_b32 v36, v38, v36, vcc\nbuffer_load_dword v37, v36, %s, 0 offen", sq(S_TAB)); vm("apf")
    if not cfg.AP0: apf()
    for s in range(cfg.NI):
        a("s_waitcnt lgkmcnt(%d)", 2 * (cfg.NI - 1 - s) + (1 if cfg.APF else 0))
        ldA(s)
        if cfg.AP0 and s == 0: apf()
        ldB(s)
    if cfg.WPF2:
        a("s_cmp_lt_u32 s66, %d\ns_cbranch_scc1 L_w2\ns_lshl_b32 s65, s66, 4\ns_add_u32 s65, s65, s28\ns_lshl_b32 s65, s65, 13\ns_nop 0\nbuffer_load_dword v35, v251, %s, s65 offen\nL_w2:", cfg.WPF_D, sq(S_W1))
    st = dict(nxt=cfg.NI, nrd=cfg.NI)
    def read_ahead(upto):
        while st["nrd"] <= min(upto, 25): rdI(st["nrd"]); st["nrd"] += 1
    assert cfg.NI + cfg.CATCH <= 4 + cfg.NI and cfg.NI <= 4
    if cfg.ALLI:
        read_ahead(25)
        for n in range(cfg.NI, 26):
            if (n - cfg.NI) % 4 == 0: a("s_waitcnt lgkmcnt(%d)", min(15, max(0, 2 * (25 - n - 3))))
            for ii in range(2): a("v_lshl_add_u32 v%d, v%d, 6, v13", ireg(n) + ii, ireg(n) + ii)
    read_ahead(st["nxt"] + cfg.CATCH - 1)
    stamp(3)
    wait_for(lambda t: t == ("st", 0))
    stamp(11)
    a("s_barrier")
    stamp(4)
    def issue(limit):
        todo = [n for n in range(st["nxt"], min(st["nxt"] + cfg.CATCH, 26)) if n <= limit]
        if not todo: return
        if not cfg.ALLI: a("s_waitcnt lgkmcnt(0)")
        for n in todo: ldA(n); ldB(n)
        st["nxt"] = todo[-1] + 1
        read_ahead(st["nxt"] + cfg.CATCH - 1)
    marks = {2: 5, 6: 6, 10: 7, 14: 8, 20: 9} if cfg.SL != 3 else {}
    def two(limit):
        for _ in range(2): issue(limit)
    if cfg.B2: two(min(cfg.NI + cfg.PRE2 - 1, cfg.R - 1))
    else: issue(cfg.R - 1)
    for s in range(0, 26, 2 if cfg.B2 else 1):
        need = min(25, s + (2 if cfg.B2 else 1))
        if s == 24: a("s_waitcnt vmcnt(0)")
        elif s < 25: wait_for(lambda t: t == ("st", need))
        a("s_barrier")
        if s == cfg.DBRK: page("ld2", "P_gl2")
        if s in marks: stamp(marks[s])
        if cfg.B2: two(s + cfg.R)
        else: issue(s + cfg.R)
        if s == 8:
            a("buffer_store_dword v30, v31, %s, 0 offen sc1", sq(S_WS)); vm("sent")
            if cfg.DUAL: a("s_mov_b32 s64, 0x20000\nbuffer_store_dword v30, v31, %s, s64 offen sc1", sq(S_WS)); vm("sent")
        if s == 24:
            assert st["nxt"] == 26
            a("s_cmp_lg_u32 s66, 0\ns_cbranch_scc1 L_noat\ns_lshl_b32 s64, s29, 2\ns_mov_b64 exec, 1\nbuffer_atomic_add v32, off, %s, s64\ns_mov_b64 exec, -1\nL_noat:", sq(S_DBG))
    stamp(10)
    dump_stamps()
    a("s_endpgm")
    loader = a.L; a.L = []

    a("L_comp:")
    ACC = lambda tt, rt: 104 + 16 * tt + 4 * rt
    W2R = 208
    XFr = lambda st_, rt: 16 + 44 * st_ + 4 * rt
    WFr = lambda st_, tt: 32 + 44 * st_ + 4 * tt
    a("""s_and_b32 s66, s26, 1
    s_lshr_b32 s67, s26, 1
    v_and_b32 v1, 15, v0
    v_lshrrev_b32 v2, 4, v0
    v_bfe_u32 v3, v0, 2, 1
    v_lshlrev_b32 v3, 1, v3
    v_xor_b32 v3, v3, v2
    v_lshlrev_b32 v3, 4, v3
    v_lshl_add_u32 v3, v1, 6, v3
    s_lshl_b32 s64, s66, 12
    s_lshl_b32 s65, s67, 11
    s_add_u32 s64, s64, s65
    v_add_u32 v4, s64, v3
    v_xor_b32 v5, 0x800, v4
    v_lshrrev_b32 v3, 5, v0
    v_bfe_u32 v8, v0, 4, 1
    v_lshlrev_b32 v3, 4, v3
    v_lshl_add_u32 v3, v8, 2, v3
    v_bfe_u32 v8, v0, 2, 2
    v_add_u32 v3, v3, v8
    v_mul_u32_u24 v3, 416, v3
    v_and_b32 v8, 3, v0
    v_lshl_add_u32 v3, v8, 3, v3
    s_mul_i32 s64, s67, 224
    s_add_u32 s64, s64, 8192
    v_add_u32 v6, s64, v3
    v_add_u32 v7, %d, v3""", 8192 + 192)
    a("""s_mul_i32 s64, s30, 416
    s_mul_i32 s65, s67, 192
    s_add_u32 s64, s64, s65
    v_lshl_add_u32 v8, v0, 3, s64
    s_mul_i32 s65, s26, 896
    s_add_u32 s65, s65, %d
    v_lshl_add_u32 v9, v0, 4, s65
    v_lshl_add_u32 v11, v2, 4, s65
    s_lshl_b32 s64, s67, 6
    v_add_u32 v10, s64, v11
    s_mul_i32 s64, s67, 384
    s_sub_u32 s64, 384, s64
    v_add_u32 v11, s64, v11
    s_waitcnt lgkmcnt(0)
    s_mov_b64 exec, 0xfffffff
    global_load_dwordx2 v[12:13], v8, s[14:15]
    global_load_dwordx2 v[14:15], v8, s[16:17]
    s_mov_b64 exec, -1""", D_BW)
    stamp(1)
    srd(a, S_WS, 24, WSN)
    a("""s_lshl_b32 s64, s29, 12
    s_lshl_b32 s65, s30, 10
    s_add_u32 s64, s64, s65
    s_lshl_b32 s65, s67, 9
    s_add_u32 s64, s64, s65
    s_lshl_b32 s65, s66, 8
    s_add_u32 s64, s64, s65
    s_add_u32 s64, s64, %d
    s_lshl_b32 s65, s67, 5
    v_xor_b32 v1, s65, v0
    v_lshl_add_u32 v244, v1, 2, s64
    s_waitcnt vmcnt(0)
    s_mov_b64 exec, 0xfffffff
    v_lshlrev_b32 v16, 16, v12
    v_and_b32 v17, 0xffff0000, v12
    v_lshlrev_b32 v18, 16, v13
    v_and_b32 v19, 0xffff0000, v13
    v_lshlrev_b32 v20, 16, v14
    v_and_b32 v21, 0xffff0000, v14
    v_lshlrev_b32 v22, 16, v15
    v_and_b32 v23, 0xffff0000, v15
    ds_write_b128 v9, v[16:19]
    ds_write_b128 v9, v[20:23] offset:448
    s_mov_b64 exec, -1""", WS_BOX)
    if cfg.TOUR: a("s_cmp_eq_u32 s26, 0\ns_cbranch_scc1 P_ld2\nL_ctour:")
    a("s_waitcnt lgkmcnt(0)")
    for tt in range(7):
        ar, off = (10, 64 * tt) if tt < 6 else (11, 0)
        for rt in range(4 if tt < 6 else 2): a("ds_read_b128 %s, v%d offset:%d", vr(ACC(tt, rt), 4), ar, off)
        a("ds_read_b128 %s, v%d offset:%d", vr(W2R + 4 * tt, 4), ar, off + 448)
    a("""s_mov_b32 s66, 1
    s_mov_b32 s67, 13
    s_mov_b32 s68, %d
    s_mov_b32 s69, %d
    s_mov_b32 s62, 0x%x
    s_mov_b32 s63, 0x%x
    v_mov_b32 v8, 0x%x
    v_mov_b32 v9, 0x%x
    v_mov_b64 v[236:237], 0
    v_mov_b64 v[238:239], 0
    v_mov_b64 v[240:241], 0
    v_mov_b64 v[242:243], 0
    s_waitcnt lgkmcnt(0)""", -(cfg.R - 1) * SLOT, SLOT, f32bits(c2), f32bits(c2), f32bits(c1), f32bits(c1))
    def reads(st_):
        x = lambda rt: "ds_read_b128 %s, v%d offset:%d" % (vr(XFr(st_, rt), 4), 4 + rt // 2, 1024 * (rt & 1))
        w = lambda tt, u: "ds_read_b64_tr_b16 %s, v%d offset:%d" % (vr(WFr(st_, tt) + 2 * u, 2), 6 if tt < 6 else 7, (32 * tt if tt < 6 else 0) + 3328 * u)
        return [x(0), w(0, 0), w(0, 1), x(1), x(2), x(3)] + [w(tt, u) for tt in range(1, 7) for u in range(2)]
    def mf(st_, tt, rt): return "v_mfma_f32_16x16x32_bf16 %s, %s, %s, %s" % (vr(ACC(tt, rt), 4), vr(WFr(st_, tt), 4), vr(XFr(st_, rt), 4), vr(ACC(tt, rt), 4))
    if cfg.CPRIO: a("s_setprio %d", cfg.CPRIO)
    stamp(6)
    a("s_barrier")
    stamp(2)
    for r in reads(0): a(r)
    for k in range(4): a("v_add_u32 v%d, s69, v%d", 4 + k, 4 + k)
    a("L_dloop:")
    for st_ in range(2):
        a("s_waitcnt lgkmcnt(0)")
        if st_ == 0 or not cfg.B2: a("s_barrier")
        r = reads(1 - st_)
        fill = r + ["s_add_u32 s66, s66, 1\ns_cmp_eq_u32 s66, %d" % cfg.R, "s_cselect_b32 s64, s68, s69\ns_cselect_b32 s66, 0, s66"] + ["v_add_u32 v%d, s64, v%d" % (4 + k, 4 + k) for k in range(4)]
        if st_ == 1: fill += ["s_sub_u32 s67, s67, 1\ns_cmp_lg_u32 s67, 0"]
        ms = [(tt, rt) for tt in range(7) for rt in range(4 if tt < 6 else 2)]
        for k, (tt, rt) in enumerate(ms):
            a(mf(st_, tt, rt))
            if k < len(fill): a(fill[k])
    a("s_cbranch_scc1 L_dloop")
    stamp(3)
    def gelu(acc, w2, T):
        P = range(4)
        x = lambda i: vr(acc + 2 * i, 2); t = lambda i: vr(T + 2 * i, 2)
        for i in P: a("v_pk_mul_f32 %s, %s, %s", t(i), x(i), x(i))
        for i in P: a("v_pk_fma_f32 %s, %s, s[62:63], v[8:9]", t(i), t(i))
        for i in P: a("v_pk_mul_f32 %s, %s, %s", t(i), t(i), x(i))
        for i in range(8): a("v_exp_f32 v%d, v%d", T + i, T + i)
        for i in P: a("v_pk_mul_f32 %s, %s, %s", x(i), x(i), vr(w2 + 2 * (i & 1), 2))
        for i in P: a("v_pk_add_f32 %s, %s, 1.0 op_sel_hi:[1,0]", t(i), t(i))
        for i in range(8): a("v_rcp_f32 v%d, v%d", T + i, T + i)
    def gelu_fin(acc, T, rt):
        for i in (0, 2, 1, 3): a("v_pk_fma_f32 %s, %s, %s, %s", vr(236 + 2 * (rt + i // 2), 2), vr(acc + 2 * i, 2), vr(T + 2 * i, 2), vr(236 + 2 * (rt + i // 2), 2))
    a("s_waitcnt lgkmcnt(0)")
    pend = None; k = 0
    for tt in range(7):
        for rt in ((0, 2) if tt < 6 else (0,)):
            if k == cfg.GBRK: page("gl2", "L_ctour")
            T = 16 + 8 * (k % 2); k += 1
            gelu(ACC(tt, rt), W2R + 4 * tt, T)
            if pend: gelu_fin(*pend)
            pend = (ACC(tt, rt), T, rt)
    a("s_nop 0"); gelu_fin(*pend)
    a("""v_add_f32 v236, v236, v237
    v_add_f32 v240, v240, v241
    v_add_f32 v238, v238, v239
    v_add_f32 v242, v242, v243
    v_permlane32_swap_b32 v236, v240
    s_nop 0
    v_permlane32_swap_b32 v238, v242
    v_add_f32 v236, v236, v240
    v_add_f32 v238, v238, v242
    s_nop 1
    v_permlane16_swap_b32 v236, v238
    v_add_f32 v236, v236, v238""")
    if cfg.DUAL: a("s_mov_b32 s64, 0x20000\nbuffer_store_dword v236, v244, %s, s64 offen", sq(S_WS))
    a("buffer_store_dword v236, v244, %s, 0 offen sc1", sq(S_WS))
    stamp(4)
    dump_stamps()
    a("L_end:\ns_endpgm")
    comp = a.L
    body = "\n".join(cin + loader + comp) + "\n"

    hdr = open("standalone__deep_cross_xdeepfm__recsys.s.ref").read().split("; Override launch")[0]
    out = hdr + "; Written by the author's own generator script. Workgroups with (id>>3)<16 run a 128x208 tile of the MLP GEMM,\n; the others fold the CIN weights, evaluate the two quadratic forms per column and combine.\n"
    out += "; @launch grid=(256,1,1) block=(512,1,1) lds=163840\n"
    out += '.amdgcn_target "amdgcn-amd-amdhsa--gfx950"\n.text\n.p2align 12\n.globl %s\n.p2align 8\n.type %s,@function\n%s:\n' % (KN, KN, KN)
    out += body + "L_codeend:\n"
    out += """.section .rodata,"a"
.p2align 6
.amdhsa_kernel %s
  .amdhsa_next_free_vgpr 256
  .amdhsa_next_free_sgpr 102
  .amdhsa_accum_offset 256
  .amdhsa_group_segment_fixed_size 0
  .amdhsa_kernarg_size 88
  .amdhsa_user_sgpr_count 2
  .amdhsa_user_sgpr_kernarg_segment_ptr 1
  .amdhsa_system_sgpr_workgroup_id_x 1
  .amdhsa_float_denorm_mode_32 3
.end_amdhsa_kernel
""" % KN
    return out, lint(body)

if __name__ == "__main__":
    cfg = Cfg()
    path = sys.argv[1]
    for kv in sys.argv[2:]:
        k, v = kv.split("=")
        old = getattr(cfg, k)
        v = v.replace("_", " ") if k.startswith("ORD") or k == "PSITE" else v
        setattr(cfg, k, v if isinstance(old, str) else (bool(int(v)) if isinstance(old, bool) else int(v)))
    out, nb = generate(cfg)
    open(path, "w").write(out)
    import subprocess, re
    t = out.replace(KN + ":\n", ".fill 192, 4, 0xbf800000\n" + KN + ":\n", 1)
    open("_g.s", "w").write(t)
    subprocess.run("clang -x assembler -target amdgcn-amd-amdhsa -mcpu=gfx950 -c _g.s -o _g.o", shell=True, check=True)
    d = subprocess.run("llvm-objdump -d --mcpu=gfx950 _g.o", shell=True, capture_output=True, text=True).stdout
    lab = None; prev = None; cross = []; labs = {}
    for l in d.split("\n"):
        m = re.match(r"([0-9a-f]+) <(.*)>:", l)
        if m: lab = m.group(2); labs[lab] = int(m.group(1), 16); continue
        m = re.search(r"^\s+(\S+).*// ([0-9A-F]+):", l)
        if m:
            ad = int(m.group(2), 16)
            if prev and ad >> 12 != prev[0] >> 12 and not lab.startswith("P_") and prev[1] != "s_nop": cross.append((hex(ad), lab))
            prev = (ad, m.group(1))
    print("written", path, "hazards:", nb, "size", hex(prev[0]), "unpadded page crossings:", cross)
    if "-v" in path or cfg.VERB: print({k: hex(v) for k, v in labs.items() if k.startswith("P_") or k in ("L_cin", "L_cloop", "L_cfin", "L_comp", "L_dloop", "L_end")})
```

```python
import itertools, random
NF = 26
def pi(i): return 26 if i == 26 else ((i & ~3) | ((i + 1) & 3) if i < 24 else i ^ 1)
def orbits(pairs):
    seen = set(); out = []
    for ab in pairs:
        k = tuple(sorted(ab))
        if k in seen: continue
        o = []; x = ab
        while tuple(sorted(x)) not in seen:
            seen.add(tuple(sorted(x))); o.append(x); x = (pi(x[0]), pi(x[1]))
        out.append(o)
    return out
def lower(pairs, flip=0): return [x for o in orbits(pairs) for x in (o[flip::2] if len(o) > 1 else o)]
def build():
    O = [list(range(4 * i, 4 * i + 4)) for i in range(6)] + [[24, 25]]
    off = {(i, j): lower([(a, b) for a in O[i] for b in O[j]]) for i in range(7) for j in range(i + 1, 7)}
    dia = {i: lower([(a, b) for a in O[i] for b in O[i] if a <= b]) for i in range(7)}
    steps = []; pend = list(dia[6])
    for k in range(6):
        pend += dia[k] + off[(k, 6)]
        while len(pend) >= 8: steps.append(pend[:8]); pend = pend[8:]
        for i in range(k): steps.append(off[(i, k)])
    assert not pend and len(steps) == 22 and all(len(s) == 8 for s in steps)
    slots = [x for s in steps for x in s]
    used = set(); pairs = [[None] * 176, [None] * 176]
    for h in range(2):
        for s, (a, b) in enumerate(slots):
            x, y = (a, b) if h == 0 else (pi(a), pi(b))
            key = (min(x, y), max(x, y))
            if key not in used: used.add(key); pairs[h][s] = (x, y)
    assert len(used) == 351
    first = {}
    for s, ab in enumerate(slots):
        for f in ab: first.setdefault(f, s // 8)
    S0 = [0, 5, 2, 7, 8, 13, 10, 15, 16, 21, 18, 23, 24]
    assert set(S0) | {pi(a) for a in S0} == set(range(26))
    order = S0 + [26, 1, 3]
    return dict(slots=slots, pairs=pairs, first=first, order=order, fld=lambda h, a: a if h == 0 else pi(a), steps=steps)
if __name__ == "__main__":
    s = build()
    print(sorted(s["first"].items(), key=lambda kv: (kv[1], kv[0])))
    tot = 0
    for t in range(22):
        e = {(x, y) for h in range(2) for pr in s["pairs"][h][8*t:8*t+8] if pr for x, y in (pr, pr[::-1])}
        d = len({(r, c >> 1) for r, c in e}); tot += d
        print(t, s["steps"][t], len(e), d)
    print(tot)
```

```python
import sys, math, struct
from scheme2 import build as build_scheme, pi
from lint import lint

KN = "standalone__deep_cross_xdeepfm__recsys_kernel"
class Cfg:
    NI = 3
    CATCH = 1
    R = 6
    WPF_D = 3
    TLB = 0
    AP0 = 0
    APF = 6
    GF0 = 6
    ORD_U = "G00 G30 G01"
    ORD_F = "G10 - - G20 - -"
    ORD_M = "G11 G21 G31"
    PSITE = "F0 F2 F5 M2 M5 M6 M9 M10"
    NS1 = 0
    ROT = 0
    PRE2 = 2
    B2 = 0
    WPF2 = 0
    ALLI = 2
    LPRIO = 0
    PMASK = 15
    PAD = 0
    WLATE = 2
    XSH = 0
    FW = 1
    LFIRST = 1
    CFIRST = 0
    PFW = 0
    FTD = 1
    NA = 5
    NV = 4
    ORD_V = ""
    GSITE = "1 2 4 5"
    DPAD = 480
    EPAD = 0
    NPOLL = 1
    PSL = 2
    VERB = 0
    TOUR = 0
    LBRK = 13
    DBRK = 14
    GBRK = 1
    FPRIO = 1
    CPRIO = 1
    EACC = 0
    DUAL = 0
    FD = 4
    T_BAR = 15
    PRIO = 1
    STAMP = False
    RT = 0
    SL = 0
    CODEPF = True
    PROBE = "none"
    PN = 64
    PX = -1
def f32bits(x): return struct.unpack("<I", struct.pack("<f", x))[0]
class A:
    def __init__(s): s.L = []
    def __call__(s, t, *a):
        if a: t = t % a
        for l in t.split("\n"):
            l = l.strip()
            if l: s.L.append(l if l.endswith(":") else "    " + l)
    def text(s): return "\n".join(s.L) + "\n"
def vr(a, n): return "v[%d:%d]" % (a, a + n - 1)

SLOT = 21504
XW = 3328
PS = 128 + 8 * XW
C_W0 = 2 * PS; C_W1 = C_W0 + 35152
FS = 1488
C_F = C_W1
C_W2 = C_F + 26 * FS - 16
C_U = C_W2 + 4; C_L = C_U + 35152
VS = 80
C_VT = C_W1 + 35152 + 352
C_WC = C_VT + 2176 + 8
C_IDX = [PS + 128 + 1024, PS + 128 + XW + 1024]
assert C_L + 1352 <= 163840 and C_W2 + 35 * 1024 <= 163840 and C_WC + 256 <= C_W2
assert C_VT % 16 == 0 and (C_WC + 104) % 16 == 0 and (C_U - C_W0) % 8 == 4 and C_F % 16 == 0 and C_W2 % 8 == 0
WS_BOX = 0; WS_ST = 262144
OOB = 0x7ff00000
def srd(a, s, ptr, n):
    a("s_mov_b32 s%d, s%d\ns_mov_b32 s%d, s%d\ns_mov_b32 s%d, %d\ns_mov_b32 s%d, 0x20000", s, ptr, s + 1, ptr + 1, s + 2, n, s + 3)
S_IDX, S_TAB, S_W1, S_WS, S_WC, S_DBG, S_OUT, S_M = 32, 36, 40, 44, 48, 52, 56, 96
def sq(s): return "s[%d:%d]" % (s, s + 3)

def layout(out):
    import subprocess, re
    t = out.replace(KN + ":\n", ".fill 192, 4, 0xbf800000\n" + KN + ":\n", 1)
    open("_g.s", "w").write(t)
    subprocess.run("clang -x assembler -target amdgcn-amd-amdhsa -mcpu=gfx950 -c _g.s -o _g.o", shell=True, check=True)
    d = subprocess.run("llvm-objdump -d --mcpu=gfx950 _g.o", shell=True, capture_output=True, text=True).stdout
    lab = None; prev = None; cross = []; labs = {}
    for l in d.split("\n"):
        m = re.match(r"([0-9a-f]+) <(.*)>:", l)
        if m: lab = m.group(2); labs[lab] = int(m.group(1), 16); continue
        m = re.search(r"^\s+(\S+).*// ([0-9A-F]+):", l)
        if m:
            ad = int(m.group(2), 16)
            if prev and ad >> 12 != prev[0] >> 12 and not lab.startswith("P_") and prev[1] != "s_nop": cross.append((hex(ad), lab))
            prev = (ad, m.group(1))
    return labs, prev, cross

def generate(cfg):
    sch = build_scheme()
    order = sch["order"]; fld = sch["fld"]; slot = list(range(27)); first = sch["first"]; slots = sch["slots"]
    assert cfg.GF0 % 2 == 0
    act = lambda lab: (slot[lab] + cfg.GF0) % 26
    assert all(t in ("G00", "G10", "G20", "G30", "G01") for t in cfg.ORD_U.split())
    D_IDX = cfg.R * SLOT; D_BW = D_IDX + 13312
    assert D_BW + 3584 <= 163840
    a = A()
    def stamp(k):
        if cfg.STAMP: a("%s s[%d:%d]", "s_memrealtime" if cfg.RT else "s_memtime", 72 + 2 * k, 73 + 2 * k)
    def page(name, nxt, align=True, fall=True):
        if not cfg.TOUR: a("L_%s:", name); return
        if fall: a("s_branch L_%s", name)
        if align: a.L.append(".p2align 12")
        a("P_%s:\ns_branch %s\nL_%s:", name, nxt, name)
    def dump_stamps():
        if not cfg.STAMP: return
        a("s_memrealtime s[64:65]\ns_waitcnt vmcnt(0) lgkmcnt(0)\nv_mov_b32 v239, s64")
        for k in range(12): a("v_mov_b32 v%d, s%d", 224 + k, 72 + 2 * k)
        a("v_mov_b32 v236, s70\nv_mov_b32 v237, s2\nv_mov_b32 v238, s26")
        a("s_lshl_b32 s64, s2, 3\ns_add_u32 s64, s64, s26\ns_lshl_b32 s64, s64, 6\ns_add_u32 s64, s64, %d", WS_ST)
        a("v_mov_b32 v240, s64\ns_mov_b64 exec, 1")
        srd(a, S_WS, 24, 0x100000)
        for k in range(4): a("buffer_store_dwordx4 v[%d:%d], v240, %s, 0 offen offset:%d", 224 + 4 * k, 227 + 4 * k, sq(S_WS), 16 * k)
    WSN = WS_BOX + (262144 if cfg.DUAL else 131072)
    c1 = -2.0 * math.log2(math.e) * math.sqrt(2.0 / math.pi); c2 = c1 * 0.044715

    a("s_cmp_ge_u32 s2, 256\ns_cbranch_scc1 L_end")
    if cfg.STAMP:
        for k in range(12): a("s_mov_b32 s%d, 0", 72 + 2 * k)
    if cfg.STAMP or cfg.PROBE == "spin": a("s_memrealtime s[70:71]")
    stamp(0)
    a("""s_load_dwordx16 s[4:19], s[0:1], 0
    s_load_dwordx4 s[20:23], s[0:1], 64
    s_load_dwordx2 s[24:25], s[0:1], 80
    v_lshrrev_b32 v1, 6, v0
    v_and_b32 v0, 63, v0
    s_lshr_b32 s28, s2, 3
    v_readfirstlane_b32 s26, v1""")
    if cfg.CODEPF:
        a("""s_getpc_b64 s[64:65]
        L_pfbase:
        s_cmp_lg_u32 s26, @PFW
        s_cbranch_scc1 L_nopf
        s_mul_i32 s66, s28, 1408
        v_min_u32 v2, 10, v0
        v_lshl_add_u32 v2, v2, 7, s66
        v_min_u32 v2, L_codeend-L_pfbase-4, v2
        global_load_dword v255, v2, s[64:65]
        L_nopf:""".replace("@PFW", str(cfg.PFW)))
    if cfg.CFIRST: a("s_xor_b32 s28, s28, 16")
    a("""s_and_b32 s27, s2, 7
    s_and_b32 s30, s28, 3
    s_bfe_u32 s29, s28, 0x20002
    s_lshl_b32 s64, s27, 2
    s_add_u32 s29, s29, s64
    v_lshlrev_b32 v2, 4, v0
    v_lshlrev_b32 v251, 7, v0
    s_cmp_ge_u32 s28, 16
    s_cbranch_scc1 L_cin
    %s
    s_cbranch_scc1 %s""", "s_cmp_ge_u32 s26, 4" if cfg.LFIRST else "s_cmp_lt_u32 s26, 4", "P_loader" if cfg.TOUR else "L_comp")
    q = []
    def vm(tag): q.append(tag)
    def wait_for(pred):
        last = max(i for i, t in enumerate(q) if pred(t))
        n = len(q) - 1 - last
        assert n < 64
        a("s_waitcnt vmcnt(%d)", n)
    a("""s_and_b32 s66, s26, 3
    s_lshl_b32 s64, s29, 2
    s_add_u32 s64, s64, s66
    s_mul_i32 s64, s64, 3328
    s_mul_i32 s67, s66, 3328
    s_add_u32 s67, s67, %d
    s_mov_b32 m0, s67
    s_lshl_b32 s65, s66, 4
    s_add_u32 s65, s65, s28
    s_lshl_b32 s65, s65, 13
    s_waitcnt lgkmcnt(0)""", D_IDX)
    srd(a, S_IDX, 4, 425984)
    for i in range(4):
        if i == 3: a("s_mov_b64 exec, 0xffff")
        a("buffer_load_dwordx4 v2, %s, s64 offen offset:%d lds", sq(S_IDX), 1024 * i); vm("idx")
    a("s_mov_b64 exec, -1")
    srd(a, S_W1, 12, 1384448)
    if cfg.FTD:
        assert cfg.WLATE and cfg.WPF_D == 3 and not cfg.TLB
        a("s_mov_b32 s60, s65\ns_cmp_lg_u32 s66, 3\ns_cbranch_scc1 L_loader\ns_lshl_b32 s64, s28, 13")
        srd(a, S_WC, 8, 105456)
        a("buffer_load_dword v35, v251, %s, s64 offen\ns_branch L_loader", sq(S_WC))
    elif cfg.WLATE: a("s_mov_b32 s60, s65\ns_branch L_loader")
    else: a("s_cmp_ge_u32 s66, %d\ns_cbranch_scc1 L_loader\nbuffer_load_dword v35, v251, %s, s65 offen\ns_branch L_loader", cfg.WPF_D, sq(S_W1))
    vm("wpf")
    if cfg.SL == 3:
        k = max(i for i, l in enumerate(a.L) if "s_cmp_ge_u32 s66" in l); sv = a.L[k:]; a.L = a.L[:k]; stamp(5); a.L += sv

    a("L_cin:")
    if cfg.XSH: a("s_add_u32 s29, s29, %d\ns_and_b32 s29, s29, 31", 4 * cfg.XSH)
    NE = 16 * (4 if cfg.WPF2 else cfg.WPF_D)
    psite = cfg.PSITE.split(); vt = cfg.ORD_V.split()
    def lst2(k):
        if cfg.SL == 2 or (cfg.SL == 8 and k == 8): stamp(k)
    def lst4(k):
        if cfg.SL == 4: stamp(k)
    def lst5(k):
        if cfg.SL == 5: stamp(k)
    def stage(lo, cnt, sreg):
        hi = lo + cnt - 1
        src = lambda o: 70304 + 1024 * o if o < 36 else (1024 * (o - 2) if o < 71 else 1024 * (o - 71))
        dst = lambda o: C_W2 + 1024 * o if o < 36 else C_W0 + src(o)
        if src(hi) - src(lo) == 1024 * (cnt - 1):
            return "s_add_u32 m0, %s, %d\ns_add_u32 s64, %s, %d\nbuffer_load_dwordx4 v2, %s, s64 offen lds" % (sreg, dst(lo), sreg, src(lo), sq(S_WC))
        assert lo >= 36
        return "s_mov_b32 s65, %d\ns_cmp_lt_u32 %s, %d\ns_cselect_b32 s64, s65, %d\ns_add_u32 s64, s64, %s\ns_add_u32 m0, s64, %d\ns_nop 0\nbuffer_load_dwordx4 v2, %s, s64 offen lds" % (src(lo), sreg, 1024 * (71 - lo), src(hi) - 1024 * (cnt - 1), sreg, C_W0, sq(S_WC))
    a("""s_sub_u32 s31, s28, 16
    s_lshl_b32 s3, s26, 10
    v_lshlrev_b32 v6, 2, v0
    s_lshl_b32 s64, s29, 3
    s_lshl_b32 s65, s30, 1
    s_add_u32 s64, s64, s65
    s_sub_u32 s65, s26, 5
    s_add_u32 s64, s64, s65
    s_mul_i32 s66, s64, 1664
    s_mul_i32 s65, s65, %d
    s_add_u32 s67, s65, %d
    s_lshl_b32 s68, s31, 13
    s_sub_u32 s101, s3, 2048
    s_waitcnt lgkmcnt(0)""", C_IDX[1] - C_IDX[0], C_IDX[0])
    srd(a, S_WC, 8, 105456)
    if cfg.FTD:
        a("s_cmp_eq_u32 s26, 1\ns_cbranch_scc1 L_c3\ns_cmp_ge_u32 s101, 3072\ns_cbranch_scc1 %s", "L_c2" if vt else "L_c4")
        a(stage(32, 3, "s101"))
        if vt:
            a("s_branch L_c4\nL_c2:\ns_bitcmp1_b32 0x60, s26\ns_cbranch_scc0 L_c4\ns_mov_b32 m0, s67")
            srd(a, S_IDX, 4, 425984)
            a("buffer_load_dwordx4 v2, %s, s66 offen lds\nbuffer_load_dwordx4 v2, %s, s66 offen offset:1024 lds", sq(S_IDX), sq(S_IDX))
        a("s_branch L_c4\nL_c3:\ns_mov_b32 m0, %d", C_WC)
        srd(a, S_M, 10, 156)
        a("buffer_load_dword v6, %s, 0 offen lds\nL_c4:\ns_mov_b32 s60, s66\ns_mov_b32 s61, s67", sq(S_M))
    else:
        a("""s_cmp_lg_u32 s26, 0
        s_cbranch_scc1 L_c1
        buffer_load_dword v255, v251, %s, s68 offen
        s_branch L_c4
        L_c1:
        s_cmp_ge_u32 s26, 5
        s_cbranch_scc1 L_c2
        s_cmp_eq_u32 s26, 1
        s_cbranch_scc1 L_c3""", sq(S_WC))
        a(stage(32, 3, "s101"))
        a("s_branch L_c4\nL_c2:\ns_cmp_eq_u32 s26, 7\ns_cbranch_scc1 L_c4\ns_mov_b32 m0, s67")
        srd(a, S_IDX, 4, 425984)
        a("""buffer_load_dwordx4 v2, %s, s66 offen lds
        buffer_load_dwordx4 v2, %s, s66 offen offset:1024 lds
        s_branch L_c4
        L_c3:
        s_mov_b32 m0, %d""", sq(S_IDX), sq(S_IDX), C_WC)
        srd(a, S_M, 10, 156)
        a("buffer_load_dword v6, %s, 0 offen lds\nL_c4:", sq(S_M))
    for n in range(4): a(stage(8 * n, 8, "s3"))
    stamp(1)
    a("""s_mul_i32 s64, s26, 272
    s_add_u32 s64, s64, %d
    v_add_u32 v1, s64, v6
    v_mov_b32 v3, 0
    ds_write_b32 v1, v3
    ds_write_b32 v1, v3 offset:16
    v_lshrrev_b32 v5, 4, v0
    v_lshlrev_b32 v38, 4, v5
    v_add_u32 v38, %d, v38
    v_and_b32 v7, 15, v0
    v_lshrrev_b32 v1, 5, v0
    v_lshl_add_u32 v8, v1, 4, v7
    v_min_u32 v8, 25, v8
    v_lshlrev_b32 v9, 1, v8
    v_add_u32 v9, %d, v9
    v_add_u32 v36, %d, v6
    v_add_u32 v37, %d, v6
    v_mov_b32 v21, 0
    v_mov_b32 v247, 0
    v_bfe_u32 v23, v0, 2, 2
    v_bfe_u32 v22, v0, 4, 1
    v_and_b32 v13, 3, v0
    v_lshlrev_b32 v13, 3, v13""", C_VT, C_WC + 104, C_WC, C_WC + 52, C_VT + 26 * VS)
    a("""v_lshl_add_u32 v4, v5, 3, v23
    v_add_u32 v15, 4, v4
    v_min_u32 v4, 25, v4
    v_min_u32 v15, 25, v15
    v_mul_u32_u24 v4, 1352, v4
    v_mul_u32_u24 v15, 1352, v15
    s_and_b32 s65, s26, 1
    s_mul_i32 s64, s26, 52
    s_lshl_b32 s67, s65, 2
    s_sub_u32 s64, s64, s67
    s_add_u32 s64, s64, %d
    v_add3_u32 v10, v4, v13, s64
    v_add3_u32 v11, v15, v13, s64
    s_mul_i32 s67, s65, %d
    s_lshl_b32 s64, s26, 1
    s_sub_u32 s64, s64, s67
    s_add_u32 s64, s64, %d
    v_mul_u32_u24 v32, %d, v7
    v_add_u32 v32, s64, v32
    s_cmp_eq_u32 s65, 0
    s_cselect_b32 s68, 0, 3
    s_xor_b32 s68, s68, 0xffff
    s_cmp_eq_u32 s65, 0
    s_cselect_b32 s27, 0x3ff, 0
    s_cselect_b32 s65, 0, 0xfff
    s_or_b32 s27, s27, s65""", C_W2, 2 * VS, C_VT, VS)
    srd(a, S_TAB, 6, 6400000); srd(a, S_W1, 12, 1384448)
    a("""v_lshl_add_u32 v4, v1, 3, v23
    v_lshl_add_u32 v15, v22, 5, v13
    s_mul_i32 s64, s26, 104
    s_add_u32 s64, s64, %d
    v_mul_u32_u24 v40, 1352, v4
    v_add3_u32 v40, v40, v15, s64
    v_add_u32 v41, %d, v40
    v_add_u32 v14, 16, v4
    v_add_u32 v4, 20, v4
    v_min_u32 v14, 25, v14
    v_min_u32 v4, 25, v4
    v_mul_u32_u24 v14, 1352, v14
    v_mul_u32_u24 v4, 1352, v4
    v_add3_u32 v42, v14, v15, s64
    v_add3_u32 v43, v4, v15, s64
    v_and_b32 v4, 31, v0
    v_min_u32 v44, 26, v4
    v_mul_u32_u24 v44, %d, v44
    v_lshl_add_u32 v44, v1, 4, v44
    v_add_u32 v44, %d, v44
    v_mul_u32_u24 v15, 52, v4
    v_add_u32 v15, %d, v15
    v_mov_b32 v14, %d
    v_cmp_gt_u32 vcc, 26, v4
    v_mov_b32 v24, 104
    v_mov_b32 v25, 2704
    v_cndmask_b32 v15, v14, v15, vcc
    v_cndmask_b32 v14, v24, v25, vcc
    v_subrev_u32 v24, 16, v4
    v_lshl_add_u32 v15, v1, 3, v15
    v_cndmask_b32 v24, v24, v4, vcc
    s_add_u32 s67, s26, 8
    s_min_u32 s67, s67, 12
    v_mad_u32_u24 v46, v14, s26, v15
    v_mad_u32_u24 v48, v14, s67, v15
    v_lshrrev_b32 v14, 1, v14
    v_add3_u32 v47, v46, v14, -4
    v_add3_u32 v49, v48, v14, -4
    s_sub_u32 s67, s67, s26
    s_mul_i32 s67, s67, 104
    v_mul_u32_u24 v25, %d, v24
    v_lshl_add_u32 v25, v1, 4, v25
    v_add_u32 v215, %d, v25""", C_W1, 4 * 1352, VS, C_VT, C_U, C_L, FS, C_F)
    a("""s_mul_i32 s100, s26, %d
    s_add_u32 s100, s100, 128
    v_lshl_add_u32 v4, v4, 1, s100
    v_lshl_add_u32 v212, v1, 7, v4
    v_xor_b32 v14, 1, v1
    v_lshl_add_u32 v214, v14, 7, v4
    v_lshl_add_u32 v213, v14, 8, v214
    v_lshl_add_u32 v4, v1, 2, v23
    v_lshlrev_b32 v4, 3, v4
    v_lshl_add_u32 v14, v22, 5, v13
    v_add_u32 v15, s100, v14
    v_cmp_eq_u32 vcc, 1, v23""", XW)
    assert order[13] == 26
    for T in range(4):
        by = [slot[fld(h, order[4 * T + rr])] for h in range(2) for rr in range(4)]
        lo = sum(b << (8 * i) for i, b in enumerate(by[:4])); hi = sum(b << (8 * i) for i, b in enumerate(by[4:]))
        a("s_mov_b32 s64, 0x%x\ns_mov_b32 s65, 0x%x\nv_lshrrev_b64 v[28:29], v4, s[64:65]\nv_and_b32 v28, 0xff, v28\nv_lshl_add_u32 v%d, v28, 7, v15", lo, hi, 208 + T)
    a("v_cndmask_b32 v211, v211, v14, vcc")
    a("""v_mul_u32_u24 v50, 1352, v8
    v_mul_u32_u24 v15, %d, v22
    v_add_u32 v50, v50, v15
    v_add_u32 v50, %d, v50
    v_mul_u32_u24 v51, 52, v8
    v_add_u32 v51, %d, v51
    v_mul_u32_u24 v52, %d, v8
    v_lshl_add_u32 v52, v22, 5, v52
    v_add_u32 v52, %d, v52""", C_U - C_W0, C_W0, C_L, FS, C_F)
    a("""v_and_b32 v15, 1, v23
    v_lshl_add_u32 v15, v15, 3, s26
    v_mul_u32_u24 v15, 104, v15
    v_and_b32 v14, 3, v0
    v_lshlrev_b32 v252, 4, v14
    v_lshrrev_b32 v4, 3, v0""")
    for n in range(4):
        f0 = (cfg.GF0 + 8 * n) % 26
        if f0 + 7 < 26: a("v_lshl_add_u32 v%d, v4, 2, v15\nv_add_u32 v%d, %d, v%d", 24 + n, 24 + n, 4 * f0, 24 + n)
        else: a("v_add_u32 v14, %d, v4\nv_subrev_u32 v28, 26, v14\nv_min_u32 v14, v14, v28\nv_lshl_add_u32 v%d, v14, 2, v15", f0, 24 + n)
    for r in list(range(64, 96, 2)) + list(range(216, 232, 2)) + [236, 238]: a("v_mov_b64 v[%d:%d], 0", r, r + 1)
    a("s_lshl_b32 s64, s26, 4\ns_add_u32 s64, s64, s31\ns_add_u32 s64, s64, %d\ns_lshl_b32 s69, s64, 13", NE)
    srd(a, S_WS, 24, WSN); srd(a, S_DBG, 22, 256); srd(a, S_OUT, 20, 8192)
    a("""v_lshl_add_u32 v4, v22, 1, v1
    v_lshl_add_u32 v4, v4, 3, s26
    s_lshl_b32 s64, s30, 5
    v_add_u32 v4, s64, v4
    v_lshlrev_b32 v14, 2, v4
    v_lshl_add_u32 v14, v7, 9, v14
    s_lshl_b32 s64, s29, 12
    s_add_u32 s64, s64, %d
    v_add_u32 v14, s64, v14
    v_mov_b32 v15, %d
    v_add_u32 v28, %d, v14
    v_cmp_gt_u32 vcc, 8, v7
    s_lshl_b32 s64, s29, 8
    v_lshl_add_u32 v4, v4, 1, s64
    v_cndmask_b32 v244, %s, v14, vcc
    v_cmp_eq_u32 vcc, 0, v7
    s_nop 1
    v_cndmask_b32 v246, v15, v4, vcc""", WS_BOX, OOB, 131072 - 4096, "v28" if cfg.DUAL else "v15")
    a("v_and_b32 v33, 31, v0\nv_lshlrev_b32 v33, 2, v33\nv_mul_u32_u24 v14, %d, v1\nv_add_u32 v33, v33, v14\nv_mov_b32 v34, 0x3f803f80\nds_write_b32 v33, v34", PS)
    lst2(8)
    if cfg.TOUR:
        for w in range(7): a("s_cmp_eq_u32 s26, %d\ns_cbranch_scc1 P_fold%d", w, w)
        a("s_branch P_fold7\nL_toured:")
    a("s_and_b32 s101, s3, 0xfff\ns_cmp_ge_u32 s26, 4\ns_cbranch_scc1 L_c7")
    for n in range(cfg.NA): a(stage(36 + 4 * n, 4, "s101"))
    if cfg.SL == 8: stamp(9)
    a("s_waitcnt vmcnt(%d) lgkmcnt(0)", cfg.NA)
    if cfg.SL == 8: stamp(10)
    a("s_branch L_c8\nL_c7:")
    for n in range(cfg.NS1): a(stage(72 + 4 * n, 4, "s101"))
    if cfg.FTD and not vt:
        a("s_waitcnt vmcnt(%d)\ns_bitcmp1_b32 0x60, s26\ns_cbranch_scc0 L_c10\ns_mov_b32 m0, s61", cfg.NS1)
        srd(a, S_IDX, 4, 425984)
        a("buffer_load_dwordx4 v2, %s, s60 offen lds\nbuffer_load_dwordx4 v2, %s, s60 offen offset:1024 lds\ns_waitcnt lgkmcnt(0)\ns_branch L_c8\nL_c10:", sq(S_IDX), sq(S_IDX))
    if cfg.SL == 8: stamp(9); a("s_waitcnt vmcnt(%d)", cfg.NS1); stamp(10)
    a("s_waitcnt vmcnt(%d) lgkmcnt(0)\ns_cmp_lg_u32 s26, 7\ns_cbranch_scc1 L_c8\ns_mov_b32 m0, %d\ns_mov_b32 s64, %d\nbuffer_load_dwordx4 v2, %s, s64 offen lds\nL_c8:\ns_barrier", cfg.NS1, C_W0 + 33 * 1024, 33 * 1024, sq(S_WC))
    stamp(2)
    def gather(n, sh, r=None):
        calc = "v_lshl_add_u32 v%d, v%d, 6, v252" % (((56 if sh == 0 else 60) + n,) * 2) if r is None else "s_nop 0"
        r = r or (56 if sh == 0 else 60) + n
        ld = "buffer_load_dwordx4 v%d, %s, 0 offen lds" % (r, sq(S_TAB))
        if n == 3: ld = "s_mov_b64 exec, 0xffff\n" + ld + "\ns_mov_b64 exec, -1"
        return "s_add_u32 m0, s100, %d\n%s\n%s" % (PS * sh + 1024 * n, calc, ld)
    def tok(t): return gather(int(t[1]), int(t[2]))
    def idxreads():
        for n in range(4): a("ds_read_b32 v%d, v%d offset:%d\nds_read_b32 v%d, v%d offset:%d", 56 + n, 24 + n, C_IDX[0], 60 + n, 24 + n, C_IDX[1])
    a("ds_read_b128 v[16:19], v38")
    def vread(m):
        a("ds_read_b64_tr_b16 %s, v10 offset:%d", vr(96 + 4 * m, 2), 416 * (m >> 1) + 32 * (m & 1))
        a("ds_read_b64_tr_b16 %s, v11 offset:%d", vr(98 + 4 * m, 2), 416 * (m >> 1) + 32 * (m & 1))
    def vmul(m): a("v_mfma_f32_16x16x32_bf16 %s, v[16:19], %s, 0", vr(128 + 4 * m, 4), vr(96 + 4 * m, 4))
    def vwrite(ms):
        for jh in range(2):
            a("s_mov_b32 exec_lo, %s", "s68" if jh == 0 else "s27")
            for m in ms:
                if m & 1 == jh:
                    a("v_cvt_pk_bf16_f32 v%d, v%d, v%d", 96 + m, 128 + 4 * m, 128 + 4 * m)
                    a("ds_write_b16 v32, v%d offset:%d", 96 + m, 16 * VS * jh + 16 * (m >> 1))
    for m in range(6): vread(m)
    if cfg.NA < 9:
        a("s_cmp_ge_u32 s26, 4\ns_cbranch_scc1 L_v0")
        for n in range(cfg.NA, 9): a(stage(36 + 4 * n, 4, "s101"))
        a("L_v0:")
    rest = list(range(72 + 4 * (cfg.NS1 + cfg.NV), 104, 4))
    for m in range(6):
        a("s_waitcnt lgkmcnt(%d)", 2 * (5 - m)); vmul(m)
    lst4(8)
    if vt:
        a("ds_read_b32 v56, v24 offset:%d\nds_read_b32 v60, v24 offset:%d", C_IDX[0], C_IDX[1])
        assert all(t[1] == "0" for t in vt)
    a("s_cmp_ge_u32 s26, 2\ns_cbranch_scc1 L_v1")
    vread(6); vread(7)
    a("L_v1:")
    a("ds_read_b32 v20, v36\nds_read_u16_d16_hi v21, v9\ns_mov_b32 exec_hi, 0")
    vwrite(range(6))
    a("s_cmp_ge_u32 s26, 2\ns_cbranch_scc1 L_v2\ns_mov_b64 exec, -1\ns_waitcnt lgkmcnt(8)")
    vmul(6); vmul(7)
    a("s_nop 6\ns_mov_b32 exec_hi, 0")
    vwrite((6, 7))
    a("""L_v2:
    s_cmp_lg_u32 s26, 3
    s_cbranch_scc1 L_c5
    s_mov_b32 exec_lo, 0x1fff
    s_waitcnt lgkmcnt(6)
    ds_write_b32 v37, v20
    L_c5:
    s_mov_b64 exec, -1""")
    lst4(9)
    if vt:
        a("s_cmp_ge_u32 s26, 4\ns_cbranch_scc1 L_v8\ns_waitcnt vmcnt(0)\nL_v8:\ns_waitcnt lgkmcnt(6)")
        for t in vt: a(tok(t))
    if cfg.NV:
        a("s_cmp_lt_u32 s26, 4\ns_cbranch_scc1 L_v9")
        if not vt: a("s_waitcnt vmcnt(0)")
        for n in range(cfg.NV): a(stage(72 + 4 * (cfg.NS1 + n), 4, "s101"))
        a("s_branch L_c9\nL_v9:")
    if vt: a("L_c9:")
    else: a("s_bitcmp1_b32 %d, s26\ns_cbranch_scc0 L_c9\ns_waitcnt vmcnt(0)\nL_c9:", 0x6f if cfg.FTD else 0xf)
    lst4(10)
    a("s_waitcnt lgkmcnt(0)\ns_barrier")
    stamp(3)
    page("ustage", "L_toured")
    wpf = "buffer_load_dword v255, v251, %s, s69 offen" % sq(S_W1)
    if NE + 128 < 169 and not cfg.WPF2: wpf += "\ns_add_u32 s64, s69, %d\nbuffer_load_dword v255, v251, %s, s64 offen" % (128 << 13, sq(S_W1))
    npf = wpf.count('buffer_load')
    a("ds_read_b128 v[96:99], v44\nds_read_b128 v[100:103], v44 offset:32")
    def uread(par, base):
        for k in range(4): a("ds_read_b64_tr_b16 %s, v%d offset:%d", vr(base + 2 * k, 2), 40 + k, 48 * par)
    uread(0, 104); uread(1, 112)
    ut = cfg.ORD_U.split(); ft = cfg.ORD_F.split(); mt = cfg.ORD_M.split()
    for k in range(4): a("v_add_u32 v%d, s67, v%d", 40 + k, 40 + k)
    a("s_mov_b32 s66, 0x7ffffff\ns_mov_b32 s67, 0x7ffffff")
    def umfma(base, acc):
        a("v_mfma_f32_32x32x16_bf16 %s, %s, v[96:99], 0", vr(acc, 16), vr(base, 4))
        a("v_mfma_f32_32x32x16_bf16 %s, %s, v[100:103], %s", vr(acc, 16), vr(base + 4, 4), vr(acc, 16))
    def uwrite(acc, par, areg, tmp):
        for i in range(8 if par else 7): a("v_cvt_pk_bf16_f32 v%d, v%d, v%d", tmp + i, acc + 2 * i, acc + 2 * i + 1)
        w2 = lambda i: a("ds_write2_b32 v%d, v%d, v%d offset0:%d offset1:%d", areg, tmp + i, tmp + i + 1, 2 * i, 2 * i + 1)
        a("s_mov_b64 exec, s[66:67]")
        for i in ((0, 2, 4) if par == 0 else (2, 4)): w2(i)
        a("s_mov_b32 exec_hi, 0")
        if par == 0: a("ds_write_b32 v%d, v%d offset:48", areg, tmp + 6)
        else:
            w2(6); a("ds_write_b32 v%d, v%d offset:4", areg, tmp + 1)
            a("s_mov_b32 exec_lo, 0\ns_mov_b32 exec_hi, s67"); w2(0)
        a("s_mov_b64 exec, -1")
    a("s_cmp_ge_u32 s26, 4\ns_cbranch_scc1 L_u0")
    for o in rest: a(stage(o, 4, "s101"))
    a("L_u0:")
    a("s_waitcnt lgkmcnt(4)"); umfma(104, 128)
    a("s_waitcnt lgkmcnt(0)"); umfma(112, 144)
    a("s_bitcmp1_b32 0x2f, s26\ns_cbranch_scc0 L_u5")
    uread(0, 176)
    a("L_u5:\ns_bitcmp1_b32 0x4f, s26\ns_cbranch_scc0 L_u6")
    uread(1, 184)
    a("L_u6:")
    for n in range(4):
        if n == 0 and vt: a("ds_read_b32 v28, v24\nds_read_b32 v29, v24")
        else: a("ds_read_b32 v%d, v%d offset:%d\nds_read_b32 v%d, v%d offset:%d", 56 + n, 24 + n, C_IDX[0], 60 + n, 24 + n, C_IDX[1])
    lst2(9)
    uwrite(128, 0, 46, 192)
    a("s_bitcmp1_b32 0x2f, s26\ns_cbranch_scc0 L_u1")
    a("s_waitcnt lgkmcnt(12)"); umfma(176, 160)
    a("L_u1:\ns_bitcmp1_b32 0x4f, s26\ns_cbranch_scc0 L_u2")
    a("s_waitcnt lgkmcnt(12)"); umfma(184, 128)
    a("L_u2:\ns_waitcnt lgkmcnt(4)")
    for t in ut[0:1]: a(tok(t))
    uwrite(144, 1, 47, 200)
    for t in ut[1:]: a(tok(t))
    a("s_bitcmp1_b32 0x2f, s26\ns_cbranch_scc0 L_u3")
    uwrite(160, 0, 48, 192)
    a("L_u3:\ns_bitcmp1_b32 0x4f, s26\ns_cbranch_scc0 L_u4")
    uwrite(128, 1, 49, 200)
    a("L_u4:")
    lst2(10)
    a("s_waitcnt lgkmcnt(0)"); lst5(8)
    a("s_waitcnt vmcnt(%d)", len(ut)); lst5(9)
    a("s_barrier")
    stamp(4)
    forder = [7, 6, 0, 1, 2, 3, 4, 5]
    for w in range(7): a("s_cmp_eq_u32 s26, %d\ns_cbranch_scc1 L_fold%d", w, w)
    if cfg.TOUR: a("s_branch L_fold7")
    RES = 96
    a.L.insert(len(a.L) - 14 - (1 if cfg.TOUR else 0), "    s_mov_b32 s66, 0x3f80")
    a.L.insert(len(a.L) - 14 - (1 if cfg.TOUR else 0), "    s_mov_b32 s67, 0x3f800000")
    def job(j):
        outs = []
        for h in range(2):
            for e in range(8):
                if j < 22:
                    pr = sch["pairs"][h][8 * j + e]
                    if pr is None: outs.append("0"); continue
                    x, y = act(pr[0]), act(pr[1])
                    outs.append([(50, 52 * r + 4 * (c >> 1), c & 1) for r, c in ({(x, y), (y, x)})])
                else:
                    p = 8 * (j - 22) + e
                    if p < 13: c = act(fld(h, order[p])); outs.append([(51, 4 * (c >> 1), c & 1)])
                    else: outs.append("v21" if (p == 13 and h == 0) else "0")
        return outs
    jobs = sorted(range(24), key=lambda j: -len({k[:2] for o in job(j) if isinstance(o, list) for k in o}))
    share = [[jobs[w], jobs[15 - w], jobs[16 + w]] for w in range(8)]
    for w in forder:
        page("fold%d" % w, ["P_ustage", "P_folded", "P_cl2", "L_toured"][w % 4], align=w in (0, 3), fall=False)
        issued = vt + ut
        fq = []; rds = []
        for ji, j in enumerate(share[w]):
            reg = {}
            outs = job(j)
            seq = [(h, e) for b in range(4) for h in range(2) for e in (2 * b, 2 * b + 1)]
            for h, e in seq:
                o = outs[8 * h + e]
                if isinstance(o, list):
                    for k in o: reg.setdefault(k[:2], 128 + 18 * (ji % 2) + len(reg))
            assert len(reg) <= 18
            rds.append((outs, seq, reg))
        def rd(ji, lo, hi):
            for (ar, off), r in list(rds[ji][2].items())[lo:hi]:
                a("ds_read_b32 v%d, v%d offset:%d", r, ar, off); fq.append((ji, r))
        def fwrite(ji):
            j = share[w][ji]; o = []
            if j >= 22: o += ["s_mov_b32 exec_lo, 0xffff0000", "s_mov_b32 exec_hi, 0xffff0000"]
            o += ["ds_write_b128 v52, %s offset:%d" % (vr(RES + 8 * ji + 4 * h, 4), (64 * j if j < 22 else 1408 + 32 * (j - 22) - 32) + 16 * h) for h in range(2)]
            if j >= 22: o += ["s_mov_b64 exec, -1"]
            return o
        rd(0, 0, 18)
        pend = []
        for ji in range(3):
            outs, seq, reg = rds[ji]
            for qq in range(4):
                i = 4 * ji + qq
                if cfg.FPRIO and i % 3 == 0: a("s_setprio %d", 3 - i // 3)
                if ji < 2: rd(ji + 1, 5 * qq, 5 * qq + 5 if qq < 3 else 18)
                batch = seq[4 * qq:4 * qq + 4]
                need = [(ji, reg[k[:2]]) for h, e in batch if isinstance(outs[8 * h + e], list) for k in outs[8 * h + e]]
                if need: a("s_waitcnt lgkmcnt(%d)", min(15, len(fq) - 1 - max(fq.index(x) for x in need)))
                val = {}; second = []
                for n, (h, e) in enumerate(batch):
                    o = outs[8 * h + e]; T = 164 + 4 * (i % 2) + n
                    if not isinstance(o, list): val[h, e] = o; continue
                    val[h, e] = "v%d" % T
                    if len(o) == 1: a(("v_and_b32 v%d, 0xffff0000, v%d" if o[0][2] else "v_lshlrev_b32 v%d, 16, v%d") % (T, reg[o[0][:2]]))
                    else:
                        a("v_dot2_f32_bf16 v%d, v%d, s%d, 0", T, reg[o[0][:2]], 66 + o[0][2])
                        second.append("v_dot2_f32_bf16 v%d, v%d, s%d, v%d" % (T, reg[o[1][:2]], 66 + o[1][2], T))
                for o in second: a(o)
                for o in pend: a(o)
                pend = ["v_cvt_pk_bf16_f32 v%d, %s, %s" % (RES + 8 * ji + 4 * h + qq, val[h, 2 * qq], val[h, 2 * qq + 1]) for h in range(2)]
                if cfg.FW == 0 and qq == 0 and ji > 0:
                    for o in fwrite(ji - 1): a(o)
                    fq += [(-1, -1)] * 2
                if i % 2 == 0:
                    t = ft[i // 2]
                    if t != "-": a(tok(t)); issued.append(t)
                    if psite[w] == "F%d" % (i // 2): a(wpf); issued += ["P"] * npf
        a("s_nop 2")
        for o in pend: a(o)
        lst5(10)
        for ji in (range(3) if cfg.FW == 1 else (2,)):
            for o in fwrite(ji): a(o)
        last0 = max(issued.index(t) for t in ("G00", "G30"))
        assert sorted(t for t in issued + mt if t[0] == "G") == sorted("G%d%d" % (n, sh) for n in range(4) for sh in range(2))
        a("s_waitcnt vmcnt(%d)", len(issued) - 1 - last0)
        a("s_branch L_folded")
    page("folded", "L_toured", fall=False)
    stamp(5)
    XP = (16, 24); XFL = list(range(64, 96)) + list(range(216, 232)) + list(range(236, 240)); TMP = 96; Z = (104, 112); FR = 120
    AC = ((144, 160), (176, 192)); RR = 240
    slot_of = [0, 1] * 11 + [2]
    def frag(g, tau): return FR + 8 * slot_of[g] + 4 * tau
    def rdF(g, tau): return "ds_read_b128 %s, v215 offset:%d" % (vr(frag(g, tau), 4), 64 * g + 32 * tau)
    def rdX(sm, T): return "ds_read_b64_tr_b16 %s, v%d offset:%d" % (vr(XP[sm] + 2 * T, 2), 208 + T, 64 * sm)
    def xread(f, sm, nxt):
        reg, off = {1: (212, f), -3: (213, f - 3), -1: (214, f - 1)}[pi(f) - f]
        return "ds_read_u16_d16_hi v%d, v%d offset:%d" % (XFL[26 * sm + f], reg, 128 * off + 64 * sm + PS * nxt)
    def xreads(t, nxt, sms=(0, 1)): return [xread(i, sm, nxt) for sm in sms for i in sorted(first) if first[i] == t]
    def zops(t):
        o = []
        for sm in range(2):
            for hf in range(2):
                g = []
                for e in range(4 * hf, 4 * hf + 4):
                    x, y = slots[8 * t + e]
                    g.append("v_mul_f32 v%d, v%d, v%d" % (TMP + e, XFL[26 * sm + x], XFL[26 * sm + y]))
                for e2 in range(2 * hf, 2 * hf + 2):
                    g.append("v_cvt_pk_bf16_f32 v%d, v%d, v%d" % (Z[sm] + 4 * (t % 2) + e2, TMP + 2 * e2, TMP + 2 * e2 + 1))
                o.append(g)
        return o
    def mfc(acc, fr, b, c): return "v_mfma_f32_32x32x16_bf16 %s, %s, %s, %s" % (vr(acc, 16), vr(fr, 4), vr(b, 4), c)
    def epi(sm, dst):
        A0, A1 = AC[sm]; T = 32 + 4 * sm
        o = ["v_mul_f32 v%d, v%d, v%d" % (T + 1, A0, A1), "v_mul_f32 v%d, v%d, v%d" % (T + 2, A0 + 1, A1 + 1),
             "v_mul_f32 v%d, v%d, v%d" % (T, A0 + 12, A1 + 12), "v_fmac_f32 v%d, v%d, v%d" % (T + 1, A0 + 2, A1 + 2), "v_fmac_f32 v%d, v%d, v%d" % (T, A0 + 13, A1 + 13)]
        o += ["v_fmac_f32 v%d, v%d, v%d" % (T + 1 + i % 2, A0 + i, A1 + i) for i in range(3, 12)]
        o += ["v_cndmask_b32 v%d, 0, v%d, vcc" % (T, T), "v_add_f32 v%d, v%d, v%d" % (T + 1, T + 1, T + 2), "v_add_f32 v%d, v%d, v%d" % (dst, T, T + 1)]
        return o
    pre = xreads(0, 0) + xreads(1, 0)
    z0 = zops(0)
    for o in pre[:15]: a(o)
    for t in mt: a("v_lshl_add_u32 v%d, v%d, 6, v252", 232 + mt.index(t), (56 if t[2] == "0" else 60) + int(t[1]))
    assert len(mt) <= 4
    a("""s_lshl_b32 s31, s29, 2
    s_mov_b32 s67, s26
    s_mov_b32 s101, 0
    s_mov_b32 vcc_lo, -1
    s_mov_b32 vcc_hi, 0
    s_waitcnt lgkmcnt(9)""")
    for o in z0[0] + z0[1]: a(o)
    a("s_waitcnt lgkmcnt(3)")
    for o in z0[2] + z0[3]: a(o)
    a("s_barrier")
    stamp(6)
    a(rdF(0, 0)); a(rdF(0, 1))
    for o in pre[15:]: a(o)
    a("s_waitcnt lgkmcnt(0)")
    if cfg.SL == 6: stamp(8)
    a("L_cloop:")
    dq = []
    def ds(t, tag): a(t); dq.append(tag)
    def dwait(*tags):
        idx = [i for i, t in enumerate(dq) if t in tags]
        if idx: a("s_waitcnt lgkmcnt(%d)", min(len(dq) - 1 - max(idx), 15))
    def lst(k):
        if cfg.SL == 1: stamp(k)
        if cfg.SL == 6: a("s_cmp_eq_u32 s67, 99\ns_cbranch_scc1 L_ls%d", k); stamp(k); a("L_ls%d:", k)
    vq = [t for t in vt + ut + ft if t != "-"]
    def vwait(*toks): a("s_waitcnt vmcnt(%d)", len(vq) - 1 - max(vq.index(t) for t in toks))
    xq = [(t, f, xread(f, sm, 0)) for t in range(2, 22) for sm in range(2) for f in sorted(first) if first[f] == t]
    landed = {0, 3}
    nsite = [0]
    def site(cond, body):
        nsite[0] += 1
        a("%s\ns_cbranch_scc0 L_site%d\n%s\nL_site%d:", cond, nsite[0], body, nsite[0])
    gsite = dict(zip(map(int, cfg.GSITE.split()), mt))
    def extras(t, g):
        if g == 0:
            gn = (t + 1) % 23
            ds(rdF(gn, 0), ("F", gn if gn else -1)); ds(rdF(gn, 1), ("F", gn if gn else -1)); return
        due = [x for x in xq if x[0] - 3 <= t]
        if due and (g < 3 or len(due) > 2 or due[0][0] - 2 <= t):
            for k in range(3 if len(due) > 2 * (4 - g) + 2 else 2):
                if not xq or xq[0][0] - 3 > t: break
                tt, f, o = xq.pop(0)
                if f // 8 not in landed: vwait("G%d0" % (f // 8)); landed.add(f // 8)
                ds(o, ("x", tt))
            return
        if t in gsite:
            tk = gsite.pop(t)
            site("s_cmp_lt_u32 s67, 8", gather(int(tk[1]), int(tk[2]), 232 + mt.index(tk))); vq.append(tk); return
        if "M%d" % t in psite and ("P", t) not in landed:
            landed.add(("P", t))
            site("s_cmp_eq_u32 s67, %d" % psite.index("M%d" % t), wpf); return
        if (t, g) == (2, 3): site("s_cmp_lt_u32 s67, 8", "global_load_short_d16_hi v247, v3, s[18:19]"); return
        if (t, g) == (cfg.T_BAR, 1): a("s_waitcnt vmcnt(0)\nbuffer_load_dword v248, off, %s, s31 sc1", sq(S_DBG)); return
        if g == 2 and 17 <= t < 21:
            ds(rdX(0, t - 17), "X"); ds(rdX(1, t - 17), "X"); return
    def block(m, t, g, ops, ex=None):
        a(m)
        if cfg.PRIO: a("s_setprio 0")
        if ex is None: extras(t, g)
        else:
            for o in ex: ds(o, "n")
        for i, o in enumerate(ops):
            a(o)
            if i + 1 == cfg.PRIO: a("s_setprio 1")
    eb = epi(1, RR + 1)
    for t in range(21):
        assert not xq or xq[0][0] - 2 >= t
        if t == cfg.LBRK: page("cl2", "L_toured")
        if t == 3: lst(1)
        if t == 10: lst(2)
        if t == cfg.T_BAR: lst(3)
        if t == cfg.T_BAR + 1: lst(4)
        dwait(("F", t), ("x", t + 1))
        zn = zops(t + 1)
        seq = [(tau, sm) for tau in range(2) for sm in range(2)]
        if t == 0:
            seq = [(0, 0), (1, 0), (0, 1), (1, 1)]
            zn = [eb[:9], eb[9:] + zn[0][:2], zn[0][2:] + zn[1], zn[2] + zn[3]]
        for k, (tau, sm) in enumerate(seq):
            block(mfc(AC[sm][tau], frag(t, tau), Z[sm] + 4 * (t % 2), vr(AC[sm][tau], 16) if t else "0"), t, k, zn[k])
    assert not xq and not gsite
    lst(5)
    dwait(("F", 21))
    na = xreads(0, 1, (0,)); nb = xreads(0, 1, (1,)); n1 = xreads(1, 1)
    acc = lambda sm, tau: vr(AC[sm][tau], 16)
    block(mfc(AC[0][0], frag(21, 0), Z[0] + 4, acc(0, 0)), 21, 0, [], [rdF(22, 0), rdF(22, 1)] + na[:3])
    block(mfc(AC[0][1], frag(21, 1), Z[0] + 4, acc(0, 1)), 21, 1, [], na[3:] + nb[:2])
    block(mfc(AC[1][0], frag(21, 0), Z[1] + 4, acc(1, 0)), 21, 2, [], nb[2:])
    a("""s_waitcnt vmcnt(0)
    v_readfirstlane_b32 s64, v248
    s_cmp_lt_u32 s64, 4
    s_cbranch_scc1 L_notyet
    s_mov_b32 s101, 1
    buffer_load_dword v249, v244, %s, 0 offen sc1
    L_notyet:
    s_waitcnt lgkmcnt(%d)""", sq(S_WS), len(nb))
    block(mfc(AC[1][1], frag(21, 1), Z[1] + 4, acc(1, 1)), 21, 3, z0[0], n1[:2])
    block(mfc(AC[0][1], frag(22, 0), XP[0], acc(0, 1)), 22, 0, z0[1], [rdF(0, 0), rdF(0, 1)])
    a("s_waitcnt lgkmcnt(4)")
    block(mfc(AC[0][1], frag(22, 1), XP[0] + 4, acc(0, 1)), 22, 1, z0[2], n1[2:5])
    adds = ["v_add_u32 v%d, %d, v%d" % (208 + T, PS, 208 + T) for T in range(7)]
    block(mfc(AC[1][1], frag(22, 0), XP[1], acc(1, 1)), 22, 2, z0[3], n1[5:])
    block(mfc(AC[1][1], frag(22, 1), XP[1] + 4, acc(1, 1)), 22, 3, ["v_mov_b32 v%d, v%d" % (RR, RR + 2)] + epi(0, RR + 2) + adds, [])
    a("s_cmp_eq_u32 s67, 99\ns_mov_b32 s67, 99\ns_waitcnt lgkmcnt(0)")
    if cfg.STAMP:
        a("s_cbranch_scc1 L_cfin"); stamp(7); a("s_branch L_cloop")
    else: a("s_cbranch_scc0 L_cloop")
    a("L_cfin:\ns_setprio 0")
    if cfg.SL < 2: stamp(8)
    for o in epi(1, RR + 3): a(o)
    a("""v_permlane32_swap_b32 v%d, v%d
    s_cmp_eq_u32 s101, 1
    s_cbranch_scc1 L_cok
    s_mov_b32 s65, 0x20000
    L_cspin:
    buffer_load_dword v248, off, %s, s31 sc1
    s_waitcnt vmcnt(0)
    v_readfirstlane_b32 s64, v248
    s_sub_u32 s65, s65, 1
    s_cbranch_scc1 L_cgo
    s_cmp_lt_u32 s64, 4
    s_cbranch_scc1 L_cspin
    L_cgo:
    buffer_load_dword v249, v244, %s, 0 offen sc1
    L_cok:
    v_permlane32_swap_b32 v%d, v%d
    v_add_f32 v%d, v%d, v%d
    v_add_f32 v%d, v%d, v%d
    s_mov_b32 s65, 0x20000
    s_nop 0
    v_permlane16_swap_b32 v%d, v%d
    v_add_f32 v%d, v%d, v%d""", RR, RR + 1, sq(S_DBG), sq(S_WS), RR + 2, RR + 3, RR, RR, RR + 1, RR + 2, RR + 2, RR + 3, RR, RR + 2, RR, RR, RR + 2)
    if cfg.SL < 2: stamp(9)
    if cfg.DUAL:
        a("""s_mov_b32 s66, 0xff00ff
        s_mov_b32 s67, 0xff00ff
        L_pspin:
        s_waitcnt vmcnt(0)
        v_mov_b32_dpp v250, v249 row_ror:8 row_mask:0xf bank_mask:0xf
        v_min_u32 v250, v250, v249
        v_cmp_eq_u32 vcc, -1, v250
        s_cbranch_vccz L_pok
        s_sub_u32 s65, s65, 1
        s_cbranch_scc1 L_pok
        buffer_load_dword v249, v244, %s, 0 offen sc1
        s_branch L_pspin
        L_pok:
        v_cndmask_b32 v250, 0, v250, s[66:67]
        v_add_f32 v%d, v%d, v250""", sq(S_WS), RR, RR)
    elif cfg.NPOLL > 1:
        n = cfg.NPOLL; ld = lambda k: "buffer_load_dword v%d, v244, %s, 0 offen sc1" % (16 + k, sq(S_WS))
        a("s_waitcnt vmcnt(0)\nv_cmp_eq_u32 vcc, -1, v249\ns_cbranch_vccz L_pok")
        for k in range(n - 1): a(ld(k) + "\ns_sleep %d", cfg.PSL)
        a("L_pspin:")
        for k in range(n):
            a(ld((k + n - 1) % n) + "\ns_waitcnt vmcnt(%d)\nv_mov_b32 v249, v%d\nv_cmp_eq_u32 vcc, -1, v%d\ns_cbranch_vccz L_pok", n - 1, 16 + k, 16 + k)
        a("s_sub_u32 s65, s65, 1\ns_cbranch_scc0 L_pspin\nL_pok:\nv_add_f32 v%d, v%d, v249", RR, RR)
    else:
        a("""L_pspin:
        s_waitcnt vmcnt(0)
        v_cmp_eq_u32 vcc, -1, v249
        s_cbranch_vccz L_pok
        s_sub_u32 s65, s65, 1
        s_cbranch_scc1 L_pok
        buffer_load_dword v249, v244, %s, 0 offen sc1
        s_branch L_pspin
        L_pok:
        v_add_f32 v%d, v%d, v249""", sq(S_WS), RR, RR)
    for sh in (8, 4, 2, 1):
        a("s_nop 1\nv_add_f32_dpp v%d, v%d, v%d row_ror:%d row_mask:0xf bank_mask:0xf", RR, RR, RR, sh)
    a("""v_add_f32 v%d, v%d, v247
    v_cvt_pk_bf16_f32 v%d, v%d, v%d
    buffer_store_short v%d, v246, %s, 0 offen""", RR, RR, RR, RR, RR, RR, sq(S_OUT))
    stamp(11)
    if cfg.PROBE == "spin" and cfg.PX >= 100:
        a("s_getreg_b32 s66, hwreg(HW_REG_XCC_ID)\ns_sub_u32 s66, s66, s2\ns_and_b32 s66, s66, 7")
        if cfg.PX == 101: a("s_xor_b32 s66, s66, 7")
        a("s_add_u32 s66, s66, 2\ns_mul_i32 s66, s66, 1000")
        a("s_waitcnt lgkmcnt(0)\nL_sp:\ns_memrealtime s[64:65]\ns_waitcnt lgkmcnt(0)\ns_sub_u32 s64, s64, s70\ns_cmp_lt_u32 s64, s66\ns_cbranch_scc1 L_sp")
    elif cfg.PROBE == "spin":
        if cfg.PX >= 0: a("s_and_b32 s64, s2, 7\ns_cmp_lg_u32 s64, %d\ns_cbranch_scc1 L_end", cfg.PX)
        a("s_waitcnt lgkmcnt(0)\nL_sp:\ns_memrealtime s[64:65]\ns_waitcnt lgkmcnt(0)\ns_sub_u32 s64, s64, s70\ns_cmp_lt_u32 s64, %d\ns_cbranch_scc1 L_sp", cfg.PN * 100)
    dump_stamps()
    a("s_endpgm")
    cin = a.L
    a.L = []

    page("loader", "L_comp", fall=False)
    def lst3(k):
        if cfg.SL == 3: stamp(k)
    lst3(6)
    srd(a, S_TAB, 6, 6400000)
    if cfg.TLB:
        a("s_cmp_lt_u32 s66, %d\ns_cbranch_scc1 L_notlb\nv_mul_u32_u24 v34, 100000, v0\nbuffer_load_dword v35, v34, %s, 0 offen\nL_notlb:", cfg.WPF_D, sq(S_TAB))
    elif not cfg.FTD:
        a("s_cmp_lt_u32 s66, %d\ns_cbranch_scc1 L_notlb\nbuffer_load_dword v35, off, %s, 0\nL_notlb:", cfg.WPF_D, sq(S_TAB))
    wl = "s_cmp_ge_u32 s66, %d\ns_cbranch_scc1 L_wl\nbuffer_load_dword v35, v251, %s, s60 offen\nL_wl:" % (cfg.WPF_D, sq(S_W1))
    if cfg.WLATE == 1: a(wl)
    stamp(1)
    a("s_mul_i32 s65, s30, 416")
    for ii in range(4):
        if ii < 3: a("s_mul_i32 s64, s66, 192\ns_add_u32 s64, s64, %d", 64 * ii)
        else: a("s_mov_b32 s64, 768")
        a("""v_add_u32 v2, s64, v0
        v_mul_u32_u24 v3, 2521, v2
        v_lshrrev_b32 v3, 16, v3
        v_mul_u32_u24 v4, 26, v3
        v_sub_u32 v4, v2, v4
        v_lshrrev_b32 v5, 1, v3
        v_xor_b32 v5, v5, v3
        v_bfe_u32 v5, v5, 2, 1
        v_mul_u32_u24 v5, 12, v5
        v_xor_b32 v3, v3, v5
        v_mul_u32_u24 v3, 1664, v3
        v_lshl_add_u32 v3, v4, 4, v3
        v_add_u32 v%d, s65, v3""", 10 + ii if ii < 3 else 9)
    lst3(7)
    if cfg.WLATE == 2: a(wl)
    srd(a, S_WS, 24, WSN); srd(a, S_DBG, 22, 256)
    a("""s_lshl_b32 s64, s29, 12
    s_lshl_b32 s65, s30, 10
    s_add_u32 s64, s64, s65
    s_lshl_b32 s65, s66, 8
    s_add_u32 s64, s64, s65
    s_add_u32 s64, s64, %d
    v_lshl_add_u32 v31, v0, 2, s64
    v_mov_b32 v30, -1
    v_mov_b32 v32, 1
    s_mul_i32 s62, s66, 3072
    s_add_u32 s62, s62, 8192
    s_lshl_b32 s63, s66, 11
    v_lshrrev_b32 v2, 2, v0
    v_mul_u32_u24 v2, 104, v2
    s_mul_i32 s68, s30, %d
    s_mul_i32 s69, s68, 53248
    s_lshl_b32 s64, s68, 2
    s_add_u32 s64, s64, s67
    v_add_u32 v14, s64, v2
    v_and_b32 v2, 3, v0
    v_bfe_u32 v3, v0, 4, 1
    v_lshlrev_b32 v3, 1, v3
    v_xor_b32 v2, v2, v3
    v_lshlrev_b32 v13, 4, v2""", WS_BOX, cfg.ROT)
    def ldB(s):
        a("s_cmp_lg_u32 s66, %d\ns_cbranch_scc1 L_q%d\ns_mov_b32 m0, %d\ns_nop 0\nbuffer_load_dwordx4 v9, %s, s69 offen lds\nL_q%d:", s % 4, s, (s % cfg.R) * SLOT + 20480, sq(S_W1), s)
        for ii in range(3):
            a("s_add_u32 m0, s62, %d\ns_nop 0", (s % cfg.R) * SLOT + 1024 * ii)
            a("buffer_load_dwordx4 v%d, %s, s69 offen lds", 10 + ii, sq(S_W1)); vm(("st", s))
        a("s_add_u32 s69, s69, 53248")
        if s >= 25 - 3 * cfg.ROT: a("s_cmp_eq_u32 s69, %d\ns_cselect_b32 s69, 0, s69", 26 * 53248)
    ireg = lambda n: 64 + 2 * n if cfg.ALLI else 16 + 2 * (n % 4)
    def rdI(n):
        r = 14
        if n >= 26 - 3 * cfg.ROT:
            a("s_cmp_ge_u32 s68, %d\ns_cselect_b32 s64, 104, 0\nv_subrev_u32 v15, s64, v14", 26 - n); r = 15
        a("ds_read_b32 v%d, v%d offset:%d\nds_read_b32 v%d, v%d offset:%d", ireg(n), r, 4 * n, ireg(n) + 1, r, 4 * n + 1664)
    def ldA(s):
        for ii in range(2):
            a("s_add_u32 m0, s63, %d", (s % cfg.R) * SLOT + 1024 * ii)
            if cfg.ALLI and s >= cfg.NI: a("s_nop 0")
            else: a("v_lshl_add_u32 v%d, v%d, 6, v13", ireg(s) + ii, ireg(s) + ii)
            a("buffer_load_dwordx4 v%d, %s, 0 offen lds", ireg(s) + ii, sq(S_TAB)); vm(("st", s))
    if cfg.APF:
        a("v_and_b32 v2, 7, v0\ns_lshl_b32 s64, s30, 3\nv_add_u32 v2, s64, v2\nv_mul_u32_u24 v2, 104, v2\nv_lshrrev_b32 v3, 3, v0\nv_lshl_add_u32 v2, v3, 2, v2\ns_add_u32 s64, s67, %d\nv_add_u32 v36, s64, v2\nv_cmp_gt_u32 vcc, %d, v3\nv_mov_b32 v38, %d", 4 * cfg.AP0, cfg.APF - cfg.AP0, OOB)
    lst3(8)
    wait_for(lambda t: t == "idx")
    stamp(2)
    for s in range(cfg.NI): rdI(s)
    if cfg.APF: a("ds_read_b32 v36, v36")
    def apf():
        if cfg.APF: a("s_waitcnt lgkmcnt(0)\nv_lshlrev_b32 v36, 6, v36\nv_cndmask_b32 v36, v38, v36, vcc\nbuffer_load_dword v37, v36, %s, 0 offen", sq(S_TAB)); vm("apf")
    st = dict(nxt=cfg.NI, nrd=cfg.NI)
    def read_ahead(upto):
        while st["nrd"] <= min(upto, 25): rdI(st["nrd"]); st["nrd"] += 1
    def alli():
        read_ahead(25)
        for n in range(cfg.NI, 26):
            if (n - cfg.NI) % 4 == 0: a("s_waitcnt lgkmcnt(%d)", min(15, max(0, 2 * (25 - n - 3))))
            for ii in range(2): a("v_lshl_add_u32 v%d, v%d, 6, v13", ireg(n) + ii, ireg(n) + ii)
    if not cfg.AP0: apf()
    for s in range(cfg.NI):
        if s == 0 or cfg.ALLI != 2: a("s_waitcnt lgkmcnt(%d)", 2 * (cfg.NI - 1 - s) + (1 if cfg.APF else 0))
        ldA(s)
        if cfg.AP0 and s == 0: apf()
        if s == 0 and cfg.ALLI == 2: alli()
        ldB(s)
    if cfg.WPF2:
        a("s_cmp_lt_u32 s66, %d\ns_cbranch_scc1 L_w2\ns_lshl_b32 s65, s66, 4\ns_add_u32 s65, s65, s28\ns_lshl_b32 s65, s65, 13\ns_nop 0\nbuffer_load_dword v35, v251, %s, s65 offen\nL_w2:", cfg.WPF_D, sq(S_W1))
    if cfg.ALLI == 1: alli()
    read_ahead(st["nxt"] + cfg.CATCH - 1)
    stamp(3)
    wait_for(lambda t: t == ("st", 0))
    stamp(11)
    a("s_barrier")
    stamp(4)
    def issue(limit):
        todo = [n for n in range(st["nxt"], min(st["nxt"] + cfg.CATCH, 26)) if n <= limit]
        if not todo: return
        if not cfg.ALLI: a("s_waitcnt lgkmcnt(0)")
        for n in todo: ldA(n); ldB(n)
        st["nxt"] = todo[-1] + 1
        read_ahead(st["nxt"] + cfg.CATCH - 1)
    marks = {2: 5, 6: 6, 10: 7, 14: 8, 20: 9} if cfg.SL != 3 else {}
    def two(limit):
        for _ in range(2): issue(limit)
    if cfg.B2: two(min(cfg.NI + cfg.PRE2 - 1, cfg.R - 1))
    else: issue(cfg.R - 1)
    for s in range(0, 26, 2 if cfg.B2 else 1):
        need = min(25, s + (2 if cfg.B2 else 1))
        if s == 24: a("s_waitcnt vmcnt(0)")
        elif s < 25: wait_for(lambda t: t == ("st", need))
        a("s_barrier")
        if s == cfg.DBRK: page("ld2", "P_gl2")
        if s in marks: stamp(marks[s])
        if cfg.B2: two(s + cfg.R)
        else: issue(s + cfg.R)
        if s == 8:
            a("buffer_store_dword v30, v31, %s, 0 offen sc1", sq(S_WS)); vm("sent")
            if cfg.DUAL: a("s_mov_b32 s64, 0x20000\nbuffer_store_dword v30, v31, %s, s64 offen sc1", sq(S_WS)); vm("sent")
        if s == 24:
            assert st["nxt"] == 26
            a("s_cmp_lg_u32 s66, 0\ns_cbranch_scc1 L_noat\ns_lshl_b32 s64, s29, 2\ns_mov_b64 exec, 1\nbuffer_atomic_add v32, off, %s, s64\ns_mov_b64 exec, -1\nL_noat:", sq(S_DBG))
    stamp(10)
    dump_stamps()
    a("s_endpgm")
    loader = a.L; a.L = []

    a("L_comp:\ns_and_b32 s3, s26, 3")
    ACC = lambda tt, rt: 104 + 16 * tt + 4 * rt
    W2R = 208
    XFr = lambda st_, rt: 16 + 44 * st_ + 4 * rt
    WFr = lambda st_, tt: 32 + 44 * st_ + 4 * tt
    a("""s_and_b32 s66, s3, 1
    s_lshr_b32 s67, s3, 1
    v_and_b32 v1, 15, v0
    v_lshrrev_b32 v2, 4, v0
    v_bfe_u32 v3, v0, 2, 1
    v_lshlrev_b32 v3, 1, v3
    v_xor_b32 v3, v3, v2
    v_lshlrev_b32 v3, 4, v3
    v_lshl_add_u32 v3, v1, 6, v3
    s_lshl_b32 s64, s66, 12
    s_lshl_b32 s65, s67, 11
    s_add_u32 s64, s64, s65
    v_add_u32 v4, s64, v3
    v_xor_b32 v5, 0x800, v4
    v_lshrrev_b32 v3, 5, v0
    v_bfe_u32 v8, v0, 4, 1
    v_lshlrev_b32 v3, 4, v3
    v_lshl_add_u32 v3, v8, 2, v3
    v_bfe_u32 v8, v0, 2, 2
    v_add_u32 v3, v3, v8
    v_mul_u32_u24 v3, 416, v3
    v_and_b32 v8, 3, v0
    v_lshl_add_u32 v3, v8, 3, v3
    s_mul_i32 s64, s67, 224
    s_add_u32 s64, s64, 8192
    v_add_u32 v6, s64, v3
    v_add_u32 v7, %d, v3""", 8192 + 192)
    a("""s_mul_i32 s64, s30, 416
    s_mul_i32 s65, s67, 192
    s_add_u32 s64, s64, s65
    v_lshl_add_u32 v8, v0, 3, s64
    s_mul_i32 s65, s3, 896
    s_add_u32 s65, s65, %d
    v_lshl_add_u32 v9, v0, 4, s65
    v_lshl_add_u32 v11, v2, 4, s65
    s_lshl_b32 s64, s67, 6
    v_add_u32 v10, s64, v11
    s_mul_i32 s64, s67, 384
    s_sub_u32 s64, 384, s64
    v_add_u32 v11, s64, v11
    s_waitcnt lgkmcnt(0)
    s_mov_b64 exec, 0xfffffff
    global_load_dwordx2 v[12:13], v8, s[14:15]
    global_load_dwordx2 v[14:15], v8, s[16:17]
    s_mov_b64 exec, -1""", D_BW)
    stamp(1)
    srd(a, S_WS, 24, WSN)
    a("""s_lshl_b32 s64, s29, 12
    s_lshl_b32 s65, s30, 10
    s_add_u32 s64, s64, s65
    s_lshl_b32 s65, s67, 9
    s_add_u32 s64, s64, s65
    s_lshl_b32 s65, s66, 8
    s_add_u32 s64, s64, s65
    s_add_u32 s64, s64, %d
    s_lshl_b32 s65, s67, 5
    v_xor_b32 v1, s65, v0
    v_lshl_add_u32 v244, v1, 2, s64
    s_waitcnt vmcnt(0)
    s_mov_b64 exec, 0xfffffff
    v_lshlrev_b32 v16, 16, v12
    v_and_b32 v17, 0xffff0000, v12
    v_lshlrev_b32 v18, 16, v13
    v_and_b32 v19, 0xffff0000, v13
    v_lshlrev_b32 v20, 16, v14
    v_and_b32 v21, 0xffff0000, v14
    v_lshlrev_b32 v22, 16, v15
    v_and_b32 v23, 0xffff0000, v15
    ds_write_b128 v9, v[16:19]
    ds_write_b128 v9, v[20:23] offset:448
    s_mov_b64 exec, -1""", WS_BOX)
    if cfg.TOUR: a("s_cmp_eq_u32 s26, 0\ns_cbranch_scc1 P_ld2\nL_ctour:")
    a("s_waitcnt lgkmcnt(0)")
    for tt in range(7):
        ar, off = (10, 64 * tt) if tt < 6 else (11, 0)
        for rt in range(4 if tt < 6 else 2): a("ds_read_b128 %s, v%d offset:%d", vr(ACC(tt, rt), 4), ar, off)
        a("ds_read_b128 %s, v%d offset:%d", vr(W2R + 4 * tt, 4), ar, off + 448)
    a("""s_mov_b32 s66, 1
    s_mov_b32 s67, 13
    s_mov_b32 s68, %d
    s_mov_b32 s69, %d
    s_mov_b32 s62, 0x%x
    s_mov_b32 s63, 0x%x
    v_mov_b32 v8, 0x%x
    v_mov_b32 v9, 0x%x
    v_mov_b64 v[236:237], 0
    v_mov_b64 v[238:239], 0
    v_mov_b64 v[240:241], 0
    v_mov_b64 v[242:243], 0
    s_waitcnt lgkmcnt(0)""", -(cfg.R - 1) * SLOT, SLOT, f32bits(c2), f32bits(c2), f32bits(c1), f32bits(c1))
    def reads(st_):
        x = lambda rt: "ds_read_b128 %s, v%d offset:%d" % (vr(XFr(st_, rt), 4), 4 + rt // 2, 1024 * (rt & 1))
        w = lambda tt, u: "ds_read_b64_tr_b16 %s, v%d offset:%d" % (vr(WFr(st_, tt) + 2 * u, 2), 6 if tt < 6 else 7, (32 * tt if tt < 6 else 0) + 3328 * u)
        return [x(0), w(0, 0), w(0, 1), x(1), x(2), x(3)] + [w(tt, u) for tt in range(1, 7) for u in range(2)]
    def mf(st_, tt, rt): return "v_mfma_f32_16x16x32_bf16 %s, %s, %s, %s" % (vr(ACC(tt, rt), 4), vr(WFr(st_, tt), 4), vr(XFr(st_, rt), 4), vr(ACC(tt, rt), 4))
    if cfg.CPRIO: a("s_setprio %d", cfg.CPRIO)
    stamp(6)
    a("s_barrier")
    stamp(2)
    for r in reads(0): a(r)
    for k in range(4): a("v_add_u32 v%d, s69, v%d", 4 + k, 4 + k)
    a("L_dloop:")
    for st_ in range(2):
        a("s_waitcnt lgkmcnt(0)")
        if st_ == 0 or not cfg.B2: a("s_barrier")
        r = reads(1 - st_)
        fill = r + ["s_add_u32 s66, s66, 1\ns_cmp_eq_u32 s66, %d" % cfg.R, "s_cselect_b32 s64, s68, s69\ns_cselect_b32 s66, 0, s66"] + ["v_add_u32 v%d, s64, v%d" % (4 + k, 4 + k) for k in range(4)]
        if st_ == 1: fill += ["s_sub_u32 s67, s67, 1\ns_cmp_lg_u32 s67, 0"]
        ms = [(tt, rt) for tt in range(7) for rt in range(4 if tt < 6 else 2)]
        for k, (tt, rt) in enumerate(ms):
            a(mf(st_, tt, rt))
            if k < len(fill): a(fill[k])
    a("s_cbranch_scc1 L_dloop")
    stamp(3)
    def gelu(acc, w2, T):
        P = range(4)
        x = lambda i: vr(acc + 2 * i, 2); t = lambda i: vr(T + 2 * i, 2)
        for i in P: a("v_pk_mul_f32 %s, %s, %s", t(i), x(i), x(i))
        for i in P: a("v_pk_fma_f32 %s, %s, s[62:63], v[8:9]", t(i), t(i))
        for i in P: a("v_pk_mul_f32 %s, %s, %s", t(i), t(i), x(i))
        for i in range(8): a("v_exp_f32 v%d, v%d", T + i, T + i)
        for i in P: a("v_pk_mul_f32 %s, %s, %s", x(i), x(i), vr(w2 + 2 * (i & 1), 2))
        for i in P: a("v_pk_add_f32 %s, %s, 1.0 op_sel_hi:[1,0]", t(i), t(i))
        for i in range(8): a("v_rcp_f32 v%d, v%d", T + i, T + i)
    def gelu_fin(acc, T, rt):
        for i in (0, 2, 1, 3): a("v_pk_fma_f32 %s, %s, %s, %s", vr(236 + 2 * (rt + i // 2), 2), vr(acc + 2 * i, 2), vr(T + 2 * i, 2), vr(236 + 2 * (rt + i // 2), 2))
    a("s_waitcnt lgkmcnt(0)")
    pend = None; k = 0
    for tt in range(7):
        for rt in ((0, 2) if tt < 6 else (0,)):
            if k == cfg.GBRK: page("gl2", "L_ctour")
            T = 16 + 8 * (k % 2); k += 1
            gelu(ACC(tt, rt), W2R + 4 * tt, T)
            if pend: gelu_fin(*pend)
            pend = (ACC(tt, rt), T, rt)
    a("s_nop 0"); gelu_fin(*pend)
    a("""v_add_f32 v236, v236, v237
    v_add_f32 v240, v240, v241
    v_add_f32 v238, v238, v239
    v_add_f32 v242, v242, v243
    v_permlane32_swap_b32 v236, v240
    s_nop 0
    v_permlane32_swap_b32 v238, v242
    v_add_f32 v236, v236, v240
    v_add_f32 v238, v238, v242
    s_nop 1
    v_permlane16_swap_b32 v236, v238
    v_add_f32 v236, v236, v238""")
    if cfg.DUAL: a("s_mov_b32 s64, 0x20000\nbuffer_store_dword v236, v244, %s, s64 offen", sq(S_WS))
    a("buffer_store_dword v236, v244, %s, 0 offen sc1", sq(S_WS))
    stamp(4)
    dump_stamps()
    a("L_end:\ns_endpgm")
    comp = a.L
    body = "\n".join(cin + loader + ([".p2align 12", ".fill @DP, 4, 0xbf800000"] if cfg.DPAD else []) + comp) + "\n"

    hdr = open("standalone__deep_cross_xdeepfm__recsys.s.ref").read().split("; Override launch")[0]
    out = hdr + "; Written by the author's own generator script. Workgroups with (id>>3)<16 run a 128x208 tile of the MLP GEMM,\n; the others fold the CIN weights, evaluate the two quadratic forms per column and combine.\n"
    out += "; @launch grid=(256,1,1) block=(512,1,1) lds=163840\n"
    out += '.amdgcn_target "amdgcn-amd-amdhsa--gfx950"\n.text\n.p2align 12\n@EP.globl %s\n.p2align 8\n.type %s,@function\n%s:\n' % (KN, KN, KN)
    out += body + "L_codeend:\n"
    out += """.section .rodata,"a"
.p2align 6
.amdhsa_kernel %s
  .amdhsa_next_free_vgpr 256
  .amdhsa_next_free_sgpr 102
  .amdhsa_accum_offset 256
  .amdhsa_group_segment_fixed_size 0
  .amdhsa_kernarg_size 88
  .amdhsa_user_sgpr_count 2
  .amdhsa_user_sgpr_kernarg_segment_ptr 1
  .amdhsa_system_sgpr_workgroup_id_x 1
  .amdhsa_float_denorm_mode_32 3
.end_amdhsa_kernel
""" % KN
    out = out.replace("@EP", ".fill 832, 4, 0xbf800000\n" if cfg.EPAD else "")
    if cfg.DPAD:
        labs = layout(out.replace("@DP", "0"))[0]
        out = out.replace("@DP", str((-(labs["L_dloop"] - labs["L_comp"] + cfg.DPAD) % 4096) // 4))
    return out, lint(body)

if __name__ == "__main__":
    cfg = Cfg()
    path = sys.argv[1]
    for kv in sys.argv[2:]:
        k, v = kv.split("=")
        old = getattr(cfg, k)
        v = v.replace("_", " ") if k.startswith("ORD") or k == "PSITE" else v
        setattr(cfg, k, v if isinstance(old, str) else (bool(int(v)) if isinstance(old, bool) else int(v)))
    out, nb = generate(cfg)
    open(path, "w").write(out)
    labs, prev, cross = layout(out)
    print("written", path, "hazards:", nb, "size", hex(prev[0]), "unpadded page crossings:", cross)
    if "-v" in path or cfg.VERB: print({k: hex(v) for k, v in labs.items() if k.startswith("P_") or k in ("L_cin", "L_cloop", "L_cfin", "L_comp", "L_dloop", "L_end")})
```
